```python
import torch

def _softmax(x, axis=-1):
    return torch.softmax(x, dim=axis)

def _gelu(x):
    return torch.nn.functional.gelu(x, approximate='tanh')

def _silu(x):
    return torch.nn.functional.silu(x)

def _sigmoid(x):
    return torch.sigmoid(x)

def _layernorm(x, axis=-1, eps=1e-05):
    m = x.mean(dim=axis, keepdim=True)
    v = x.var(dim=axis, keepdim=True, unbiased=False)
    return (x - m) / torch.sqrt(v + eps)

def _scatter_add(tgt, idx, src, axis=0):
    return tgt.clone().index_add_(axis, idx, src)

def _segment_sum(src, seg, n):
    out = torch.zeros((n,) + src.shape[1:], dtype=src.dtype)
    return out.index_add_(0, seg, src)

def _pad(x, pw):
    flat = tuple((v for pair in reversed(pw) for v in pair))
    return torch.nn.functional.pad(x, flat)
kernel_name = 'standalone__kv_cache_quant_pre_rope_vs_post_rope__decode'

def setup_inputs():

    _w = lambda a: (lambda t: t.to(torch.bfloat16) if t.is_floating_point() else t)(torch.as_tensor(a))
    B, Sq, Skv = (1, 1, 16384)
    H, Dh0 = (32, 192)
    G = -1 if -1 > 0 else Dh0
    G = max(2, G // 2 * 2)
    Dh = max(G, Dh0 // G * G)
    Skv = max(Skv, Sq)
    ng = Dh // G
    bits = 3 if 3 > 1 else 4
    bits = max(2, min(8, bits))
    qmax = (1 << bits) - 1
    half = Dh // 2
    inv = 1.0 / 10000.0 ** (torch.arange(half) / max(1, half))
    ang_k = torch.arange(Skv)[:, None] * inv[None, :]
    ang_q = torch.arange(Skv - Sq, Skv)[:, None] * inv[None, :]
    kc = torch.cat([torch.cos(ang_k), torch.cos(ang_k)], dim=-1)
    ks = torch.cat([torch.sin(ang_k), torch.sin(ang_k)], dim=-1)
    qc = torch.cat([torch.cos(ang_q), torch.cos(ang_q)], dim=-1)
    qs = torch.cat([torch.sin(ang_q), torch.sin(ang_q)], dim=-1)
    qk_i = torch.randint(0, qmax + 1, (B, H, Skv, Dh)).to(torch.int32)
    qv_i = torch.randint(0, qmax + 1, (B, H, Skv, Dh)).to(torch.int32)
    ksc = torch.abs((lambda *s: torch.randn(*s, dtype=torch.bfloat16) * 0.4)(B, H, Skv, ng)) * 0.1 + 0.01
    kzp = torch.full((B, H, Skv, ng), qmax / 2.0)
    vsc = torch.abs((lambda *s: torch.randn(*s, dtype=torch.bfloat16) * 0.4)(B, H, Skv, ng)) * 0.1 + 0.01
    vzp = torch.full((B, H, Skv, ng), qmax / 2.0)
    return {'q': _w((lambda *s: torch.randn(*s, dtype=torch.bfloat16) * 6.4)(B, H, Sq, Dh) * 0.5), 'qk': _w(qk_i), 'k_scales': _w(ksc), 'k_zeros': _w(kzp), 'qv': _w(qv_i), 'v_scales': _w(vsc), 'v_zeros': _w(vzp), 'q_cos': _w(qc), 'q_sin': _w(qs), 'k_cos': _w(kc), 'k_sin': _w(ks)}

def reference(q, qk, k_scales, k_zeros, qv, v_scales, v_zeros, q_cos, q_sin, k_cos, k_sin):
    B, H, Sq, Dh = q.shape
    ng = k_scales.shape[-1]
    G = Dh // ng
    half = Dh // 2
    ks = (lambda x, n, axis: torch.repeat_interleave(x, n, dim=axis))(k_scales, G, axis=-1)
    kz = (lambda x, n, axis: torch.repeat_interleave(x, n, dim=axis))(k_zeros, G, axis=-1)
    k = ((lambda x, dt: x.to(dt))(qk, q.dtype) - kz) * ks
    vs = (lambda x, n, axis: torch.repeat_interleave(x, n, dim=axis))(v_scales, G, axis=-1)
    vz = (lambda x, n, axis: torch.repeat_interleave(x, n, dim=axis))(v_zeros, G, axis=-1)
    v = ((lambda x, dt: x.to(dt))(qv, q.dtype) - vz) * vs
    k1 = k[..., :half].clone()
    k2 = k[..., half:].clone()
    krh = torch.concatenate([-k2, k1], axis=-1)
    kr = k * k_cos[None, None, :, :] + krh * k_sin[None, None, :, :]
    q1 = q[..., :half].clone()
    q2 = q[..., half:].clone()
    qrh = torch.concatenate([-q2, q1], axis=-1)
    qr = q * q_cos[None, None, :, :] + qrh * q_sin[None, None, :, :]
    logits = torch.einsum('bhqd,bhkd->bhqk', qr, kr) * float(Dh) ** (-0.5)
    attn = _softmax(logits, axis=-1)
    out = torch.einsum('bhqk,bhkd->bhqd', attn, v)
    return out
```

```python
import re

TRANS = ("v_exp_f32", "v_log_f32", "v_rcp_f32", "v_rsq_f32", "v_sqrt_f32", "v_sin_f32", "v_cos_f32")

def _regs(tok):
    tok = tok.strip()
    tok = tok.lstrip('-')
    m = re.fullmatch(r"(?:abs\()?([vsa])\[(\d+):(\d+)\]\)?", tok)
    if m:
        return [f"{m.group(1)}{i}" for i in range(int(m.group(2)), int(m.group(3)) + 1)]
    m = re.fullmatch(r"(?:abs\()?([vsa])(\d+)\)?", tok)
    if m:
        return [f"{m.group(1)}{m.group(2)}"]
    if tok in ("vcc", "vcc_lo", "vcc_hi"):
        return ["vcc"]
    if tok in ("exec", "exec_lo", "exec_hi"):
        return ["exec"]
    if tok == "m0":
        return ["m0"]
    return []

def _split_ops(s):
    out, depth, cur = [], 0, ""
    for ch in s:
        if ch in "[(":
            depth += 1
        if ch in "])":
            depth -= 1
        if ch == "," and depth == 0:
            out.append(cur.strip()); cur = ""
        else:
            cur += ch
    if cur.strip():
        out.append(cur.strip())
    return out

class Ins:
    def __init__(self, text):
        self.text = text
        t = text.split(";")[0].strip()
        parts = t.split(None, 1)
        self.op = parts[0]
        rest = parts[1] if len(parts) > 1 else ""
        ops = _split_ops(rest)
        self.mods = ""
        if ops:
            last = ops[-1].split(None, 1)
            if len(last) > 1 and not last[0].endswith(("[", ":")):
                ops[-1] = last[0]; self.mods = last[1]
        self.ops = ops
        op = self.op
        self.valu = op.startswith("v_")
        self.salu = op.startswith("s_") and not op.startswith(("s_load", "s_buffer_load", "s_memtime", "s_memrealtime", "s_atomic"))
        self.vmem = op.startswith(("buffer_", "global_", "flat_"))
        self.ds = op.startswith("ds_")
        self.dpp = "_dpp" in op
        self.trans = any(op.startswith(x) for x in TRANS)
        self.dot = op.startswith("v_dot")
        self.permlane = op.startswith("v_permlane")
        self.readlane = op.startswith(("v_readlane", "v_readfirstlane"))
        self.w, self.r = [], []
        if self.valu:
            if op.startswith("v_cmp"):
                self.w = _regs(ops[0]); srcs = ops[1:]
                if op.startswith("v_cmpx"): self.w += ["exec"]
            elif op.startswith(("v_add_co", "v_sub_co", "v_addc_co", "v_subb_co", "v_subrev_co")):
                self.w = _regs(ops[0]) + _regs(ops[1]); srcs = ops[2:]
            elif self.permlane and "swap" in op:
                self.w = _regs(ops[0]) + _regs(ops[1]); srcs = ops[:]
            else:
                self.w = _regs(ops[0]); srcs = ops[1:]
                if op.startswith(("v_fmac", "v_dot2c", "v_pk_fmac", "v_writelane")) or self.dpp:
                    srcs = srcs + [ops[0]]
            for s in srcs:
                self.r += _regs(s)
            if op.startswith("v_cndmask") and len(ops) == 3:
                self.r += ["vcc"]
        elif self.vmem:
            if "load" in op and "lds" not in self.mods:
                self.w = _regs(ops[0])
                for s in ops[1:]: self.r += _regs(s)
                self.data = []
            else:
                for s in ops: self.r += _regs(s)
                if op.startswith("buffer_"):
                    self.data = _regs(ops[0])
                else:
                    self.data = _regs(ops[1]) if len(ops) > 1 else []
                if "atomic" in op and "sc0" in self.mods and op.startswith("buffer_"):
                    self.w = _regs(ops[0])
        elif self.ds:
            if op.startswith(("ds_read", "ds_bpermute", "ds_permute", "ds_swizzle")) or "_rtn_" in op:
                self.w = _regs(ops[0])
                for s in ops[1:]: self.r += _regs(s)
            else:
                for s in ops: self.r += _regs(s)
        elif self.salu:
            if op.startswith(("s_cmp", "s_cbranch", "s_branch", "s_waitcnt", "s_nop", "s_barrier", "s_endpgm", "s_setprio", "s_sleep", "s_bitcmp")):
                for s in ops: self.r += _regs(s)
            else:
                self.w = _regs(ops[0]) if ops else []
                for s in ops[1:]: self.r += _regs(s)
                if "saveexec" in op: self.w += ["exec"]
        self.wide_store = self.vmem and ("store_dwordx3" in op or "store_dwordx4" in op)
        self.states = 1
        if op == "s_nop":
            self.states = int(ops[0], 0) + 1

def need(prod, cons):
    n = 0
    pw = set(prod.w)
    if prod.valu:
        vw = {x for x in pw if x[0] in "va" and x != "vcc"}
        sw = {x for x in pw if x[0] == "s" or x == "vcc"}
        cr = set(cons.r); cw = set(cons.w)
        if cons.valu:
            if cons.dpp and vw & cr: n = max(n, 2)
            if cons.permlane and vw & cr: n = max(n, 2)
            if cons.readlane and vw & cr: n = max(n, 1)
            if prod.trans and not cons.trans and vw & cr: n = max(n, 1)
            if prod.trans and cons.trans and vw & cr: n = max(n, 1)
            if prod.dot:
                if cons.op != prod.op and vw & (cr | cw): n = max(n, 3)
                if cons.op == prod.op:
                    ab = set(_regs(cons.ops[1]) + _regs(cons.ops[2]))
                    if vw & ab: n = max(n, 3)
                    elif vw & cw and not (len(cons.ops) > 3 and vw & set(_regs(cons.ops[3]))): n = max(n, 3)
            if sw & cr:
                n = max(n, 4 if cons.op.startswith(("v_readlane", "v_writelane")) else 2)
            if "exec" in pw and (cons.dpp): n = max(n, 5)
            if "exec" in pw and (cons.readlane or cons.permlane): n = max(n, 4)
        if cons.vmem or cons.ds:
            if sw & cr and cons.vmem: n = max(n, 5)
            if prod.dot and vw & (cr | cw): n = max(n, 3)
            if prod.trans and vw & cr: n = max(n, 1)
        if cons.salu and sw & cr:
            n = max(n, 1)
    if prod.wide_store:
        d = set(prod.data)
        if d & set(cons.w): n = max(n, 2)
    if prod.salu and "m0" in pw and (cons.vmem and "lds" in cons.mods):
        n = max(n, 1)
    return n

class Asm:
    def __init__(self):
        self.lines = []
        self.hist = []
        self.nops = 0
    def raw(self, s):
        self.lines.append(s)
    def label(self, name, flush=True):
        if flush: self.fence()
        self.lines.append(f"{name}:")
    def fence(self):
        dist = 0; req = 0
        for p in reversed(self.hist[-8:]):
            if p.valu or p.wide_store:
                k = 5 if any(x[0] == "s" or x in ("vcc", "exec") for x in p.w) else (3 if p.dot else 2)
                req = max(req, k - dist)
            dist += p.states
        if req > 0:
            self._emit(Ins(f"s_nop {req-1}"))
        self.hist = []
    def _emit(self, ins):
        self.lines.append("    " + ins.text)
        self.hist.append(ins)
        if len(self.hist) > 12: self.hist = self.hist[-12:]
        if ins.op == "s_nop": self.nops += 1
    def __call__(self, text):
        for t in text.split("\n"):
            t = t.strip()
            if not t or t.startswith(";"):
                if t: self.lines.append("    " + t)
                continue
            ins = Ins(t)
            dist = 0; req = 0
            for p in reversed(self.hist):
                req = max(req, need(p, ins) - dist)
                dist += p.states
                if dist >= 6: break
            if req > 0:
                self._emit(Ins(f"s_nop {req-1}"))
            if ins.op.startswith(("s_cbranch", "s_branch")):
                self.fence()
            self._emit(ins)
    def text(self):
        return "\n".join(self.lines) + "\n"
```

```python
import sys, math, struct
from asmb import Asm

KN = "standalone__kv_cache_quant_pre_rope_vs_post_rope__decode_kernel"
HS = 16384 * 768
KVB = 32 * HS
CSB = 16384 * 384
WSB = 1610612736
X_OFF = 32 << 20
R_OFF = 40 << 20
STAMP_OFF = 1 << 30
SB = 12288

def f2u(f): return struct.unpack("<I", struct.pack("<f", f))[0]
HEADER = open("standalone__kv_cache_quant_pre_rope_vs_post_rope__decode.s.ref").read().split("; Override launch")[0]

def gen(NG=4, RS=9, nmin=16, nmax=36, n0=20.5, kp=4.0, tau0=6.38, t1=3.3, k0=8, C=16, D1=4, D2=10, npub=8, LSTR=4352, eps=0.0,
        rotV=4, rotK=4, F=4, stamp=0, csleep=1, hsleep=8, psleep=1, ipre=1, ctl=1, stf="sc0 sc1", ldf="sc0 sc1", csf="", scf="",
        wext=0, dbg="", epk=16, kstart=3, nstart=21, csw=4, sct=4, sc0=8, roles=(4,0,1,2,7,3,5,6), tlo=0.03, gsleep=1, scpre=0, spw=16, xm=1, serp=1, alpha=0.0, thi=0.02):
    GW = 256 // NG; SPH = 4 * NG; HPG = 32 // NG; NQ = NG; PD = max(1, HPG // 4)
    A = min(4, HPG)
    lg = lambda x: x.bit_length() - 1
    NST = 256
    REV = 1 if (serp and NQ > 1) else 0
    TX = 128 - 4 * HPG
    L_RING = 0
    L_SC = RS * SB
    L_X = L_SC + 16384
    L_QS = L_X + 16384
    L_QT = L_QS + HPG * 1024
    L_ST = L_QT + HPG * 768
    L_TS = L_ST + HPG * 16
    L_CT = L_TS + 1088
    C_LAND, C_STEP, C_REF, C_QRDY, C_PRDY, C_EPO, C_G = 16, 20, 24, 32, 36, 40, 44
    lds = L_CT + 256
    assert lds <= 163840, lds
    a = Asm()
    a.raw(HEADER.rstrip("\n"))
    a.raw(f"; @launch grid=(256,1,1) block=(512,1,1) lds={lds}")
    a.raw('.amdgcn_target "amdgcn-amd-amdhsa--gfx950"')
    for l in f"""Overview (256 workgroups, HBM-bandwidth bound; a workgroup owns {64*NG} rows x {HPG} heads, a step is 16 rows of one head):
 * wave 4 (loader) streams all K steps, then all V steps, into an LDS ring with LDS-DMA loads.  It never waits on a clock;
   it only picks how many loads it keeps in flight ({nmin}..{nmax}) from how far it is behind or ahead of the other workgroups,
   which keeps the chip's reads in one narrow address window and lets all workgroups finish together.
 * wave 6 (pacer) exchanges a few progress time stamps through d_ws for that purpose (speed only, never results).
 * waves 0-3, K steps: logit = ks * sum_d (k[d]-kz) * (qr[d]*cos[d] +- qr[d+-96]*sin[d+-96])  (RoPE moved onto q).
 * wave 5 (helper): rotated q table, scales, softmax weights relative to the true max of the workgroup's rows.
 * waves 0-3, V steps: 48 columns each; per head one partial (max, sum, 192 values) tagged with a per-launch epoch.
 * The helper of workgroup i finally combines 24 output columns (i&7) of head (i>>3) from all partials.""".split("\n"):
        a.raw("; " + l)
    a.raw(".text"); a.raw(f".globl {KN}"); a.raw(".p2align 8"); a.raw(f".type {KN},@function"); a.raw(f"{KN}:")
    srd = lambda b: f"s[{b}:{b+3}]"
    sp = lambda i: f"s[{i}:{i+1}]"
    v = lambda i: f"v{i}"
    vp = lambda i: f"v[{i}:{i+1}]"
    v4 = lambda i: f"v[{i}:{i+3}]"
    s = lambda i: f"s{i}"
    DPP = "row_mask:0xf bank_mask:0xf"
    pQ, pK, pKS, pKZ, pV, pVS, pVZ, pQC, pQS, pKC, pKSN, pOUT, pDBG, pWS = range(48, 76, 2)
    sWave, sG, sI, sX = 76, 77, 78, 79
    sT0, sT1, sT2, sT3 = 80, 81, 82, 83
    sStart = 84
    def mk(b, p, n):
        a(f"s_mov_b32 {s(b)}, {s(p)}"); a(f"s_mov_b32 {s(b+1)}, {s(p+1)}"); a(f"s_mov_b32 {s(b+2)}, {n}"); a(f"s_mov_b32 {s(b+3)}, 0x20000")
    vLane, vL16, vCT, vF = 1, 2, 3, 4
    def lds_wait(lbl, off, val, dst, sleep, cmp="s_cmp_lt_i32"):
        a.label(lbl)
        if sleep: a(f"s_sleep {sleep}")
        a(f"ds_read_b32 {v(vF)}, {v(vCT)} offset:{off}")
        a("s_waitcnt lgkmcnt(0)")
        a(f"v_readfirstlane_b32 {s(dst)}, {v(vF)}")
        a(f"{cmp} {s(dst)}, {val}")
        a(f"s_cbranch_scc1 {lbl}")
    def row_reduce(op, x):
        a(f"{op}_dpp {v(x)}, {v(x)}, {v(x)} quad_perm:[1,0,3,2] {DPP}")
        a(f"{op}_dpp {v(x)}, {v(x)}, {v(x)} quad_perm:[2,3,0,1] {DPP}")
        a(f"{op}_dpp {v(x)}, {v(x)}, {v(x)} row_half_mirror {DPP}")
        a(f"{op}_dpp {v(x)}, {v(x)}, {v(x)} row_mirror {DPP}")
    def xrows(op, x, t1_):
        a(f"v_mov_b32 {v(t1_)}, {v(x)}")
        a(f"v_permlane32_swap_b32 {v(x)}, {v(t1_)}")
        a(f"{op} {v(x)}, {v(x)}, {v(t1_)}")
        a(f"v_mov_b32 {v(t1_)}, {v(x)}")
        a(f"v_permlane16_swap_b32 {v(x)}, {v(t1_)}")
        a(f"{op} {v(x)}, {v(x)}, {v(t1_)}")

    a("s_cmp_ge_u32 s2, 256")
    a("s_cbranch_scc1 L_end")
    a("s_load_dwordx16 s[48:63], s[0:1], 0")
    a("s_load_dwordx8 s[64:71], s[0:1], 64")
    a("s_load_dwordx4 s[72:75], s[0:1], 96")
    a(f"s_memrealtime {sp(sStart)}")
    a(f"v_lshrrev_b32 {v(vF)}, 6, v0")
    a(f"v_and_b32 {v(vLane)}, 63, v0")
    a(f"v_readfirstlane_b32 {s(sWave)}, {v(vF)}")
    a(f"v_lshlrev_b32 {v(vL16)}, 4, {v(vLane)}")
    a(f"v_mov_b32 {v(vCT)}, {L_CT}")
    a(f"s_lshl_b32 {s(sWave)}, {s(sWave)}, 2")
    a(f"s_lshr_b32 {s(sWave)}, {hex(sum(r << (4*k) for k, r in enumerate(roles)))}, {s(sWave)}")
    a(f"s_and_b32 {s(sWave)}, {s(sWave)}, 7")
    a(f"s_and_b32 {s(sX)}, s2, 7")
    a(f"s_lshr_b32 {s(sT0)}, s2, 3")
    a(f"s_and_b32 {s(sG)}, {s(sT0)}, {NG-1}")
    a(f"s_lshr_b32 {s(sT0)}, {s(sT0)}, {lg(NG)}")
    a(f"s_lshr_b32 {s(sI)}, {s(sT0)}, {lg(A)}")
    a(f"s_lshl_b32 {s(sI)}, {s(sI)}, 3")
    a(f"s_add_u32 {s(sI)}, {s(sI)}, {s(sX)}")
    a(f"s_lshl_b32 {s(sI)}, {s(sI)}, {lg(A)}")
    a(f"s_and_b32 {s(sT0)}, {s(sT0)}, {A-1}")
    a(f"s_add_u32 {s(sI)}, {s(sI)}, {s(sT0)}")
    a(f"s_cmp_eq_u32 {s(sWave)}, 4")
    a("s_cbranch_scc0 L_notld")

    sK = 4
    sBase, sOff, sT, sGw, sEnd, sN, sRotK, sRotV = 8, 9, 10, 11, 12, 15, 16, 17
    vI, vT, vG = 5, 6, 7
    G0 = (RS << 8) | nstart
    assert rotK % 4 == 0 and rotV % 4 == 0
    a("; ==== loader ====")
    a("s_setprio 3")
    a(f"s_mul_i32 {s(sBase)}, {s(sG)}, {HS}")
    a(f"s_mul_i32 {s(sT0)}, {s(sI)}, {SB}")
    a(f"s_add_u32 {s(sBase)}, {s(sBase)}, {s(sT0)}")
    a(f"s_mul_i32 {s(sRotK)}, {s(sG)}, {rotK}")
    a(f"s_mul_i32 {s(sRotV)}, {s(sG)}, {rotV}")
    a(f"s_and_b32 {s(sT0)}, {s(sRotK)}, {SPH-1}")
    a(f"s_mul_i32 {s(sOff)}, {s(sT0)}, {GW*SB}")
    a(f"s_add_u32 {s(sOff)}, {s(sOff)}, {s(sBase)}")
    a("s_mov_b32 m0, 0")
    a(f"s_mov_b32 {s(sK+2)}, {KVB}"); a(f"s_mov_b32 {s(sK+3)}, 0x20000")
    a("s_waitcnt lgkmcnt(0)")
    a(f"s_mov_b32 {s(sK)}, {s(pK)}"); a(f"s_mov_b32 {s(sK+1)}, {s(pK+1)}")
    for k in range(12):
        a(f"buffer_load_dwordx4 {v(vL16)}, {srd(sK)}, {s(sOff)} offen offset:{(k%4)*1024} nt lds")
        if k % 4 == 3:
            a(f"s_add_u32 {s(sOff)}, {s(sOff)}, 4096"); a("s_add_u32 m0, m0, 4096")
    a(f"s_mov_b32 {s(sT)}, 0")
    a(f"v_mov_b32 {v(vI)}, 12"); a(f"v_mov_b32 {v(vG)}, {G0}")
    a("s_barrier")
    a.label("L_next")
    a(f"s_add_u32 {s(sT)}, {s(sT)}, 1")
    a(f"s_cmp_eq_u32 m0, {RS*SB}"); a("s_cselect_b32 m0, 0, m0")
    a("s_waitcnt lgkmcnt(4)")
    a(f"v_readfirstlane_b32 {s(sGw)}, {v(vG)}")
    a(f"s_add_u32 {s(sEnd)}, m0, {SB}")
    a(f"s_add_u32 {s(sOff)}, {s(sOff)}, {GW*SB-SB}")
    a(f"s_and_b32 {s(sT0)}, {s(sT)}, 3")
    a.lines.append("    s_cbranch_scc0 L_addr")
    a.label("L_aj", flush=False)
    a(f"s_lshr_b32 {s(sT0)}, {s(sGw)}, 8")
    a(f"ds_read_b32 {v(vG)}, {v(vCT)} offset:{C_G}")
    a(f"s_cmp_gt_u32 {s(sT0)}, {s(sT)}")
    a.lines.append("    s_cbranch_scc0 L_full")
    a(f"s_and_b32 {s(sN)}, {s(sGw)}, 255")
    a.hist = []
    def tree(lo, hi):
        if lo == hi:
            a(f"s_branch L_v{lo}"); return
        mid = (lo + hi + 1) // 2
        a(f"s_cmp_ge_i32 {s(sN)}, {mid}"); a(f"s_cbranch_scc1 L_t_{mid}_{hi}" if mid < hi else f"s_cbranch_scc1 L_v{hi}")
        tree(lo, mid - 1)
        if mid < hi:
            a.label(f"L_t_{mid}_{hi}")
            tree(mid, hi)
    tree(nmin, nmax)
    for n in range(nmin, nmax + 1):
        a.label(f"L_v{n}")
        for q in range(3):
            a(f"s_waitcnt vmcnt({n-1})")
            a(f"buffer_load_dwordx4 {v(vL16)}, {srd(sK)}, {s(sOff)} offen offset:{q*1024} nt lds")
        a(f"v_subrev_u32 {v(vT)}, {n-3}, {v(vI)}")
        a("s_add_u32 m0, m0, 3072")
        a(f"ds_write_b32 {v(vCT)}, {v(vT)} offset:{C_LAND}")
        a(f"v_add_u32 {v(vI)}, 3, {v(vI)}")
        a(f"s_add_u32 {s(sOff)}, {s(sOff)}, 3072")
        a(f"s_cmp_lg_u32 m0, {s(sEnd)}")
        a.lines.append(f"    s_cbranch_scc1 L_v{n}")
        a.lines.append("    s_branch L_next")
    a.label("L_full")
    a("s_waitcnt lgkmcnt(0)")
    a(f"v_readfirstlane_b32 {s(sGw)}, {v(vG)}")
    a("s_branch L_aj")
    a("; every 4th step: new head and/or new row range"); a.label("L_addr")
    a(f"s_cmp_lt_u32 {s(sT)}, 128")
    a("s_cbranch_scc0 L_av")
    a(f"s_lshr_b32 {s(sT0)}, {s(sT)}, {2+lg(HPG)}"); a(f"s_lshl_b32 {s(sT0)}, {s(sT0)}, 2")
    a(f"s_add_u32 {s(sT0)}, {s(sT0)}, {s(sRotK)}")
    a(f"s_bfe_u32 {s(sT1)}, {s(sT)}, {hex((lg(HPG) << 16) | 2)}")
    if serp:
        a(f"s_bitcmp1_b32 {s(sT)}, {2+lg(HPG)}"); a(f"s_cselect_b32 {s(sT2)}, {HPG-1}, 0"); a(f"s_xor_b32 {s(sT1)}, {s(sT1)}, {s(sT2)}")
    a("s_branch L_ak")
    a.label("L_av")
    a(f"s_cmp_eq_u32 {s(sT)}, {NST}")
    a("s_cbranch_scc1 L_drain")
    a(f"s_mov_b32 {s(sK)}, {s(pV)}"); a(f"s_mov_b32 {s(sK+1)}, {s(pV+1)}")
    a(f"s_add_u32 {s(sT0)}, {s(sT)}, {s(sRotV)}")
    a(f"s_bfe_u32 {s(sT1)}, {s(sT)}, {hex((lg(HPG) << 16) | lg(SPH))}")
    if REV: a(f"s_xor_b32 {s(sT1)}, {s(sT1)}, {HPG-1}")
    a.label("L_ak")
    a(f"s_and_b32 {s(sT0)}, {s(sT0)}, {SPH-1}")
    a(f"s_mul_i32 {s(sT0)}, {s(sT0)}, {GW*SB}"); a(f"s_mul_i32 {s(sT1)}, {s(sT1)}, {NG*HS}")
    a(f"s_add_u32 {s(sOff)}, {s(sT0)}, {s(sT1)}"); a(f"s_add_u32 {s(sOff)}, {s(sOff)}, {s(sBase)}")
    a("s_branch L_aj")
    a.label("L_drain")
    for k in ((36, 24, 12, 0) if nmax > 36 else (24, 12, 0)):
        a(f"v_mov_b32 {v(vT)}, {NST*12-k}")
        a(f"s_waitcnt vmcnt({k})")
        a(f"ds_write_b32 {v(vCT)}, {v(vT)} offset:{C_LAND}")
    a("s_endpgm")

    a.label("L_notld")
    a(f"s_cmp_gt_u32 {s(sWave)}, 4")
    a("s_cbranch_scc1 L_aux")
    sC, sS, sWS = 4, 8, 12
    sCo, sNeed, sLand, sSl, sN_, sQ_, sSel0, sSel1, sU, sPO, sE = 16, 17, 18, 19, 20, 21, 22, 23, 24, 25, 28
    sMsk = 32
    vRow, vRa, vScA, vXa, vKz, vPrg, vPa, vC, vS1, vQa, vX0, vSc0 = 5, 6, 7, 8, 9, 10, 11, 16, 17, 18, 19, 20
    vAc, vSW = 12, 14
    vY, vZ, vMask = 21, 22, 23
    vW, vD, vQ, vTm, vCur, vNxt = 24, 36, 48, 60, 72, 120
    NV = 168
    a("; ==== consumers ====")
    a(f"v_lshrrev_b32 {v(vY)}, 4, {v(vLane)}")
    a(f"v_and_b32 {v(vZ)}, 15, {v(vLane)}")
    a(f"v_mul_u32_u24 {v(vC)}, 384, {v(vY)}")
    a(f"v_lshl_add_u32 {v(vC)}, {v(vZ)}, 3, {v(vC)}")
    a(f"v_cmp_gt_u32 vcc, 8, {v(vZ)}")
    a(f"v_xor_b32 {v(vS1)}, 64, {v(vC)}")
    a(f"s_mul_i32 {s(sU)}, {s(sG)}, {rotK}"); a(f"s_and_b32 {s(sU)}, {s(sU)}, {SPH-1}")
    a(f"s_lshl_b32 {s(sT0)}, {s(sI)}, 2"); a(f"s_add_u32 {s(sT0)}, {s(sT0)}, {s(sWave)}"); a(f"s_mul_i32 {s(sT3)}, {s(sT0)}, 1536")
    a(f"s_mul_i32 {s(sCo)}, {s(sU)}, {GW*6144}"); a(f"s_add_u32 {s(sCo)}, {s(sCo)}, {s(sT3)}")
    a("s_waitcnt lgkmcnt(0)")
    mk(sC, pKC, CSB); mk(sS, pKSN, CSB)
    def issue_cs(dst):
        for i in range(3):
            a(f"buffer_load_dwordx2 {vp(dst+2*i)}, {v(vC)}, {srd(sC)}, {s(sCo)} offen offset:{128*i} {csf}")
            a(f"buffer_load_dwordx2 {vp(dst+6+2*i)}, {v(vS1)}, {srd(sS)}, {s(sCo)} offen offset:{128*i} {csf}")
        a(f"s_add_u32 {s(sCo)}, {s(sCo)}, {GW*6144}")
    def pack_cs(dst, src):
        for i in range(3):
            for e in range(2):
                a(f"v_cndmask_b32 {v(vW+2*i+e)}, {v(src+6+2*((i+2)%3)+e)}, {v(src+6+2*((i+1)%3)+e)}, vcc")
        for i in range(3):
            c0, s0 = src+2*i, vW+2*i
            a(f"v_perm_b32 {v(dst+4*i+0)}, {v(s0)}, {v(c0)}, {s(sSel0)}")
            a(f"v_perm_b32 {v(dst+4*i+1)}, {v(s0)}, {v(c0)}, {s(sSel1)}")
            a(f"v_perm_b32 {v(dst+4*i+2)}, {v(s0+1)}, {v(c0+1)}, {s(sSel0)}")
            a(f"v_perm_b32 {v(dst+4*i+3)}, {v(s0+1)}, {v(c0+1)}, {s(sSel1)}")
    for k in range(csw): issue_cs(vNxt + 12*k)
    mk(sWS, pWS, WSB)
    a(f"s_mov_b32 {s(sSel0)}, 0x05040100"); a(f"s_mov_b32 {s(sSel1)}, 0x07060302")
    a(f"s_lshl_b32 {s(sT0)}, {s(sWave)}, 2")
    a(f"v_add_u32 {v(vY)}, {s(sT0)}, {v(vY)}")
    a(f"v_mul_u32_u24 {v(vRow)}, 768, {v(vY)}"); a(f"v_lshl_add_u32 {v(vRow)}, {v(vZ)}, 4, {v(vRow)}")
    a(f"v_lshlrev_b32 {v(vX0)}, 3, {v(vY)}"); a(f"v_add_u32 {v(vX0)}, {L_X}, {v(vX0)}")
    a(f"v_lshlrev_b32 {v(vQa)}, 4, {v(vZ)}"); a(f"v_add_u32 {v(vQa)}, {L_QT}, {v(vQa)}")
    a(f"v_add_u32 {v(vPa)}, {s(sT0)}, {v(vCT)}")
    a(f"v_mov_b32 {v(vPrg)}, 0"); a(f"v_mov_b32 {v(vMask)}, 0xff")
    a(f"s_mul_i32 {s(sNeed)}, {s(sWave)}, 3"); a(f"s_add_u32 {s(sNeed)}, {s(sNeed)}, 3")
    a(f"s_mov_b32 {s(sLand)}, 0"); a(f"s_mov_b32 {s(sSl)}, 0"); a(f"s_mov_b32 {s(sN_)}, 0"); a(f"s_mov_b32 {s(sQ_)}, 0")
    a("s_barrier")
    for k in range(4):
        a(f"s_waitcnt vmcnt({6*(min(4, k+csw)-k-1)})")
        if k + csw < 4: issue_cs(vNxt + 12*(k+csw))
        pack_cs(vCur + 12*k, vNxt + 12*k)
    def wait_data(lbl):
        a(f"s_cmp_ge_i32 {s(sLand)}, {s(sNeed)}")
        a(f"s_cbranch_scc1 {lbl}g")
        a.label(lbl)
        a(f"ds_read_b32 {v(vF)}, {v(vCT)} offset:{C_LAND}")
        a("s_waitcnt lgkmcnt(0)")
        a(f"v_readfirstlane_b32 {s(sLand)}, {v(vF)}")
        a(f"s_cmp_ge_i32 {s(sLand)}, {s(sNeed)}")
        a(f"s_cbranch_scc1 {lbl}g")
        if csleep: a(f"s_sleep {csleep}")
        a(f"s_branch {lbl}")
        a.label(lbl + "g")
    def next_slot():
        a(f"s_add_u32 {s(sSl)}, {s(sSl)}, {SB}"); a(f"s_cmp_eq_u32 {s(sSl)}, {RS*SB}"); a(f"s_cselect_b32 {s(sSl)}, 0, {s(sSl)}")
        a(f"s_add_u32 {s(sNeed)}, {s(sNeed)}, 12")
    a.label("L_kvisit")
    if NQ > 1:
        a(f"s_and_b32 {s(sT0)}, {s(sN_)}, {PD-1}")
        a(f"s_cselect_b32 {s(sT0)}, {NQ}, {s(sQ_)}")
        a(f"s_cmp_lt_u32 {s(sT0)}, {NQ-1}")
        a("s_cbranch_scc0 L_nocs")
        if rotK:
            a(f"s_cmp_ge_u32 {s(sCo)}, {CSB}"); a(f"s_cselect_b32 {s(sT0)}, {CSB}, 0"); a(f"s_sub_u32 {s(sCo)}, {s(sCo)}, {s(sT0)}")
        issue_cs(vTm)
        a.label("L_nocs")
    if serp:
        a(f"s_bitcmp1_b32 {s(sQ_)}, 0"); a(f"s_cselect_b32 {s(sT2)}, {HPG-1}, 0"); a(f"s_xor_b32 {s(sT2)}, {s(sT2)}, {s(sN_)}")
    else:
        a(f"s_mov_b32 {s(sT2)}, {s(sN_)}")
    a(f"s_mul_i32 {s(sT0)}, {s(sT2)}, 768")
    a(f"v_add_u32 {v(vRa)}, {s(sT0)}, {v(vQa)}")
    a(f"s_lshl_b32 {s(sT0)}, {s(sT2)}, {lg(SPH)}"); a(f"s_add_u32 {s(sT0)}, {s(sT0)}, {s(sU)}")
    a(f"s_lshl_b32 {s(sT1)}, {s(sT0)}, 7"); a(f"v_add_u32 {v(vXa)}, {s(sT1)}, {v(vX0)}")
    a.label("L_qw")
    a(f"ds_read_b32 {v(vF)}, {v(vCT)} offset:{C_QRDY}")
    for i in range(3): a(f"ds_read_b128 {v4(vQ+4*i)}, {v(vRa)} offset:{256*i}")
    a("s_waitcnt lgkmcnt(0)")
    a(f"v_readfirstlane_b32 {s(sT0)}, {v(vF)}")
    a(f"s_cmp_gt_u32 {s(sT0)}, {s(sT2)}")
    a("s_cbranch_scc1 L_qwg")
    a("s_sleep 2")
    a("s_branch L_qw")
    a.label("L_qwg")
    for st in range(4):
        for e in range(12):
            a(f"v_dot2_f32_bf16 {v(vW+e)}, {v(vCur+12*st+e)}, {v(vQ+e)}, 0")
        a(f"v_add_u32 {v(vRa)}, {s(sSl)}, {v(vRow)}")
        a(f"v_pk_add_f32 {vp(vSW)}, {vp(vW)}, {vp(vW+2)}")
        for e in range(4, 12, 2): a(f"v_pk_add_f32 {vp(vSW)}, {vp(vSW)}, {vp(vW+e)}")
        wait_data(f"L_kw{st}")
        for i in range(3): a(f"ds_read_b128 {v4(vD+4*i)}, {v(vRa)} offset:{256*i}")
        a(f"v_add_u32 {v(vPrg)}, 1, {v(vPrg)}")
        next_slot()
        for i in range(3):
            a(f"s_waitcnt lgkmcnt({2-i})")
            for e in range(4): a(f"v_cvt_f32_i32 {v(vD+4*i+e)}, {v(vD+4*i+e)}")
            if i == 0:
                a(f"v_pk_mul_f32 {vp(vAc)}, {vp(vD)}, {vp(vW)}")
            else:
                a(f"v_pk_fma_f32 {vp(vAc)}, {vp(vD+4*i)}, {vp(vW+4*i)}, {vp(vAc)}")
            a(f"v_pk_fma_f32 {vp(vAc)}, {vp(vD+4*i+2)}, {vp(vW+4*i+2)}, {vp(vAc)}")
        a(f"v_add_f32 {v(vAc)}, {v(vAc)}, {v(vAc+1)}")
        a(f"v_add_f32 {v(vAc+1)}, {v(vSW)}, {v(vSW+1)}")
        for m_ in ("quad_perm:[1,0,3,2]", "quad_perm:[2,3,0,1]", "row_half_mirror", "row_mirror"):
            for e in range(2): a(f"v_add_f32_dpp {v(vAc+e)}, {v(vAc+e)}, {v(vAc+e)} {m_} {DPP}")
        a(f"ds_write_b64 {v(vXa)}, {vp(vAc)} offset:{128*st}")
        a(f"ds_write_b32 {v(vPa)}, {v(vPrg)}")
    a(f"s_add_u32 {s(sN_)}, {s(sN_)}, 1")
    if NQ > 1:
        a(f"s_and_b32 {s(sT0)}, {s(sN_)}, {PD-1}")
        a("s_cbranch_scc1 L_kvisit")
        for e in range(0, 36, 2): a(f"v_mov_b64 {vp(vNxt+e)}, {vp(vNxt+12+e)}")
        a("s_waitcnt vmcnt(0)")
        pack_cs(vNxt + 36, vTm)
    a(f"s_cmp_lt_u32 {s(sN_)}, {HPG}")
    a("s_cbranch_scc1 L_kvisit")
    if NQ > 1:
        for e in range(0, 48, 2): a(f"v_mov_b64 {vp(vCur+e)}, {vp(vNxt+e)}")
        a(f"s_mov_b32 {s(sN_)}, 0")
        a(f"s_add_u32 {s(sU)}, {s(sU)}, 4"); a(f"s_and_b32 {s(sU)}, {s(sU)}, {SPH-1}")
        a(f"s_add_u32 {s(sQ_)}, {s(sQ_)}, 1")
        a(f"s_cmp_lt_u32 {s(sQ_)}, {NQ}")
        a("s_cbranch_scc1 L_kvisit")
    vAcc, vP, vSt, vRo = vW, vAc, vSW, vScA
    a(f"v_lshrrev_b32 {v(vY)}, 2, {v(vLane)}"); a(f"v_and_b32 {v(vZ)}, 3, {v(vLane)}")
    a(f"v_mul_u32_u24 {v(vRow)}, 768, {v(vY)}"); a(f"v_lshl_add_u32 {v(vRow)}, {v(vZ)}, 4, {v(vRow)}")
    a(f"s_mul_i32 {s(sT0)}, {s(sWave)}, 192"); a(f"v_add_u32 {v(vRow)}, {s(sT0)}, {v(vRow)}")
    a(f"v_lshlrev_b32 {v(vX0)}, 3, {v(vY)}"); a(f"v_add_u32 {v(vX0)}, {L_X}, {v(vX0)}")
    a(f"v_lshrrev_b32 {v(vY)}, 4, {v(vLane)}")
    a(f"v_lshl_add_u32 {v(vRo)}, {v(vZ)}, 2, {v(vY)}"); a(f"v_lshlrev_b32 {v(vRo)}, 4, {v(vRo)}")
    a(f"s_lshl_b32 {s(sT0)}, {s(sWave)}, 8"); a(f"v_add_u32 {v(vRo)}, {s(sT0)}, {v(vRo)}")
    a(f"v_and_b32 {v(vY)}, 1, {v(vY)}"); a(f"v_lshlrev_b32 {v(vQa)}, 3, {v(vY)}"); a(f"v_add_u32 {v(vQa)}, {L_ST}, {v(vQa)}")
    a(f"v_add_u32 {v(vC)}, {L_QS}, {v(vRo)}")
    a(f"s_mov_b32 {s(sMsk)}, 0x000f000f"); a(f"s_mov_b32 {s(sMsk+1)}, 0x000f000f")
    a(f"s_mov_b32 {s(sNeed)}, {129*12}")
    a(f"s_mul_i32 {s(sU)}, {s(sG)}, {rotV}"); a(f"s_and_b32 {s(sU)}, {s(sU)}, {SPH-1}")
    a(f"s_mov_b32 {s(sN_)}, 0")
    a(f"s_add_u32 {s(sPO)}, {s(sG)}, {(HPG-1)*NG*(1-REV)}"); a(f"s_mul_i32 {s(sPO)}, {s(sPO)}, {GW}"); a(f"s_add_u32 {s(sPO)}, {s(sPO)}, {s(sI)}")
    a(f"s_lshl_b32 {s(sPO)}, {s(sPO)}, 10")
    a.label("L_vhead")
    for e in range(0, 12, 2): a(f"v_mov_b64 {vp(vAcc+e)}, 0")
    a(f"s_mov_b32 {s(sQ_)}, 0")
    a.label("L_pw")
    a(f"ds_read_b64 {vp(vD)}, {v(vCT)} offset:{C_PRDY-4}")
    a(f"ds_read_b32 {v(vF)}, {v(vCT)} offset:{C_EPO}")
    a(f"ds_read_b64 {vp(vSt)}, {v(vQa)}")
    a("s_waitcnt lgkmcnt(0)")
    a(f"v_readfirstlane_b32 {s(sT0)}, {v(vD+1)}")
    a(f"v_readfirstlane_b32 {s(sE)}, {v(vF)}")
    a(f"s_cmp_gt_u32 {s(sT0)}, {s(sN_)}")
    a("s_cbranch_scc1 L_pwg")
    a("s_sleep 2")
    a("s_branch L_pw")
    a.label("L_pwg")
    a(f"s_lshr_b32 {s(sE+1)}, {s(sE)}, 8"); a(f"s_lshr_b32 {s(sE+2)}, {s(sE)}, 16")
    a.label("L_vstep")
    a(f"s_xor_b32 {s(sT0)}, {s(sN_)}, {(HPG-1)*REV}")
    a(f"s_lshl_b32 {s(sT0)}, {s(sT0)}, {lg(SPH)}"); a(f"s_add_u32 {s(sT0)}, {s(sT0)}, {s(sU)}"); a(f"s_lshl_b32 {s(sT0)}, {s(sT0)}, 7")
    a(f"v_add_u32 {v(vXa)}, {s(sT0)}, {v(vX0)}")
    a(f"v_add_u32 {v(vRa)}, {s(sSl)}, {v(vRow)}")
    a(f"ds_read_b32 {v(vP)}, {v(vXa)}")
    wait_data("L_vw")
    for i in range(3): a(f"ds_read_b128 {v4(vD+4*i)}, {v(vRa)} offset:{64*i}")
    a(f"v_add_u32 {v(vPrg)}, 1, {v(vPrg)}")
    next_slot()
    a(f"s_add_u32 {s(sU)}, {s(sU)}, 1"); a(f"s_and_b32 {s(sU)}, {s(sU)}, {SPH-1}")
    a(f"s_add_u32 {s(sQ_)}, {s(sQ_)}, 1")
    a(f"s_cmp_lt_u32 {s(sQ_)}, {SPH}")
    for i in range(3):
        a(f"s_waitcnt lgkmcnt({2-i})")
        for e in range(4): a(f"v_cvt_f32_i32 {v(vD+4*i+e)}, {v(vD+4*i+e)}")
        for e in (0, 2):
            a(f"v_pk_fma_f32 {vp(vAcc+4*i+e)}, {vp(vD+4*i+e)}, {vp(vP)}, {vp(vAcc+4*i+e)} op_sel_hi:[1,0,1]")
    a("s_cbranch_scc0 L_vend")
    a(f"ds_write_b32 {v(vPa)}, {v(vPrg)}")
    a("s_branch L_vstep")
    a("; head finished: reduce over the 16 rows, remove the zero-point term, tag"); a.label("L_vend")
    O = vD
    for i in range(3):
        r_ = vAcc + 4*i
        a(f"v_permlane32_swap_b32 {v(r_)}, {v(r_+2)}")
        a(f"v_permlane32_swap_b32 {v(r_+1)}, {v(r_+3)}")
    for i in range(3):
        r_ = vAcc + 4*i
        a(f"v_pk_add_f32 {vp(r_)}, {vp(r_)}, {vp(r_+2)}")
    for i in range(3):
        r_ = vAcc + 4*i
        a(f"v_permlane16_swap_b32 {v(r_)}, {v(r_+1)}")
    for i in range(3):
        r_ = vAcc + 4*i
        a(f"v_add_f32 {v(O+i)}, {v(r_)}, {v(r_+1)}")
    a(f"v_mov_b32 {v(O+3)}, {v(vSt)}")
    for rr in (4, 8):
        for i in range(3): a(f"v_add_f32_dpp {v(O+i)}, {v(O+i)}, {v(O+i)} row_ror:{rr} {DPP}")
    for i in range(3): a(f"v_sub_f32 {v(O+i)}, {v(O+i)}, {v(vSt+1)}")
    for i in range(3): a(f"v_bfi_b32 {v(O+i)}, {v(vMask)}, {s(sE+i)}, {v(O+i)}")
    a(f"s_add_u32 {s(sN_)}, {s(sN_)}, 1")
    a(f"s_cmp_eq_u32 {s(sN_)}, {HPG}")
    a(f"s_mov_b64 exec, {sp(sMsk)}")
    a("s_cbranch_scc1 L_vlast")
    a(f"ds_write_b128 {v(vC)}, {v4(O)}")
    a("s_mov_b64 exec, -1")
    a(f"ds_write_b32 {v(vPa)}, {v(vPrg)}")
    a(f"v_add_u32 {v(vC)}, 1024, {v(vC)}"); a(f"v_add_u32 {v(vQa)}, 16, {v(vQa)}")
    a("s_branch L_vhead")
    a.label("L_vlast")
    a(f"buffer_store_dwordx4 {v4(O)}, {v(vRo)}, {srd(sWS)}, {s(sPO)} offen {stf}")
    if stamp:
        a("s_mov_b64 exec, -1")
        a(f"s_memrealtime {sp(sT0)}"); a("s_waitcnt lgkmcnt(0)")
        a(f"v_mov_b32 {v(vF)}, {s(sT0)}"); a(f"ds_write_b32 {v(vPa)}, {v(vF)} offset:64")
        a(f"ds_write_b32 {v(vPa)}, {v(vPrg)}")
    a("s_endpgm")

    a.label("L_aux")
    a(f"s_cmp_eq_u32 {s(sWave)}, 5")
    a("s_cbranch_scc0 L_pacer")
    sA, sDB, sOUT, sB = 4, 8, 16, 20
    sE = 28
    sN_, sSpin, sPO, sMe, sHc, sBk = 24, 25, 26, 32, 34, 35
    vQo0, vQo1, vSg, vH0, vH1, vX, vY, vZ, vU, vMask, vA0, vA1 = 5, 6, 7, 8, 9, 10, 11, 12, 13, 14, 15, 16
    qr, t_ = 20, 32
    vSv, vQv, sSo = 17, 56, 27
    NQL = (HPG * 24 + 63) // 64
    a("; ==== helper ====")
    a(f"v_lshlrev_b32 {v(vQo0)}, 3, {v(vLane)}")
    a(f"v_cmp_gt_u32 vcc, 24, {v(vLane)}")
    a(f"v_mov_b32 {v(vU)}, 0xffffff40"); a(f"v_mov_b32 {v(vX)}, 192")
    a(f"v_cndmask_b32 {v(vU)}, {v(vU)}, {v(vX)}, vcc")
    a(f"v_add_u32 {v(vQo1)}, {v(vQo0)}, {v(vU)}")
    a(f"v_mov_b32 {v(vX)}, 0x80008000")
    a(f"v_cndmask_b32 {v(vSg)}, 0, {v(vX)}, vcc")
    hpi = 32 // SPH
    a(f"v_lshrrev_b32 {v(vX)}, 1, {v(vLane)}")
    a(f"v_and_b32 {v(vY)}, {SPH-1}, {v(vX)}"); a(f"v_lshrrev_b32 {v(vX)}, {lg(SPH)}, {v(vX)}")
    a(f"v_mul_u32_u24 {v(vX)}, {NG*32768}, {v(vX)}"); a(f"v_mul_u32_u24 {v(vY)}, {GW*32}, {v(vY)}"); a(f"v_add_u32 {v(vX)}, {v(vX)}, {v(vY)}")
    a(f"v_and_b32 {v(vY)}, 1, {v(vLane)}"); a(f"v_lshl_add_u32 {v(vSv)}, {v(vY)}, 4, {v(vX)}")
    for k in range(NQL):
        a(f"v_add_u32 {v(vX)}, {64*k}, {v(vLane)}")
        a(f"v_mul_u32_u24 {v(vZ)}, 2731, {v(vX)}"); a(f"v_lshrrev_b32 {v(vZ)}, 16, {v(vZ)}")
        a(f"v_mul_u32_u24 {v(vZ)}, {(NG-1)*384}, {v(vZ)}"); a(f"v_lshl_add_u32 {v(vQv+k)}, {v(vX)}, 4, {v(vZ)}")
    a(f"v_cmp_eq_u32 {sp(sMe)}, 0, {v(vY)}")
    a(f"s_lshl_b32 {s(sSo)}, {s(sG)}, 15"); a(f"s_lshl_b32 {s(sT0)}, {s(sI)}, 5"); a(f"s_add_u32 {s(sSo)}, {s(sSo)}, {s(sT0)}")
    a(f"s_mov_b32 m0, {L_QS}")
    a("s_waitcnt lgkmcnt(0)")
    mk(sA, pQC, 384); mk(sB, pQS, 384)
    a(f"buffer_load_dwordx2 {vp(qr+8)}, {v(vQo0)}, {srd(sA)}, 0 offen")
    a(f"buffer_load_dwordx2 {vp(qr+10)}, {v(vQo0)}, {srd(sB)}, 0 offen")
    mk(sA, pQ, 12288)
    a(f"s_mul_i32 {s(sT0)}, {s(sG)}, 384")
    for k in range(NQL):
        a(f"buffer_load_dwordx4 {v(vQv+k)}, {srd(sA)}, {s(sT0)} offen lds")
        a("s_add_u32 m0, m0, 1024")
    if scpre == 2:
        a("; this workgroup's share of the scale arrays is pulled on chip now; the own pieces are fetched later")
        a(f"s_lshl_b32 {s(sT0)}, s2, 12")
        n_ = 0
        for p in (pKS, pKZ, pVS, pVZ):
            mk(sB, p, 1 << 20)
            for k in range(4):
                if n_ >= spw: a(f"s_waitcnt vmcnt({spw-1})")
                a(f"buffer_load_dwordx4 {v4(64)}, {v(vL16)}, {srd(sB)}, {s(sT0)} offen offset:{1024*k} {scf}"); n_ += 1
    NPF = min(16, spw) if scpre == 2 else 0
    mk(sWS, pWS, WSB); mk(sDB, pDBG, 256); mk(sOUT, pOUT, 12288)
    a(f"v_mov_b32 {v(vMask)}, 0xff")
    a("s_barrier")
    def unpack(dst, src):
        a(f"v_lshlrev_b32 {v(dst)}, 16, {v(src)}"); a(f"v_and_b32 {v(dst+1)}, 0xffff0000, {v(src)}")
        a(f"v_lshlrev_b32 {v(dst+2)}, 16, {v(src+1)}"); a(f"v_and_b32 {v(dst+3)}, 0xffff0000, {v(src+1)}")
    cF, sF, aF, bF, rr = t_, t_+4, t_+8, t_+12, t_+16
    a(f"v_add_u32 {v(vA0)}, {L_QS}, {v(vQo0)}"); a(f"v_add_u32 {v(vA1)}, {L_QS}, {v(vQo1)}")
    a(f"v_lshlrev_b32 {v(vH0)}, 1, {v(vQo0)}"); a(f"v_lshlrev_b32 {v(vH1)}, 1, {v(vQo1)}")
    a(f"v_add_u32 {v(vH0)}, {L_QT}, {v(vH0)}"); a(f"v_add_u32 {v(vH1)}, {L_QT}, {v(vH1)}")
    a(f"v_mov_b32 {v(vZ)}, 0")
    a(f"s_mov_b32 {s(sN_)}, 0")
    a(f"s_waitcnt vmcnt({NQL+NPF})")
    a(f"v_xor_b32 {v(qr+10)}, {v(qr+10)}, {v(vSg)}"); a(f"v_xor_b32 {v(qr+11)}, {v(qr+11)}, {v(vSg)}")
    unpack(cF, qr+8); unpack(sF, qr+10)
    a(f"v_and_b32 {v(vSg)}, 0x80000000, {v(vSg)}")
    a(f"s_waitcnt vmcnt({NPF})")
    a("s_mov_b32 exec_hi, 0xffff")
    a("; rotated q (rounded like the reference), stored as (qr[d], +-qr[d+-96]) pairs"); a.label("L_hq")
    a(f"ds_read_b64 {vp(qr)}, {v(vA0)}"); a(f"ds_read_b64 {vp(qr+2)}, {v(vA1)}")
    a(f"v_add_u32 {v(vA0)}, 384, {v(vA0)}"); a(f"v_add_u32 {v(vA1)}, 384, {v(vA1)}")
    a(f"v_add_u32 {v(vZ)}, 1, {v(vZ)}")
    a("s_waitcnt lgkmcnt(0)")
    unpack(aF, qr); unpack(bF, qr+2)
    for e in range(0, 4, 2):
        a(f"v_pk_mul_f32 {vp(aF+e)}, {vp(aF+e)}, {vp(cF+e)}"); a(f"v_pk_mul_f32 {vp(bF+e)}, {vp(bF+e)}, {vp(sF+e)}")
    for e in range(4): a(f"v_cvt_pk_bf16_f32 {v(aF+e)}, {v(aF+e)}, {v(bF+e)}")
    for e in range(4):
        a(f"v_and_b32 {v(bF+e)}, 0xffff0000, {v(aF+e)}"); a(f"v_lshlrev_b32 {v(aF+e)}, 16, {v(aF+e)}")
    for e in range(0, 4, 2): a(f"v_pk_add_f32 {vp(aF+e)}, {vp(aF+e)}, {vp(bF+e)}")
    for e in range(4): a(f"v_cvt_pk_bf16_f32 {v(rr+e)}, {v(aF+e)}, {v(aF+e)}")
    for e in range(4): a(f"v_xor_b32 {v(rr+e)}, {v(rr+e)}, {v(vSg)}")
    for e in range(4):
        a(f"ds_write_b16 {v(vH0)}, {v(rr+e)} offset:{4*e}")
        a(f"ds_write_b16_d16_hi {v(vH1)}, {v(rr+e)} offset:{4*e+2}")
    a(f"ds_write_b32 {v(vCT)}, {v(vZ)} offset:{C_QRDY}")
    a(f"v_add_u32 {v(vH0)}, 768, {v(vH0)}"); a(f"v_add_u32 {v(vH1)}, 768, {v(vH1)}")
    a(f"s_add_u32 {s(sN_)}, {s(sN_)}, 1")
    a(f"s_cmp_lt_u32 {s(sN_)}, {HPG}")
    a("s_cbranch_scc1 L_hq")
    a("s_mov_b32 exec_hi, -1")
    a(f"v_mov_b32 {v(vA0)}, 0")
    a(f"s_mov_b32 {s(sSpin)}, 0")
    a("s_cmp_eq_u32 s2, 0")
    a("s_cbranch_scc1 L_epc")
    lds_wait("L_epw", C_STEP, epk, sT0, 16)
    a.label("L_ep")
    a("s_mov_b64 exec, 1")
    a(f"buffer_load_dword {v(vY)}, {v(vA0)}, {srd(sDB)}, 0 offen sc0 sc1")
    a("s_waitcnt vmcnt(0)")
    a(f"v_readfirstlane_b32 {s(sE)}, {v(vY)}")
    a("s_mov_b64 exec, -1")
    a(f"s_cmp_lg_u32 {s(sE)}, 0")
    a("s_cbranch_scc1 L_epd")
    a("s_sleep 32")
    a(f"s_add_u32 {s(sSpin)}, {s(sSpin)}, 1")
    a(f"s_cmp_lt_u32 {s(sSpin)}, 8")
    a("s_cbranch_scc1 L_ep")
    a.label("L_epc")
    a(f"s_mul_i32 {s(sE)}, {s(sStart)}, 0x9e3779b1")
    a(f"s_lshr_b32 {s(sT1)}, {s(sE)}, 15"); a(f"s_xor_b32 {s(sE)}, {s(sE)}, {s(sT1)}")
    a(f"s_mul_i32 {s(sE)}, {s(sE)}, 0x85ebca6b")
    a(f"s_lshr_b32 {s(sT1)}, {s(sE)}, 13"); a(f"s_xor_b32 {s(sE)}, {s(sE)}, {s(sT1)}")
    a(f"s_max_u32 {s(sE)}, {s(sE)}, 1")
    a(f"v_mov_b32 {v(qr)}, {s(sE)}"); a(f"v_mov_b32 {v(qr+1)}, 0")
    a("s_mov_b64 exec, 1")
    a(f"buffer_atomic_cmpswap {vp(qr)}, {v(vA0)}, {srd(sDB)}, 0 offen sc0 sc1")
    a("s_waitcnt vmcnt(0)")
    a(f"v_readfirstlane_b32 {s(sT0)}, {v(qr)}")
    a("s_mov_b64 exec, -1")
    a(f"s_cmp_eq_u32 {s(sT0)}, 0"); a(f"s_cselect_b32 {s(sE)}, {s(sE)}, {s(sT0)}")
    a.label("L_epd")
    a(f"v_mov_b32 {v(vZ)}, {s(sE)}")
    a(f"ds_write_b32 {v(vCT)}, {v(vZ)} offset:{C_EPO}")
    a(f"s_lshr_b32 {s(sE+1)}, {s(sE)}, 8"); a(f"s_lshr_b32 {s(sE+2)}, {s(sE)}, 16"); a(f"s_lshr_b32 {s(sE+3)}, {s(sE)}, 24")
    assert sc0 + 17*sct < TX
    vPv = vQv
    a(f"s_and_b32 {s(sT0)}, {s(sI)}, 3"); a(f"s_lshl_b32 {s(sT0)}, {s(sT0)}, 3")
    a(f"v_lshrrev_b32 {v(vX)}, 3, {v(vLane)}"); a(f"v_add_u32 {v(vX)}, {s(sT0)}, {v(vX)}")
    a(f"v_and_b32 {v(vY)}, {SPH-1}, {v(vX)}"); a(f"v_lshrrev_b32 {v(vX)}, {lg(SPH)}, {v(vX)}")
    a(f"v_mul_u32_u24 {v(vX)}, {NG*32768}, {v(vX)}"); a(f"v_mul_u32_u24 {v(vY)}, {GW*32}, {v(vY)}"); a(f"v_add_u32 {v(vX)}, {v(vX)}, {v(vY)}")
    a(f"v_and_b32 {v(vY)}, 7, {v(vLane)}"); a(f"v_lshl_add_u32 {v(vPv)}, {v(vY)}, 4, {v(vX)}")
    a(f"s_mov_b32 {s(sN_)}, {sc0}")
    a(f"s_mov_b32 {s(sSpin)}, 0")
    a(f"s_mov_b32 m0, {L_SC}")
    mk(sA, pKS, 1 << 20); mk(sB, pKS, 0)
    lds_wait("L_sc", C_STEP, s(sN_), sT0, 16)
    a(f"s_and_b32 {s(sT0)}, {s(sSpin)}, 3"); a(f"s_mul_i32 {s(sT0)}, {s(sT0)}, {hpi*NG*32768}"); a(f"s_add_u32 {s(sT0)}, {s(sT0)}, {s(sSo)}")
    a(f"s_andn2_b32 {s(sT1)}, {s(sT0)}, 127")
    if scpre == 1: a(f"buffer_load_dwordx4 {v4(20)}, {v(vPv)}, {srd(sA)}, {s(sT1)} offen {scf}")
    a(f"s_cmp_eq_u32 {s(sSpin)}, 0")
    a("s_cbranch_scc1 L_sc1")
    a(f"buffer_load_dwordx4 {v(vSv)}, {srd(sB)}, {s(sT3)} offen {scf} lds")
    a("s_add_u32 m0, m0, 1024")
    a.label("L_sc1")
    a(f"s_mov_b32 {s(sT3)}, {s(sT0)}")
    a(f"s_mov_b32 {s(sB)}, {s(sA)}"); a(f"s_mov_b32 {s(sB+1)}, {s(sA+1)}"); a(f"s_mov_b32 {s(sB+2)}, {1 << 20}")
    a(f"s_add_u32 {s(sSpin)}, {s(sSpin)}, 1")
    for k, p in ((4, pKZ), (8, pVS), (12, pVZ)):
        a(f"s_cmp_eq_u32 {s(sSpin)}, {k}"); a(f"s_cselect_b32 {s(sA)}, {s(p)}, {s(sA)}"); a(f"s_cselect_b32 {s(sA+1)}, {s(p+1)}, {s(sA+1)}")
    a(f"s_cmp_eq_u32 {s(sSpin)}, 16"); a(f"s_cselect_b32 {s(sA+2)}, 0, {s(sA+2)}")
    a(f"s_add_u32 {s(sN_)}, {s(sN_)}, {sct}")
    a(f"s_cmp_le_u32 {s(sSpin)}, 16")
    a("s_cbranch_scc1 L_sc")
    a("s_waitcnt vmcnt(0)")
    vx, vks, vvs, vvz, vS4, vPg, vkz, vx2 = 20, 28, 36, 44, 52, 56, 64, 72
    CEXP = (192.0 ** -0.5) * math.log2(math.e)
    for e in list(range(vks, vS4)) + list(range(vkz, vkz+8)): a(f"v_mov_b32 {v(e)}, 0")
    a(f"v_lshlrev_b32 {v(vA0)}, 3, {v(vLane)}"); a(f"v_add_u32 {v(vA0)}, {L_X+REV*(HPG-1)*512*NG}, {v(vA0)}")
    a(f"v_lshlrev_b32 {v(vA1)}, 1, {v(vLane)}"); a(f"v_add_u32 {v(vA1)}, {L_SC+REV*(HPG-1)*128*NG}, {v(vA1)}")
    a(f"v_mov_b32 {v(vH0)}, {L_ST}"); a(f"v_mov_b32 {v(vH1)}, 0")
    a(f"s_mov_b32 {s(sN_)}, {TX+4}")
    def wait_cons(lbl, val, sleep):
        a.label(lbl)
        if sleep: a(f"s_sleep {sleep}")
        a(f"ds_read_b128 {v4(vPg)}, {v(vCT)}")
        a("s_waitcnt lgkmcnt(0)")
        a(f"v_min3_i32 {v(vPg)}, {v(vPg)}, {v(vPg+1)}, {v(vPg+2)}"); a(f"v_min_i32 {v(vPg)}, {v(vPg)}, {v(vPg+3)}")
        a(f"v_readfirstlane_b32 {s(sT0)}, {v(vPg)}")
        a(f"s_cmp_lt_i32 {s(sT0)}, {val}")
        a(f"s_cbranch_scc1 {lbl}")
    wait_cons("L_hp", s(sN_), hsleep)
    for k in range(NG):
        a(f"ds_read_b64 {vp(vx2+2*k)}, {v(vA0)} offset:{512*k}")
        a(f"ds_read_u16_d16_hi {v(vks+k)}, {v(vA1)} offset:{128*k}")
        a(f"ds_read_u16_d16_hi {v(vkz+k)}, {v(vA1)} offset:{4096+128*k}")
    a("s_waitcnt lgkmcnt(0)")
    for k in range(NG):
        a(f"ds_read_u16_d16_hi {v(vvs+k)}, {v(vA1)} offset:{8192+128*k}")
        a(f"ds_read_u16_d16_hi {v(vvz+k)}, {v(vA1)} offset:{12288+128*k}")
    for k in range(NG): a(f"v_fma_f32 {v(vx+k)}, -{v(vkz+k)}, {v(vx2+2*k+1)}, {v(vx2+2*k)}")
    for k in range(NG): a(f"v_mul_f32 {v(vx+k)}, {v(vx+k)}, {v(vks+k)}")
    for k in range(NG): a(f"v_mul_f32 {v(vx+k)}, {hex(f2u(CEXP))}, {v(vx+k)}")
    a(f"v_mov_b32 {v(vS4)}, {v(vx)}")
    for k in range(1, NG): a(f"v_max_f32 {v(vS4)}, {v(vS4)}, {v(vx+k)}")
    row_reduce("v_max_f32", vS4); xrows("v_max_f32", vS4, vU)
    for k in range(NG): a(f"v_sub_f32 {v(vx+k)}, {v(vx+k)}, {v(vS4)}")
    for k in range(NG): a(f"v_exp_f32 {v(vx+k)}, {v(vx+k)}")
    a(f"v_mov_b32 {v(vS4+2)}, {v(vx)}")
    for k in range(1, NG): a(f"v_add_f32 {v(vS4+2)}, {v(vS4+2)}, {v(vx+k)}")
    a("s_waitcnt lgkmcnt(0)")
    for k in range(NG): a(f"v_mul_f32 {v(vx+k)}, {v(vx+k)}, {v(vvs+k)}")
    a(f"v_mul_f32 {v(vS4+1)}, {v(vx)}, {v(vvz)}")
    for k in range(1, NG): a(f"v_fmac_f32 {v(vS4+1)}, {v(vx+k)}, {v(vvz+k)}")
    for k in range(NG): a(f"ds_write_b32 {v(vA0)}, {v(vx+k)} offset:{512*k}")
    row_reduce("v_add_f32", vS4+2); xrows("v_add_f32", vS4+2, vU)
    row_reduce("v_add_f32", vS4+1); xrows("v_add_f32", vS4+1, vU)
    a(f"v_bfi_b32 {v(vS4+2)}, {v(vMask)}, {s(sE+3)}, {v(vS4+2)}")
    a(f"v_mov_b32 {v(vS4+3)}, {v(vS4+1)}")
    a(f"v_add_u32 {v(vH1)}, 1, {v(vH1)}")
    a("s_mov_b64 exec, 1")
    a(f"ds_write_b128 {v(vH0)}, {v4(vS4)}")
    a(f"ds_write_b32 {v(vCT)}, {v(vH1)} offset:{C_PRDY}")
    a("s_mov_b64 exec, -1")
    a(f"v_add_u32 {v(vA0)}, {512*NG*(1-2*REV)}, {v(vA0)}"); a(f"v_add_u32 {v(vA1)}, {128*NG*(1-2*REV)}, {v(vA1)}"); a(f"v_add_u32 {v(vH0)}, 16, {v(vH0)}")
    a(f"s_add_u32 {s(sN_)}, {s(sN_)}, 4")
    a(f"s_cmp_le_u32 {s(sN_)}, 128")
    a("s_cbranch_scc1 L_hp")
    NLD = GW // 8
    vFo, vFl, vKk = 64, vA0, vA1
    a(f"s_add_u32 {s(sPO)}, {s(sG)}, {(HPG-1)*NG*REV}"); a(f"s_mul_i32 {s(sPO)}, {s(sPO)}, {GW}"); a(f"s_add_u32 {s(sPO)}, {s(sPO)}, {s(sI)}"); a(f"s_lshl_b32 {s(sPO)}, {s(sPO)}, 10")
    a(f"s_lshr_b32 {s(sHc)}, s2, 3"); a(f"s_and_b32 {s(sBk)}, s2, 7")
    a(f"v_lshrrev_b32 {v(vX)}, 3, {v(vLane)}"); a(f"v_and_b32 {v(vKk)}, 7, {v(vLane)}")
    a(f"v_lshlrev_b32 {v(vX)}, 10, {v(vX)}"); a(f"v_lshl_add_u32 {v(vFl)}, {v(vKk)}, 4, {v(vX)}")
    a(f"v_lshlrev_b32 {v(vKk)}, 1, {v(vKk)}")
    a(f"v_add_u32 {v(vU)}, {L_QS}, {v(vL16)}")
    a(f"s_mov_b32 {s(sSpin)}, 0")
    wait_cons("L_hf", NST - SPH, 32)
    NFL = HPG - 1
    assert vFo + 4 * min(NFL, 24) <= NV
    for b0 in range(0, NFL, 24):
        nb = min(24, NFL - b0)
        for p_ in range(nb): a(f"ds_read_b128 {v4(vFo+4*p_)}, {v(vU)} offset:{1024*(b0+p_)}")
        if b0 == 0: lds_wait("L_hn", C_STEP, NST - F, sT0, 4)
        else: a("s_waitcnt lgkmcnt(0)")
        for p_ in range(nb):
            a(f"buffer_store_dwordx4 {v4(vFo+4*p_)}, {v(vL16)}, {srd(sWS)}, {s(sPO)} offen {stf}")
            a(f"{'s_sub_u32' if REV else 's_add_u32'} {s(sPO)}, {s(sPO)}, {NG*GW*1024}")
        if b0 + nb < NFL: a("s_waitcnt vmcnt(0)")
    lds_wait("L_hl", C_LAND, NST*12, sT0, 2)
    vFd = 168 - 4*NLD if NLD > 16 else 64
    vFt, vO2, vM2 = (20 if NLD <= 16 else None), 40, 44
    assert NLD <= 16, "NG=1 combine not supported"
    a(f"s_mul_i32 {s(sT2)}, {s(sHc)}, {GW*1024}"); a(f"s_lshl_b32 {s(sT3)}, {s(sBk)}, 7"); a(f"s_add_u32 {s(sT2)}, {s(sT2)}, {s(sT3)}")
    a(f"s_mul_i32 {s(sT1)}, {s(sHc)}, 384")
    a(f"s_lshr_b32 {s(sT3)}, {s(sBk)}, 1"); a(f"s_mul_i32 {s(sT3)}, {s(sT3)}, 96"); a(f"s_add_u32 {s(sT1)}, {s(sT1)}, {s(sT3)}")
    a(f"s_and_b32 {s(sT3)}, {s(sBk)}, 1"); a(f"s_lshl_b32 {s(sT3)}, {s(sT3)}, 4"); a(f"s_add_u32 {s(sT1)}, {s(sT1)}, {s(sT3)}")
    a("s_waitcnt vmcnt(0)")
    a("; poll the partial lines until every tag matches"); a.label("L_try")
    a(f"s_mov_b32 {s(sT0)}, {s(sT2)}")
    for i in range(NLD):
        a(f"buffer_load_dwordx4 {v4(vFd+4*i)}, {v(vFl)}, {srd(sWS)}, {s(sT0)} offen {ldf}")
        if i < NLD-1: a(f"s_add_u32 {s(sT0)}, {s(sT0)}, 8192")
    for i in range(NLD):
        a(f"s_waitcnt vmcnt({NLD-1-i})")
        for e in range(4):
            z = vU if e == 3 else vZ
            if i == 0 and e in (0, 3):
                a(f"v_xor_b32 {v(z)}, {s(sE+e)}, {v(vFd+e)}")
            else:
                a(f"v_bitop3_b32 {v(z)}, {v(z)}, {v(vFd+4*i+e)}, {s(sE+e)} bitop3:0xf6")
    a(f"v_cndmask_b32 {v(vU)}, {v(vU)}, 0, {sp(sMe)}")
    a(f"v_or_b32 {v(vZ)}, {v(vZ)}, {v(vU)}")
    a(f"v_and_b32 {v(vZ)}, 0xff, {v(vZ)}")
    a(f"v_cmp_ne_u32 vcc, 0, {v(vZ)}")
    a("s_cbranch_vccz L_cok")
    if psleep: a(f"s_sleep {psleep}")
    a(f"s_add_u32 {s(sSpin)}, {s(sSpin)}, 1")
    a(f"s_cmp_lt_u32 {s(sSpin)}, 2000000")
    a("s_cbranch_scc1 L_try")
    a("; final combine and normalisation"); a.label("L_cok")
    a(f"v_max_f32 {v(vY)}, {v(vFd+3)}, {v(vFd+7)}")
    for i in range(2, NLD, 2): a(f"v_max3_f32 {v(vY)}, {v(vY)}, {v(vFd+4*i+3)}, {v(vFd+4*i+7)}")
    a(f"v_max_f32_dpp {v(vY)}, {v(vY)}, {v(vY)} row_ror:8 {DPP}")
    xrows("v_max_f32", vY, vU)
    a(f"v_mov_b32_dpp {v(vY)}, {v(vY)} quad_perm:[0,0,2,2] {DPP}")
    for i in range(NLD): a(f"v_sub_f32_dpp {v(vFt+i)}, {v(vFd+4*i+3)}, {v(vY)} quad_perm:[0,0,2,2] {DPP}")
    for i in range(NLD): a(f"v_exp_f32 {v(vFt+i)}, {v(vFt+i)}")
    for i in range(NLD):
        if i == 0:
            for e in range(3): a(f"v_mul_f32 {v(vO2+e)}, {v(vFd+e)}, {v(vFt)}")
            a(f"v_mul_f32_dpp {v(vO2+3)}, {v(vFd+3)}, {v(vFt)} quad_perm:[1,1,3,3] {DPP}")
        else:
            for e in range(3): a(f"v_fmac_f32 {v(vO2+e)}, {v(vFd+4*i+e)}, {v(vFt+i)}")
            a(f"v_fmac_f32_dpp {v(vO2+3)}, {v(vFd+4*i+3)}, {v(vFt+i)} quad_perm:[1,1,3,3] {DPP}")
    for e in range(4): a(f"v_add_f32_dpp {v(vO2+e)}, {v(vO2+e)}, {v(vO2+e)} row_ror:8 {DPP}")
    for e in range(4): xrows("v_add_f32", vO2+e, vM2+e)
    a(f"v_rcp_f32 {v(vX)}, {v(vO2+3)}")
    for e in range(3): a(f"v_mul_f32 {v(vO2+e)}, {v(vO2+e)}, {v(vX)}")
    for e in range(3): a(f"v_cvt_pk_bf16_f32 {v(vO2+e)}, {v(vO2+e)}, {v(vO2+e)}")
    a("s_mov_b64 exec, 0xff")
    for e in range(3):
        a(f"buffer_store_short {v(vO2+e)}, {v(vKk)}, {srd(sOUT)}, {s(sT1)} offen offset:{32*e}")
    if stamp:
        a("s_mov_b64 exec, -1")
        a("s_waitcnt vmcnt(0)")
        a(f"s_memrealtime {sp(sT2)}")
        wait_cons("L_sw", NST, 1)
        a(f"v_add_u32 {v(vU)}, {L_TS}, {v(vL16)}")
        a(f"ds_read_b128 {v4(64)}, {v(vU)}"); a(f"ds_read_b128 {v4(68)}, {v(vU)} offset:1024")
        a(f"ds_read_b128 {v4(72)}, {v(vCT)} offset:64")
        a("s_waitcnt lgkmcnt(0)")
        a(f"v_max3_u32 {v(72)}, {v(72)}, {v(73)}, {v(74)}"); a(f"v_max_u32 {v(69)}, {v(72)}, {v(75)}")
        a(f"v_mov_b32 {v(70)}, {s(sT2)}")
        a(f"s_lshl_b32 {s(sT0)}, s2, 11"); a(f"s_add_u32 {s(sT0)}, {s(sT0)}, {STAMP_OFF+8192}")
        a(f"buffer_store_dwordx4 {v4(64)}, {v(vL16)}, {srd(sWS)}, {s(sT0)} offen")
        a("s_mov_b64 exec, 1")
        a(f"buffer_store_dwordx4 {v4(68)}, {v(vL16)}, {srd(sWS)}, {s(sT0)} offen offset:1024")
        a(f"v_mov_b32 {v(76)}, {s(sStart)}"); a(f"v_mov_b32 {v(77)}, {s(sStart+1)}"); a(f"v_mov_b32 {v(78)}, {s(sT2)}"); a(f"v_mov_b32 {v(79)}, {s(sT3)}")
        a(f"s_lshl_b32 {s(sT0)}, s2, 4"); a(f"s_add_u32 {s(sT0)}, {s(sT0)}, {STAMP_OFF}")
        a(f"buffer_store_dwordx4 {v4(76)}, {v(vL16)}, {srd(sWS)}, {s(sT0)} offen")
    a("s_endpgm")

    sCp, sXo, sKc, sPrev, sOk, sPub, sTn = 16, 17, 18, 19, 20, 21, 22
    sPW = 24
    vLs, vOwn, vPb, vA, vB, vCc = 5, 6, 7, 8, 9, 10
    PG = 256 // npub
    TQ = int(round(tau0 * 100 * 4096 / 16 / 32))
    a("; ==== pacer ===="); a.label("L_pacer")
    a(f"s_cmp_eq_u32 {s(sWave)}, 6")
    a("s_cbranch_scc0 L_exch")
    sKk, sThr, sW, sDith, sN, sNow = 4, 5, 6, 7, 8, 10
    vPr, vRef, vTs, vT = 8, 12, 14, 15
    a(f"v_lshl_add_u32 {v(vT)}, {v(vLane)}, 2, {v(vCT)}"); a(f"v_mov_b32 {v(vPr)}, 0")
    a(f"ds_write_b32 {v(vT)}, {v(vPr)}")
    a(f"v_mov_b32 {v(vT)}, {G0}"); a(f"ds_write_b32 {v(vCT)}, {v(vT)} offset:{C_G}")
    a(f"s_mov_b32 {s(sKk)}, 0"); a(f"s_mov_b32 {s(sThr)}, 12"); a(f"s_mov_b32 {s(sW)}, 0"); a(f"s_mov_b32 {s(sDith)}, 128"); a(f"s_mov_b32 {s(sN)}, {nstart}")
    a(f"v_mov_b32 {v(vTs)}, {L_TS}")
    a("s_waitcnt lgkmcnt(0)")
    a(f"s_lshl_b32 {s(sT0)}, {s(sStart)}, 12")
    a(f"s_add_u32 {s(sT0)}, {s(sT0)}, {int(round(t1*100*4096))}")
    a(f"v_mov_b32 {v(vRef)}, {s(sT0)}"); a(f"v_mov_b32 {v(vRef+1)}, {TQ}")
    a(f"ds_write_b64 {v(vCT)}, {vp(vRef)} offset:{C_REF}")
    a(f"v_mov_b32 {v(vT)}, {s(sStart)}"); a(f"ds_write_b32 {v(vTs)}, {v(vT)}")
    a("s_waitcnt lgkmcnt(0)")
    a("s_barrier")
    a.label("L_g")
    if gsleep: a(f"s_sleep {gsleep}")
    a(f"ds_read_b32 {v(vF)}, {v(vCT)} offset:{C_LAND}")
    a(f"s_memrealtime {sp(sNow)}")
    a(f"ds_read_b128 {v4(vPr)}, {v(vCT)}")
    a(f"ds_read_b64 {vp(vRef)}, {v(vCT)} offset:{C_REF}")
    a("s_waitcnt lgkmcnt(0)")
    a(f"v_readfirstlane_b32 {s(sT3)}, {v(vF)}")
    a(f"v_min3_i32 {v(vT)}, {v(vPr)}, {v(vPr+1)}, {v(vPr+2)}"); a(f"v_min_i32 {v(vPr)}, {v(vT)}, {v(vPr+3)}")
    a(f"s_cmp_ge_i32 {s(sT3)}, {s(sThr)}")
    a("s_cbranch_scc0 L_gw")
    a(f"v_readfirstlane_b32 {s(sT0)}, {v(vRef)}"); a(f"v_readfirstlane_b32 {s(sT1)}, {v(vRef+1)}")
    a(f"s_add_u32 {s(sKk)}, {s(sKk)}, 1"); a(f"s_add_u32 {s(sThr)}, {s(sThr)}, 12")
    a(f"s_cmp_le_u32 {s(sKk)}, {TX}"); a(f"s_addc_u32 {s(sW)}, {s(sW)}, 32" if wext else f"s_add_u32 {s(sW)}, {s(sW)}, 32")
    a(f"v_add_u32 {v(vTs)}, 4, {v(vTs)}"); a(f"v_mov_b32 {v(vT)}, {s(sNow)}"); a(f"ds_write_b32 {v(vTs)}, {v(vT)}")
    a(f"v_mov_b32 {v(vT)}, {s(sKk)}"); a(f"ds_write_b32 {v(vCT)}, {v(vT)} offset:{C_STEP}")
    a(f"s_mul_i32 {s(sT1)}, {s(sT1)}, {s(sW)}"); a(f"s_add_u32 {s(sT0)}, {s(sT0)}, {s(sT1)}")
    a(f"s_lshl_b32 {s(sT1)}, {s(sNow)}, 12"); a(f"s_sub_u32 {s(sT0)}, {s(sT1)}, {s(sT0)}")
    a(f"s_ashr_i32 {s(sT0)}, {s(sT0)}, 6")
    a(f"s_min_i32 {s(sT0)}, {s(sT0)}, 0x40000"); a(f"s_max_i32 {s(sT0)}, {s(sT0)}, {hex((-0x40000) & 0xffffffff)}")
    a(f"s_mul_i32 {s(sT0)}, {s(sT0)}, {int(round(kp*163.84)) if ctl else 0}"); a(f"s_ashr_i32 {s(sT0)}, {s(sT0)}, 12")
    a(f"s_and_b32 {s(sDith)}, {s(sDith)}, 255"); a(f"s_add_u32 {s(sDith)}, {s(sDith)}, {s(sT0)}"); a(f"s_add_u32 {s(sDith)}, {s(sDith)}, {int(n0*256)}")
    a(f"s_ashr_i32 {s(sN)}, {s(sDith)}, 8")
    a(f"s_min_i32 {s(sN)}, {s(sN)}, {nmax}"); a(f"s_max_i32 {s(sN)}, {s(sN)}, {nmin}")
    a(f"s_cmp_lt_u32 {s(sKk)}, {kstart}"); a(f"s_cselect_b32 {s(sN)}, {nstart}, {s(sN)}")
    a.label("L_gw")
    a(f"s_add_u32 {s(sT0)}, {s(sN)}, {RS << 8}")
    a(f"v_lshl_add_u32 {v(vT)}, {v(vPr)}, 8, {s(sT0)}")
    a(f"ds_write_b32 {v(vCT)}, {v(vT)} offset:{C_G}")
    a(f"s_cmp_lt_u32 {s(sKk)}, {NST}")
    a("s_cbranch_scc1 L_g")
    a("s_endpgm")
    a("; ==== exchange of progress stamps ===="); a.label("L_exch")
    if ipre:
        a("; pull the kernel's code into L2")
        a(f"s_getpc_b64 {sp(26)}")
        a.label("L_pc", flush=False)
        a(f"s_sub_u32 s26, s26, L_pc-{KN}"); a("s_subb_u32 s27, s27, 0")
        a(f"s_lshr_b32 {s(sT0)}, s2, 3"); a(f"s_lshl_b32 {s(sT0)}, {s(sT0)}, 9")
        a(f"v_lshl_add_u32 {v(vCc)}, {v(vLane)}, 3, {s(sT0)}")
        a(f"v_min_u32 {v(vCc)}, L_end-{KN}, {v(vCc)}")
        a(f"global_load_dword {v(vPb)}, {v(vCc)}, {sp(26)}")
    a("s_waitcnt lgkmcnt(0)")
    a("s_barrier")
    if not ctl:
        a("s_endpgm")
    mk(sWS, pWS, WSB)
    a(f"s_mov_b32 {s(sT0)}, {LSTR}"); a(f"v_mul_lo_u32 {v(vLs)}, {v(vLane)}, {s(sT0)}")
    a(f"s_lshr_b32 {s(sT0)}, s2, 3"); a(f"s_mul_i32 {s(sPub)}, {s(sX)}, 5"); a(f"s_add_u32 {s(sPub)}, {s(sPub)}, {s(sT0)}")
    a(f"s_and_b32 {s(sPub)}, {s(sPub)}, {PG-1}"); a(f"s_lshr_b32 {s(sT0)}, {s(sT0)}, {lg(PG)}")
    a(f"s_lshl_b32 {s(sT0)}, {s(sT0)}, 3"); a(f"s_add_u32 {s(sT0)}, {s(sT0)}, {s(sX)}"); a(f"s_mul_i32 {s(sT0)}, {s(sT0)}, {LSTR}")
    a("s_waitcnt vmcnt(0)")
    a(f"v_mov_b32 {v(vPb)}, {s(sT0)}")
    a(f"s_mov_b32 {s(sCp)}, 0"); a(f"s_mov_b32 {s(sXo)}, {X_OFF}"); a(f"s_mov_b32 {s(sKc)}, {k0}"); a(f"s_mov_b32 {s(sOk)}, 0")
    a(f"s_mov_b32 {s(sPrev)}, 0"); a(f"s_mov_b32 {s(sPW)}, 0")
    a.label("L_pc0")
    lds_wait("L_pw1", C_STEP, s(sKc), sT0, hsleep)
    a(f"s_lshl_b32 {s(sT0)}, {s(sKc)}, 2"); a(f"s_add_u32 {s(sT0)}, {s(sT0)}, {L_TS}"); a(f"v_mov_b32 {v(vA)}, {s(sT0)}")
    a(f"ds_read_b32 {v(vOwn)}, {v(vA)}"); a("s_waitcnt lgkmcnt(0)")
    a(f"s_and_b32 {s(sT0)}, {s(sCp)}, {PG-1}"); a(f"s_cmp_eq_u32 {s(sT0)}, {s(sPub)}"); a("s_cbranch_scc0 L_np")
    a("s_mov_b64 exec, 1")
    a(f"buffer_store_dword {v(vOwn)}, {v(vPb)}, {srd(sWS)}, {s(sXo)} offen sc0 sc1")
    a("s_mov_b64 exec, -1")
    a.label("L_np")
    if xm == 1:
        sJ, sOwn, sSum, sCnt, sMx, sBp = 32, 26, 27, 28, 29, 30
        a(f"s_add_u32 {s(sT1)}, {s(sKc)}, {D1}")
        lds_wait("L_pw2", C_STEP, s(sT1), sT0, hsleep)
        a(f"s_add_u32 {s(sBp)}, {s(pWS)}, {s(sXo)}"); a(f"s_addc_u32 {s(sBp+1)}, {s(pWS+1)}, 0")
        for j in range(npub): a(f"s_load_dword {s(sJ+j)}, {sp(sBp)}, {j*LSTR}")
        a(f"s_memrealtime {sp(sTn)}")
        a(f"v_readfirstlane_b32 {s(sOwn)}, {v(vOwn)}")
        a(f"s_mov_b32 {s(sSum)}, 0"); a(f"s_mov_b32 {s(sCnt)}, 0"); a(f"s_mov_b32 {s(sMx)}, -4096")
        a("s_waitcnt lgkmcnt(0)")
        a(f"s_sub_u32 {s(sT3)}, {s(sTn)}, {s(sOwn)}")
        for j in range(npub):
            a(f"s_sub_u32 {s(sT0)}, {s(sJ+j)}, {s(sOwn)}"); a(f"s_add_u32 {s(sT1)}, {s(sT0)}, 4096"); a(f"s_cmp_lt_u32 {s(sT1)}, 0x2000")
            a(f"s_cselect_b32 {s(sT0)}, {s(sT0)}, {s(sT3)}"); a(f"s_addc_u32 {s(sCnt)}, {s(sCnt)}, 0"); a(f"s_add_u32 {s(sSum)}, {s(sSum)}, {s(sT0)}")
            if alpha: a(f"s_max_i32 {s(sMx)}, {s(sMx)}, {s(sT0)}")
        a(f"s_cmp_lt_u32 {s(sCnt)}, {npub//2}"); a("s_cbranch_scc1 L_pskip")
        a(f"s_mul_i32 {s(sSum)}, {s(sSum)}, {int(round((1-alpha)*4096/npub))}")
        a(f"s_lshl_b32 {s(sT0)}, {s(sOwn)}, 12"); a(f"s_add_u32 {s(sT0)}, {s(sT0)}, {s(sSum)}")
        if alpha:
            a(f"s_mul_i32 {s(sMx)}, {s(sMx)}, {int(round(alpha*4096))}"); a(f"s_add_u32 {s(sT0)}, {s(sT0)}, {s(sMx)}")
    else:
        a(f"s_mul_i32 {s(sT0)}, {s(sCp)}, 37"); a(f"s_add_u32 {s(sT0)}, {s(sT0)}, 5"); a(f"s_and_b32 {s(sT0)}, {s(sT0)}, 255")
        a(f"s_cmp_eq_u32 {s(sT0)}, s2"); a("s_cbranch_scc0 L_nagg")
        a(f"s_add_u32 {s(sT1)}, {s(sKc)}, {D1}")
        lds_wait("L_pw2", C_STEP, s(sT1), sT0, hsleep)
        if npub < 64: a(f"s_mov_b64 exec, {hex((1 << npub) - 1)}")
        a(f"buffer_load_dword {v(vA)}, {v(vLs)}, {srd(sWS)}, {s(sXo)} offen sc0 sc1")
        a(f"s_memrealtime {sp(sTn)}")
        a("s_waitcnt vmcnt(0) lgkmcnt(0)")
        a(f"v_sub_u32 {v(vA)}, {v(vA)}, {v(vOwn)}")
        a(f"v_sub_u32 {v(vB)}, {s(sTn)}, {v(vOwn)}")
        a(f"v_add_u32 {v(vCc)}, 4096, {v(vA)}")
        a(f"v_cmp_gt_u32 vcc, 0x2000, {v(vCc)}")
        a(f"v_cndmask_b32 {v(vA)}, {v(vB)}, {v(vA)}, vcc")
        a(f"s_bcnt1_i32_b64 {s(sT2)}, vcc")
        row_reduce("v_add_u32", vA)
        a("s_mov_b64 exec, -1")
        a(f"v_readlane_b32 {s(sT0)}, {v(vA)}, 0")
        for r in range(1, npub // 16):
            a(f"v_readlane_b32 {s(sT1)}, {v(vA)}, {16*r}"); a(f"s_add_u32 {s(sT0)}, {s(sT0)}, {s(sT1)}")
        a(f"s_cmp_lt_u32 {s(sT2)}, {npub//2}"); a("s_cbranch_scc1 L_nagg")
        a(f"s_mul_i32 {s(sT0)}, {s(sT0)}, {4096//npub}")
        a(f"v_lshl_add_u32 {v(vA)}, {v(vOwn)}, 12, {s(sT0)}"); a(f"v_not_b32 {v(vB)}, {v(vA)}")
        a(f"s_add_u32 {s(sT0)}, {s(sXo)}, {R_OFF-X_OFF}")
        a("s_mov_b64 exec, 0xff")
        a(f"buffer_store_dwordx2 {vp(vA)}, {v(vLs)}, {srd(sWS)}, {s(sT0)} offen sc0 sc1")
        a("s_mov_b64 exec, -1")
        a.label("L_nagg")
        a(f"s_add_u32 {s(sT1)}, {s(sKc)}, {D2}")
        lds_wait("L_pw3", C_STEP, s(sT1), sT0, hsleep)
        a(f"s_mul_i32 {s(sT0)}, {s(sX)}, {LSTR}"); a(f"s_add_u32 {s(sT0)}, {s(sT0)}, {s(sXo)}"); a(f"s_add_u32 {s(sT0)}, {s(sT0)}, {R_OFF-X_OFF}")
        a("s_mov_b64 exec, 1")
        a(f"buffer_load_dwordx2 {vp(vA)}, {v(vLs)}, {srd(sWS)}, {s(sT0)} offen sc0 sc1")
        a("s_waitcnt vmcnt(0)")
        a(f"v_readfirstlane_b32 {s(sT0)}, {v(vA)}"); a(f"v_readfirstlane_b32 {s(sT1)}, {v(vB)}"); a(f"v_readfirstlane_b32 {s(sT2)}, {v(vOwn)}")
        a("s_mov_b64 exec, -1")
        a(f"s_xor_b32 {s(sT1)}, {s(sT1)}, {s(sT0)}"); a(f"s_cmp_eq_u32 {s(sT1)}, -1"); a("s_cbranch_scc0 L_pskip")
        a(f"s_lshl_b32 {s(sT2)}, {s(sT2)}, 12"); a(f"s_sub_u32 {s(sT2)}, {s(sT2)}, {s(sT0)}"); a(f"s_add_u32 {s(sT2)}, {s(sT2)}, 0x1000000")
        a(f"s_cmp_lt_u32 {s(sT2)}, 0x2000000"); a("s_cbranch_scc0 L_pskip")
    a(f"s_min_u32 {s(sT2)}, {s(sKc)}, {TX if wext else 0}"); a(f"s_lshl_b32 {s(sT3)}, {s(sKc)}, 5"); a(f"s_add_u32 {s(sT2)}, {s(sT2)}, {s(sT3)}")
    a(f"s_sub_u32 {s(sT1)}, {s(sT0)}, {s(sPrev)}"); a(f"s_sub_u32 {s(sT3)}, {s(sT2)}, {s(sPW)}")
    a(f"v_cvt_f32_u32 {v(vA)}, {s(sT1)}"); a(f"v_cvt_f32_u32 {v(vB)}, {s(sT3)}")
    a(f"v_rcp_f32 {v(vB)}, {v(vB)}")
    a(f"v_mul_f32 {v(vA)}, {hex(f2u(1.0-eps))}, {v(vA)}")
    a(f"v_mul_f32 {v(vA)}, {v(vA)}, {v(vB)}")
    if tlo:
        a(f"v_mul_f32 {v(vB)}, {hex(f2u(1.0-tlo))}, {v(vA)}"); a(f"v_mov_b32 {v(vCc)}, {hex(f2u(float(TQ)))}")
        a(f"v_mul_f32 {v(vA)}, {hex(f2u(1.0+thi))}, {v(vA)}")
        a(f"v_med3_f32 {v(vA)}, {v(vA)}, {v(vB)}, {v(vCc)}")
    a(f"v_cvt_u32_f32 {v(vA)}, {v(vA)}")
    a(f"v_readfirstlane_b32 {s(sT1)}, {v(vA)}")
    a(f"s_mov_b32 {s(sPrev)}, {s(sT0)}"); a(f"s_mov_b32 {s(sPW)}, {s(sT2)}")
    a(f"s_cmp_eq_u32 {s(sOk)}, 0"); a(f"s_cselect_b32 {s(sT1)}, {TQ}, {s(sT1)}"); a(f"s_mov_b32 {s(sOk)}, 1")
    a(f"s_mul_i32 {s(sT2)}, {s(sT2)}, {s(sT1)}"); a(f"s_sub_u32 {s(sT0)}, {s(sT0)}, {s(sT2)}")
    a(f"v_mov_b32 {v(vA)}, {s(sT0)}"); a(f"v_mov_b32 {v(vB)}, {s(sT1)}")
    a(f"ds_write_b64 {v(vCT)}, {vp(vA)} offset:{C_REF}")
    a.label("L_pskip")
    a(f"s_add_u32 {s(sCp)}, {s(sCp)}, 1"); a(f"s_add_u32 {s(sXo)}, {s(sXo)}, {npub*LSTR}"); a(f"s_add_u32 {s(sKc)}, {s(sKc)}, {C}")
    a(f"s_cmp_lt_u32 {s(sKc)}, {NST-(D1 if xm else D2)-2}"); a("s_cbranch_scc1 L_pc0")
    a.label("L_end")
    a("s_endpgm")
    a.raw('.section .rodata,"a"')
    a.raw(".p2align 6"); a.raw(f".amdhsa_kernel {KN}")
    a.raw(f"  .amdhsa_next_free_vgpr {NV}"); a.raw("  .amdhsa_next_free_sgpr 96"); a.raw(f"  .amdhsa_accum_offset {NV}")
    a.raw("  .amdhsa_group_segment_fixed_size 0"); a.raw("  .amdhsa_kernarg_size 112"); a.raw("  .amdhsa_user_sgpr_count 2")
    a.raw("  .amdhsa_user_sgpr_kernarg_segment_ptr 1"); a.raw("  .amdhsa_system_sgpr_workgroup_id_x 1"); a.raw(".end_amdhsa_kernel")
    return a.text()

if __name__ == "__main__":
    import argparse
    ap = argparse.ArgumentParser()
    ap.add_argument("-o", default="standalone__kv_cache_quant_pre_rope_vs_post_rope__decode.s")
    args = ap.parse_args()
    open(args.o, "w").write(gen())
```

```python
import sys, math, struct
from asmb import Asm

KN = "standalone__kv_cache_quant_pre_rope_vs_post_rope__decode_kernel"
HS = 16384 * 768
KVB = 32 * HS
CSB = 16384 * 384
WSB = 1610612736
X_OFF = 32 << 20
R_OFF = 40 << 20
STAMP_OFF = 1 << 30
SB = 12288

def f2u(f): return struct.unpack("<I", struct.pack("<f", f))[0]
HEADER = open("standalone__kv_cache_quant_pre_rope_vs_post_rope__decode.s.ref").read().split("; Override launch")[0]

def gen(NG=4, RS=9, nmin=16, nmax=36, n0=22.0, kp=6.0, tau0=6.38, t1=3.3, k0=8, C=16, D1=4, D2=10, npub=8, LSTR=4352, eps=0.0,
        rotV=4, rotK=4, F=3, stamp=0, csleep=1, hsleep=8, psleep=1, ipre=2, ctl=1, stf="sc0 sc1", ldf="sc0 sc1", csf="", scf="",
        wext=0, dbg="", epk=16, kstart=8, nstart=24, csw=4, sct=4, sc0=16, roles=(4,0,1,2,7,3,5,6), tlo=0.03, gsleep=1, scpre=3, spw=16, xm=1, serp=1, alpha=0.2, thi=0.02, boost=None, dry=0, xpoll=0, kend=None, outf="", gm=1, fm=1, pre=3, fine=1, gfresh=2, wspre=3, pp=2, pstag=6, csmode=2, scph=1, scrot=1, splate=None, eps_=1, tlbp=0, tlbf=""):
    GW = 256 // NG; SPH = 4 * NG; HPG = 32 // NG; NQ = NG; PD = max(1, HPG // 4)
    A = min(4, HPG)
    lg = lambda x: x.bit_length() - 1
    NST = 256
    REV = 1 if (serp and NQ > 1) else 0
    TX = 128 - 4 * HPG
    L_RING = 0
    L_SC = RS * SB
    L_X = L_SC + 16384
    L_QS = L_X + 16384
    L_QT = L_QS + HPG * 1024
    L_ST = L_QT + HPG * 768
    L_TS = L_ST + HPG * 16
    L_CT = L_TS + 1088
    C_LAND, C_STEP, C_REF, C_QRDY, C_PRDY, C_EPO, C_G, C_DONE = 16, 20, 24, 32, 36, 40, 44, 48
    lds = L_CT + 256
    assert lds <= 163840, lds
    a = Asm()
    a.raw(HEADER.rstrip("\n"))
    a.raw(f"; @launch grid=(256,1,1) block=(512,1,1) lds={lds}")
    a.raw('.amdgcn_target "amdgcn-amd-amdhsa--gfx950"')
    for l in f"""Overview (256 workgroups, HBM-bandwidth bound; a workgroup owns {64*NG} rows x {HPG} heads, a step is 16 rows of one head):
 * wave 4 (loader) streams all K steps, then all V steps, into an LDS ring with LDS-DMA loads.  It never waits on a clock;
   it only picks how many loads it keeps in flight ({nmin}..{nmax}) from how far it is behind or ahead of the other workgroups,
   which keeps the chip's reads in one narrow address window and lets all workgroups finish together.
 * wave 6 (pacer) exchanges a few progress time stamps through d_ws for that purpose (speed only, never results).
 * waves 0-3, K steps: logit = ks * sum_d (k[d]-kz) * (qr[d]*cos[d] +- qr[d+-96]*sin[d+-96])  (RoPE moved onto q).
 * wave 5 (helper): rotated q table, scales, softmax weights relative to the true max of the workgroup's rows.
 * waves 0-3, V steps: 48 columns each; per head one partial (max, sum, 192 values) tagged with a per-launch epoch.
 * The helper of workgroup i finally combines 24 output columns (i&7) of head (i>>3) from all partials.""".split("\n"):
        a.raw("; " + l)
    a.raw(".text"); a.raw(f".globl {KN}"); a.raw(".p2align 8"); a.raw(f".type {KN},@function"); a.raw(f"{KN}:")
    srd = lambda b: f"s[{b}:{b+3}]"
    sp = lambda i: f"s[{i}:{i+1}]"
    v = lambda i: f"v{i}"
    vp = lambda i: f"v[{i}:{i+1}]"
    v4 = lambda i: f"v[{i}:{i+3}]"
    s = lambda i: f"s{i}"
    DPP = "row_mask:0xf bank_mask:0xf"
    pQ, pK, pKS, pKZ, pV, pVS, pVZ, pQC, pQS, pKC, pKSN, pOUT, pDBG, pWS = range(48, 76, 2)
    sWave, sG, sI, sX = 76, 77, 78, 79
    sT0, sT1, sT2, sT3 = 80, 81, 82, 83
    sStart = 84
    def mk(b, p, n):
        a(f"s_mov_b32 {s(b)}, {s(p)}"); a(f"s_mov_b32 {s(b+1)}, {s(p+1)}"); a(f"s_mov_b32 {s(b+2)}, {n}"); a(f"s_mov_b32 {s(b+3)}, 0x20000")
    vLane, vL16, vCT, vF = 1, 2, 3, 4
    def lds_wait(lbl, off, val, dst, sleep, cmp="s_cmp_lt_i32"):
        a.label(lbl)
        if sleep: a(f"s_sleep {sleep}")
        a(f"ds_read_b32 {v(vF)}, {v(vCT)} offset:{off}")
        a("s_waitcnt lgkmcnt(0)")
        a(f"v_readfirstlane_b32 {s(dst)}, {v(vF)}")
        a(f"{cmp} {s(dst)}, {val}")
        a(f"s_cbranch_scc1 {lbl}")
    def row_reduce(op, x):
        a(f"{op}_dpp {v(x)}, {v(x)}, {v(x)} quad_perm:[1,0,3,2] {DPP}")
        a(f"{op}_dpp {v(x)}, {v(x)}, {v(x)} quad_perm:[2,3,0,1] {DPP}")
        a(f"{op}_dpp {v(x)}, {v(x)}, {v(x)} row_half_mirror {DPP}")
        a(f"{op}_dpp {v(x)}, {v(x)}, {v(x)} row_mirror {DPP}")
    def xrows(op, x, t1_):
        a(f"v_mov_b32 {v(t1_)}, {v(x)}")
        a(f"v_permlane32_swap_b32 {v(x)}, {v(t1_)}")
        a(f"{op} {v(x)}, {v(x)}, {v(t1_)}")
        a(f"v_mov_b32 {v(t1_)}, {v(x)}")
        a(f"v_permlane16_swap_b32 {v(x)}, {v(t1_)}")
        a(f"{op} {v(x)}, {v(x)}, {v(t1_)}")

    def ev(k):
        if stamp == 3: a(f"s_memrealtime s[{86+2*k}:{87+2*k}]")
    def evw(k, slot, base=None):
        if stamp == 3:
            a("s_waitcnt lgkmcnt(0)"); a(f"v_mov_b32 {v(vF)}, s{86+2*k if base is None else base}"); a(f"ds_write_b32 {v(vCT)}, {v(vF)} offset:{96+4*slot}")
    sK = 4
    sBase, sOff, sT, sGw, sEnd, sN, sRotK, sRotV = 8, 9, 10, 11, 12, 15, 16, 17
    vI, vT, vG = 5, 6, 7
    G0 = (RS << 8) | nstart
    assert rotK % 4 == 0 and rotV % 4 == 0 and roles[0] == 4 and (NG-1)*rotK < SPH and nstart >= 24
    a("s_cmp_ge_u32 s2, 256")
    a("s_cbranch_scc1 L_end")
    a(f"s_load_dwordx2 {sp(sK)}, s[0:1], 8")
    if stamp: a(f"s_memrealtime {sp(sStart)}")
    a(f"v_readfirstlane_b32 {s(sWave)}, v0")
    a(f"s_and_b32 {s(sX)}, s2, 7")
    a(f"s_lshr_b32 {s(sI)}, s2, {3+lg(NG)+lg(A)}")
    a(f"s_lshl3_add_u32 {s(sI)}, {s(sI)}, {s(sX)}")
    a(f"s_lshr_b32 {s(sG)}, s2, 3")
    a(f"s_lshr_b32 {s(sT0)}, {s(sG)}, {lg(NG)}")
    a(f"s_and_b32 {s(sG)}, {s(sG)}, {NG-1}")
    a(f"s_and_b32 {s(sT0)}, {s(sT0)}, {A-1}")
    assert A == 4
    a(f"s_lshl2_add_u32 {s(sI)}, {s(sI)}, {s(sT0)}")
    a(f"s_cmp_lt_u32 {s(sWave)}, 64")
    a.lines.append("    s_cbranch_scc0 L_init")
    if ipre == 2:
        a(f"s_getpc_b64 {sp(26)}")
        a.label("L_pc", flush=False)
        a(f"s_lshl_b32 {s(sT1)}, s2, 6"); a(f"s_and_b32 {s(sT1)}, {s(sT1)}, 0x3e00")
        a(f"v_lshl_add_u32 v5, v0, 3, {s(sT1)}")
        a(f"v_min_u32 v5, L_end-L_pc, v5")
        a(f"global_load_dword v7, v5, {sp(26)}")
    a(f"v_lshlrev_b32 {v(vL16)}, 4, v0")
    a(f"s_mul_i32 {s(sOff)}, {s(sG)}, {HS + rotK*GW*SB}")
    a(f"s_mul_i32 {s(sT0)}, {s(sI)}, {SB}")
    a("s_mov_b32 m0, 0")
    a(f"s_add_u32 {s(sOff)}, {s(sOff)}, {s(sT0)}")
    a(f"s_mov_b32 {s(sK+2)}, {KVB}"); a(f"s_mov_b32 {s(sK+3)}, 0x20000")
    a(f"s_movk_i32 {s(sEnd)}, {SB}")
    a("s_waitcnt lgkmcnt(0)")
    ev(0)
    a.label("L_first", flush=False)
    for k in range(4):
        if pre > 2 and k % 2 == 0: a(f"s_waitcnt vmcnt({nstart-2})")
        a(f"buffer_load_dwordx4 {v(vL16)}, {srd(sK)}, {s(sOff)} offen offset:{k*1024} nt lds")
    a("s_addk_i32 m0, 4096"); a(f"s_addk_i32 {s(sOff)}, 4096")
    a(f"s_cmp_lg_u32 m0, {s(sEnd)}")
    a.lines.append("    s_cbranch_scc1 L_first")
    a(f"s_addk_i32 {s(sEnd)}, {SB}"); a(f"s_add_u32 {s(sOff)}, {s(sOff)}, {GW*SB-SB}")
    a(f"s_cmp_lt_u32 m0, {pre*SB}")
    a.lines.append("    s_cbranch_scc1 L_first")
    a(f"s_sub_u32 {s(sOff)}, {s(sOff)}, {GW*SB-SB}")
    ev(1)
    a("s_barrier")
    a(f"s_load_dwordx2 {sp(pV)}, s[0:1], 32")
    a("s_setprio 3")
    a(f"s_mul_i32 {s(sBase)}, {s(sG)}, {HS}")
    a(f"s_add_u32 {s(sBase)}, {s(sBase)}, {s(sT0)}")
    a(f"s_mul_i32 {s(sRotK)}, {s(sG)}, {rotK}")
    a(f"s_mul_i32 {s(sRotV)}, {s(sG)}, {rotV}")
    a(f"v_mov_b32 {v(vCT)}, {L_CT}")
    if stamp == 3:
        a("s_waitcnt vmcnt(23)"); ev(2); evw(0, 0, sStart); evw(0, 1); evw(1, 2); evw(2, 3)
    if ipre == 2: a(f"s_waitcnt vmcnt({nstart})")
    a(f"s_mov_b32 {s(sT)}, {pre-1}")
    a(f"v_mov_b32 {v(vI)}, {12*pre}"); a(f"v_mov_b32 {v(vG)}, {G0}")
    a("s_waitcnt lgkmcnt(0)")
    a("s_branch L_next")
    a("; ==== all other waves ===="); a.label("L_init")
    a("s_load_dwordx16 s[48:63], s[0:1], 0")
    a("s_load_dwordx8 s[64:71], s[0:1], 64")
    a("s_load_dwordx4 s[72:75], s[0:1], 96")
    if not stamp: a(f"s_memrealtime {sp(sStart)}")
    a(f"v_and_b32 {v(vLane)}, 63, v0")
    a(f"s_lshr_b32 {s(sWave)}, {s(sWave)}, 4")
    a(f"s_lshr_b32 {s(sWave)}, {hex(sum(r << (4*k) for k, r in enumerate(roles)))}, {s(sWave)}")
    a(f"s_and_b32 {s(sWave)}, {s(sWave)}, 7")
    if ipre == 1:
        a(f"s_cmp_eq_u32 {s(sWave)}, 7")
        a("s_cbranch_scc0 L_nopf")
        a(f"s_getpc_b64 {sp(26)}")
        a.label("L_pc", flush=False)
        a(f"s_sub_u32 s26, s26, L_pc-{KN}"); a("s_subb_u32 s27, s27, 0")
        a(f"s_lshr_b32 {s(sT0)}, s2, 3"); a(f"s_lshl_b32 {s(sT0)}, {s(sT0)}, 9")
        a(f"v_lshl_add_u32 v5, {v(vLane)}, 3, {s(sT0)}")
        a(f"v_min_u32 v5, L_end-{KN}, v5")
        a(f"global_load_dword v7, v5, {sp(26)}")
        a.label("L_nopf")
    a(f"v_lshlrev_b32 {v(vL16)}, 4, {v(vLane)}")
    a(f"v_mov_b32 {v(vCT)}, {L_CT}")
    a(f"v_cmp_eq_u32 vcc, {C_G//4}, {v(vLane)}")
    a(f"v_mov_b32 v5, {G0}")
    a(f"v_lshl_add_u32 v6, {v(vLane)}, 2, {v(vCT)}")
    a(f"v_cndmask_b32 v5, 0, v5, vcc")
    a("ds_write_b32 v6, v5")
    a("s_waitcnt lgkmcnt(0)")
    a("s_barrier")
    a("s_branch L_notld")
    a.label("L_next")
    a(f"s_add_u32 {s(sT)}, {s(sT)}, 1")
    a(f"s_cmp_eq_u32 m0, {RS*SB}"); a("s_cselect_b32 m0, 0, m0")
    a(f"s_waitcnt lgkmcnt({1 if gfresh else 4})")
    a(f"v_readfirstlane_b32 {s(sGw)}, {v(vG)}")
    a(f"s_add_u32 {s(sEnd)}, m0, {SB}")
    a(f"s_add_u32 {s(sOff)}, {s(sOff)}, {GW*SB-SB}")
    a(f"s_and_b32 {s(sT0)}, {s(sT)}, 3")
    a.lines.append("    s_cbranch_scc0 L_addr")
    a.label("L_aj", flush=False)
    a(f"s_lshr_b32 {s(sT0)}, {s(sGw)}, 8")
    if not gfresh: a(f"ds_read_b32 {v(vG)}, {v(vCT)} offset:{C_G}")
    a(f"s_cmp_gt_u32 {s(sT0)}, {s(sT)}")
    a.lines.append("    s_cbranch_scc0 L_full")
    a(f"s_and_b32 {s(sN)}, {s(sGw)}, 255")
    a.hist = []
    def tree(lo, hi):
        if lo == hi:
            a(f"s_branch L_v{lo}"); return
        mid = (lo + hi + 1) // 2
        a(f"s_cmp_ge_i32 {s(sN)}, {mid}"); a(f"s_cbranch_scc1 L_t_{mid}_{hi}" if mid < hi else f"s_cbranch_scc1 L_v{hi}")
        tree(lo, mid - 1)
        if mid < hi:
            a.label(f"L_t_{mid}_{hi}")
            tree(mid, hi)
    tree(nmin, nmax)
    for n in range(nmin, nmax + 1):
        a.label(f"L_v{n}")
        for q in range(3):
            a(f"s_waitcnt vmcnt({n-1})")
            a(f"buffer_load_dwordx4 {v(vL16)}, {srd(sK)}, {s(sOff)} offen offset:{q*1024} nt lds")
            if gfresh and q == gfresh - 1: a(f"ds_read_b32 {v(vG)}, {v(vCT)} offset:{C_G}")
        a(f"v_subrev_u32 {v(vT)}, {n-3}, {v(vI)}")
        a("s_add_u32 m0, m0, 3072")
        a(f"ds_write_b32 {v(vCT)}, {v(vT)} offset:{C_LAND}")
        a(f"v_add_u32 {v(vI)}, 3, {v(vI)}")
        a(f"s_add_u32 {s(sOff)}, {s(sOff)}, 3072")
        a(f"s_cmp_lg_u32 m0, {s(sEnd)}")
        a.lines.append(f"    s_cbranch_scc1 L_v{n}")
        a.lines.append("    s_branch L_next")
    a.label("L_full")
    if gfresh: a(f"ds_read_b32 {v(vG)}, {v(vCT)} offset:{C_G}")
    a("s_waitcnt lgkmcnt(0)")
    a(f"v_readfirstlane_b32 {s(sGw)}, {v(vG)}")
    a("s_branch L_aj")
    a("; every 4th step: new head and/or new row range"); a.label("L_addr")
    a(f"s_cmp_lt_u32 {s(sT)}, 128")
    a("s_cbranch_scc0 L_av")
    a(f"s_lshr_b32 {s(sT0)}, {s(sT)}, {2+lg(HPG)}"); a(f"s_lshl_b32 {s(sT0)}, {s(sT0)}, 2")
    a(f"s_add_u32 {s(sT0)}, {s(sT0)}, {s(sRotK)}")
    a(f"s_bfe_u32 {s(sT1)}, {s(sT)}, {hex((lg(HPG) << 16) | 2)}")
    if serp:
        a(f"s_bitcmp1_b32 {s(sT)}, {2+lg(HPG)}"); a(f"s_cselect_b32 {s(sT2)}, {HPG-1}, 0"); a(f"s_xor_b32 {s(sT1)}, {s(sT1)}, {s(sT2)}")
    a("s_branch L_ak")
    a.label("L_av")
    a(f"s_cmp_eq_u32 {s(sT)}, {NST}")
    a("s_cbranch_scc1 L_drain")
    a(f"s_mov_b32 {s(sK)}, {s(pV)}"); a(f"s_mov_b32 {s(sK+1)}, {s(pV+1)}")
    a(f"s_add_u32 {s(sT0)}, {s(sT)}, {s(sRotV)}")
    a(f"s_bfe_u32 {s(sT1)}, {s(sT)}, {hex((lg(HPG) << 16) | lg(SPH))}")
    if REV: a(f"s_xor_b32 {s(sT1)}, {s(sT1)}, {HPG-1}")
    a.label("L_ak")
    a(f"s_and_b32 {s(sT0)}, {s(sT0)}, {SPH-1}")
    a(f"s_mul_i32 {s(sT0)}, {s(sT0)}, {GW*SB}"); a(f"s_mul_i32 {s(sT1)}, {s(sT1)}, {NG*HS}")
    a(f"s_add_u32 {s(sOff)}, {s(sT0)}, {s(sT1)}"); a(f"s_add_u32 {s(sOff)}, {s(sOff)}, {s(sBase)}")
    a("s_branch L_aj")
    a.label("L_drain")
    for k in ((36, 24, 12, 0) if nmax > 36 else (24, 12, 0)):
        a(f"v_mov_b32 {v(vT)}, {NST*12-k}")
        a(f"s_waitcnt vmcnt({k})")
        a(f"ds_write_b32 {v(vCT)}, {v(vT)} offset:{C_LAND}")
    a("s_endpgm")

    a.label("L_notld")
    a(f"s_cmp_gt_u32 {s(sWave)}, 4")
    a("s_cbranch_scc1 L_aux")
    sC, sS, sWS = 4, 8, 12
    sCo, sNeed, sLand, sSl, sN_, sQ_, sSel0, sSel1, sU, sPO, sE = 16, 17, 18, 19, 20, 21, 22, 23, 24, 25, 28
    sMsk = 32
    vRow, vRa, vScA, vXa, vKz, vPrg, vPa, vC, vS1, vQa, vX0, vSc0 = 5, 6, 7, 8, 9, 10, 11, 16, 17, 18, 19, 20
    vAc, vSW = 12, 14
    vY, vZ, vMask = 21, 22, 23
    vW, vD, vQ, vTm, vCur, vNxt = 24, 36, 48, 60, 72, 120
    NV = 168
    a("; ==== consumers ====")
    a(f"v_lshrrev_b32 {v(vY)}, 4, {v(vLane)}")
    a(f"v_and_b32 {v(vZ)}, 15, {v(vLane)}")
    a(f"v_mul_u32_u24 {v(vC)}, 384, {v(vY)}")
    a(f"v_lshl_add_u32 {v(vC)}, {v(vZ)}, 3, {v(vC)}")
    a(f"v_cmp_gt_u32 vcc, 8, {v(vZ)}")
    a(f"v_xor_b32 {v(vS1)}, 64, {v(vC)}")
    a(f"s_mul_i32 {s(sU)}, {s(sG)}, {rotK}"); a(f"s_and_b32 {s(sU)}, {s(sU)}, {SPH-1}")
    a(f"s_lshl_b32 {s(sT0)}, {s(sI)}, 2"); a(f"s_add_u32 {s(sT0)}, {s(sT0)}, {s(sWave)}"); a(f"s_mul_i32 {s(sT3)}, {s(sT0)}, 1536")
    a(f"s_mul_i32 {s(sCo)}, {s(sU)}, {GW*6144}"); a(f"s_add_u32 {s(sCo)}, {s(sCo)}, {s(sT3)}")
    a("s_waitcnt lgkmcnt(0)")
    mk(sC, pKC, CSB); mk(sS, pKSN, CSB)
    def issue_cs(dst):
        for i in range(3):
            a(f"buffer_load_dwordx2 {vp(dst+2*i)}, {v(vC)}, {srd(sC)}, {s(sCo)} offen offset:{128*i} {csf}")
            a(f"buffer_load_dwordx2 {vp(dst+6+2*i)}, {v(vS1)}, {srd(sS)}, {s(sCo)} offen offset:{128*i} {csf}")
        a(f"s_add_u32 {s(sCo)}, {s(sCo)}, {GW*6144}")
    def pack_cs(dst, src):
        for i in range(3):
            for e in range(2):
                a(f"v_cndmask_b32 {v(vW+2*i+e)}, {v(src+6+2*((i+2)%3)+e)}, {v(src+6+2*((i+1)%3)+e)}, vcc")
        for i in range(3):
            c0, s0 = src+2*i, vW+2*i
            a(f"v_perm_b32 {v(dst+4*i+0)}, {v(s0)}, {v(c0)}, {s(sSel0)}")
            a(f"v_perm_b32 {v(dst+4*i+1)}, {v(s0)}, {v(c0)}, {s(sSel1)}")
            a(f"v_perm_b32 {v(dst+4*i+2)}, {v(s0+1)}, {v(c0+1)}, {s(sSel0)}")
            a(f"v_perm_b32 {v(dst+4*i+3)}, {v(s0+1)}, {v(c0+1)}, {s(sSel1)}")
    ev(0)
    for k in range(csw): issue_cs(vNxt + 12*k)
    ev(1)
    mk(sWS, pWS, WSB)
    a(f"s_mov_b32 {s(sSel0)}, 0x05040100"); a(f"s_mov_b32 {s(sSel1)}, 0x07060302")
    a(f"s_lshl_b32 {s(sT0)}, {s(sWave)}, 2")
    a(f"v_add_u32 {v(vY)}, {s(sT0)}, {v(vY)}")
    a(f"v_mul_u32_u24 {v(vRow)}, 768, {v(vY)}"); a(f"v_lshl_add_u32 {v(vRow)}, {v(vZ)}, 4, {v(vRow)}")
    a(f"v_lshlrev_b32 {v(vX0)}, 3, {v(vY)}"); a(f"v_add_u32 {v(vX0)}, {L_X}, {v(vX0)}")
    a(f"v_lshlrev_b32 {v(vQa)}, 4, {v(vZ)}"); a(f"v_add_u32 {v(vQa)}, {L_QT}, {v(vQa)}")
    a(f"v_add_u32 {v(vPa)}, {s(sT0)}, {v(vCT)}")
    a(f"v_mov_b32 {v(vPrg)}, 0"); a(f"v_mov_b32 {v(vMask)}, 0xff")
    a(f"s_mul_i32 {s(sNeed)}, {s(sWave)}, 3"); a(f"s_add_u32 {s(sNeed)}, {s(sNeed)}, 3")
    a(f"s_mov_b32 {s(sLand)}, 0"); a(f"s_mov_b32 {s(sSl)}, 0"); a(f"s_mov_b32 {s(sN_)}, 0"); a(f"s_mov_b32 {s(sQ_)}, 0")
    for k in range(4):
        a(f"s_waitcnt vmcnt({6*(min(4, k+csw)-k-1)})")
        if k + csw < 4: issue_cs(vNxt + 12*(k+csw))
        pack_cs(vCur + 12*k, vNxt + 12*k)
    ev(2); evw(0, 4); evw(1, 5); evw(2, 6)
    def wait_data(lbl):
        a(f"s_cmp_ge_i32 {s(sLand)}, {s(sNeed)}")
        a(f"s_cbranch_scc1 {lbl}g")
        a.label(lbl)
        a(f"ds_read_b32 {v(vF)}, {v(vCT)} offset:{C_LAND}")
        a("s_waitcnt lgkmcnt(0)")
        a(f"v_readfirstlane_b32 {s(sLand)}, {v(vF)}")
        a(f"s_cmp_ge_i32 {s(sLand)}, {s(sNeed)}")
        a(f"s_cbranch_scc1 {lbl}g")
        if csleep: a(f"s_sleep {csleep}")
        a(f"s_branch {lbl}")
        a.label(lbl + "g")
    def next_slot():
        a(f"s_add_u32 {s(sSl)}, {s(sSl)}, {SB}"); a(f"s_cmp_eq_u32 {s(sSl)}, {RS*SB}"); a(f"s_cselect_b32 {s(sSl)}, 0, {s(sSl)}")
        a(f"s_add_u32 {s(sNeed)}, {s(sNeed)}, 12")
    a.label("L_kvisit")
    sCs = 26
    def cs_one(dst, k):
        i = k // 2
        if "nocs" in dbg: return
        if k % 2 == 0: a(f"buffer_load_dwordx2 {vp(dst+2*i)}, {v(vC)}, {srd(sC)}, {s(sCo)} offen offset:{128*i} {csf}")
        else: a(f"buffer_load_dwordx2 {vp(dst+6+2*i)}, {v(vS1)}, {srd(sS)}, {s(sCo)} offen offset:{128*i} {csf}")
    if NQ > 1 and csmode == 0:
        a(f"s_and_b32 {s(sT0)}, {s(sN_)}, {PD-1}")
        a(f"s_cselect_b32 {s(sT0)}, {NQ}, {s(sQ_)}")
        a(f"s_cmp_lt_u32 {s(sT0)}, {NQ-1}")
        a("s_cbranch_scc0 L_nocs")
        if rotK:
            a(f"s_cmp_ge_u32 {s(sCo)}, {CSB}"); a(f"s_cselect_b32 {s(sT0)}, {CSB}, 0"); a(f"s_sub_u32 {s(sCo)}, {s(sCo)}, {s(sT0)}")
        issue_cs(vTm)
        a.label("L_nocs")
    if NQ > 1 and csmode:
        assert PD == 2
        a(f"s_cmp_ge_u32 {s(sCo)}, {CSB}"); a(f"s_cselect_b32 {s(sT0)}, {CSB}, 0"); a(f"s_sub_u32 {s(sCo)}, {s(sCo)}, {s(sT0)}")
        if csmode == 1:
            a(f"s_and_b32 {s(sT0)}, {s(sN_)}, 1"); a(f"s_cselect_b32 {s(sCs)}, 9, {s(sWave)}")
        else:
            a(f"s_and_b32 {s(sCs)}, {s(sN_)}, 1")
        a(f"s_cmp_lt_u32 {s(sQ_)}, {NQ-1}"); a(f"s_cselect_b32 {s(sCs)}, {s(sCs)}, 9")
    if serp:
        a(f"s_bitcmp1_b32 {s(sQ_)}, 0"); a(f"s_cselect_b32 {s(sT2)}, {HPG-1}, 0"); a(f"s_xor_b32 {s(sT2)}, {s(sT2)}, {s(sN_)}")
    else:
        a(f"s_mov_b32 {s(sT2)}, {s(sN_)}")
    a(f"s_mul_i32 {s(sT0)}, {s(sT2)}, 768")
    a(f"v_add_u32 {v(vRa)}, {s(sT0)}, {v(vQa)}")
    a(f"s_lshl_b32 {s(sT0)}, {s(sT2)}, {lg(SPH)}"); a(f"s_add_u32 {s(sT0)}, {s(sT0)}, {s(sU)}")
    a(f"s_lshl_b32 {s(sT1)}, {s(sT0)}, 7"); a(f"v_add_u32 {v(vXa)}, {s(sT1)}, {v(vX0)}")
    a.label("L_qw")
    a(f"ds_read_b32 {v(vF)}, {v(vCT)} offset:{C_QRDY}")
    for i in range(3): a(f"ds_read_b128 {v4(vQ+4*i)}, {v(vRa)} offset:{256*i}")
    a("s_waitcnt lgkmcnt(0)")
    a(f"v_readfirstlane_b32 {s(sT0)}, {v(vF)}")
    a(f"s_cmp_gt_u32 {s(sT0)}, {s(sT2)}")
    a("s_cbranch_scc1 L_qwg")
    a("s_sleep 2")
    a("s_branch L_qw")
    a.label("L_qwg")
    for st in range(4):
        if NQ > 1 and csmode == 1:
            a(f"s_cmp_eq_u32 {s(sCs)}, {st}"); a(f"s_cbranch_scc0 L_nc{st}")
            issue_cs(vTm)
            a.label(f"L_nc{st}")
        if NQ > 1 and csmode == 2:
            a(f"s_cmp_eq_u32 {s(sCs)}, 0"); a(f"s_cbranch_scc0 L_nc{st}")
            cs_one(vTm, st)
            a.label(f"L_nc{st}")
            if st < 2:
                a(f"s_cmp_eq_u32 {s(sCs)}, 1"); a(f"s_cbranch_scc0 L_nd{st}")
                cs_one(vTm, 4+st)
                if st == 1: a(f"s_add_u32 {s(sCo)}, {s(sCo)}, {GW*6144}")
                a.label(f"L_nd{st}")
        for e in range(12):
            a(f"v_dot2_f32_bf16 {v(vW+e)}, {v(vCur+12*st+e)}, {v(vQ+e)}, 0")
        a(f"v_add_u32 {v(vRa)}, {s(sSl)}, {v(vRow)}")
        a(f"v_pk_add_f32 {vp(vSW)}, {vp(vW)}, {vp(vW+2)}")
        for e in range(4, 12, 2): a(f"v_pk_add_f32 {vp(vSW)}, {vp(vSW)}, {vp(vW+e)}")
        wait_data(f"L_kw{st}")
        for i in range(3): a(f"ds_read_b128 {v4(vD+4*i)}, {v(vRa)} offset:{256*i}")
        a(f"v_add_u32 {v(vPrg)}, 1, {v(vPrg)}")
        next_slot()
        for i in range(3):
            a(f"s_waitcnt lgkmcnt({2-i})")
            for e in range(4): a(f"v_cvt_f32_i32 {v(vD+4*i+e)}, {v(vD+4*i+e)}")
            if i == 0:
                a(f"v_pk_mul_f32 {vp(vAc)}, {vp(vD)}, {vp(vW)}")
            else:
                a(f"v_pk_fma_f32 {vp(vAc)}, {vp(vD+4*i)}, {vp(vW+4*i)}, {vp(vAc)}")
            a(f"v_pk_fma_f32 {vp(vAc)}, {vp(vD+4*i+2)}, {vp(vW+4*i+2)}, {vp(vAc)}")
        a(f"v_add_f32 {v(vAc)}, {v(vAc)}, {v(vAc+1)}")
        a(f"v_add_f32 {v(vAc+1)}, {v(vSW)}, {v(vSW+1)}")
        for m_ in ("quad_perm:[1,0,3,2]", "quad_perm:[2,3,0,1]", "row_half_mirror", "row_mirror"):
            for e in range(2): a(f"v_add_f32_dpp {v(vAc+e)}, {v(vAc+e)}, {v(vAc+e)} {m_} {DPP}")
        a(f"ds_write_b64 {v(vXa)}, {vp(vAc)} offset:{128*st}")
        a(f"ds_write_b32 {v(vPa)}, {v(vPrg)}")
    a(f"s_add_u32 {s(sN_)}, {s(sN_)}, 1")
    if NQ > 1:
        a(f"s_and_b32 {s(sT0)}, {s(sN_)}, {PD-1}")
        a("s_cbranch_scc1 L_kvisit")
        for e in range(0, 36, 2): a(f"v_mov_b64 {vp(vNxt+e)}, {vp(vNxt+12+e)}")
        a("s_waitcnt vmcnt(0)")
        pack_cs(vNxt + 36, vTm)
    a(f"s_cmp_lt_u32 {s(sN_)}, {HPG}")
    a("s_cbranch_scc1 L_kvisit")
    if NQ > 1:
        for e in range(0, 48, 2): a(f"v_mov_b64 {vp(vCur+e)}, {vp(vNxt+e)}")
        a(f"s_mov_b32 {s(sN_)}, 0")
        a(f"s_add_u32 {s(sU)}, {s(sU)}, 4"); a(f"s_and_b32 {s(sU)}, {s(sU)}, {SPH-1}")
        a(f"s_add_u32 {s(sQ_)}, {s(sQ_)}, 1")
        a(f"s_cmp_lt_u32 {s(sQ_)}, {NQ}")
        a("s_cbranch_scc1 L_kvisit")
    vAcc, vP, vSt, vRo = vW, vAc, vSW, vScA
    a(f"v_lshrrev_b32 {v(vY)}, 2, {v(vLane)}"); a(f"v_and_b32 {v(vZ)}, 3, {v(vLane)}")
    a(f"v_mul_u32_u24 {v(vRow)}, 768, {v(vY)}"); a(f"v_lshl_add_u32 {v(vRow)}, {v(vZ)}, 4, {v(vRow)}")
    a(f"s_mul_i32 {s(sT0)}, {s(sWave)}, 192"); a(f"v_add_u32 {v(vRow)}, {s(sT0)}, {v(vRow)}")
    a(f"v_lshlrev_b32 {v(vX0)}, 3, {v(vY)}"); a(f"v_add_u32 {v(vX0)}, {L_X}, {v(vX0)}")
    a(f"v_lshrrev_b32 {v(vY)}, 4, {v(vLane)}")
    if gm:
        a(f"v_lshl_add_u32 {v(vRo)}, {v(vY)}, 2, {v(vZ)}")
    else:
        a(f"v_lshl_add_u32 {v(vRo)}, {v(vZ)}, 2, {v(vY)}")
    a(f"v_and_b32 {v(vY)}, 1, {v(vRo)}"); a(f"v_lshlrev_b32 {v(vRo)}, 4, {v(vRo)}")
    a(f"s_lshl_b32 {s(sT0)}, {s(sWave)}, 8"); a(f"v_add_u32 {v(vRo)}, {s(sT0)}, {v(vRo)}")
    a(f"v_lshlrev_b32 {v(vQa)}, 3, {v(vY)}"); a(f"v_add_u32 {v(vQa)}, {L_ST}, {v(vQa)}")
    a(f"v_add_u32 {v(vC)}, {L_QS}, {v(vRo)}")
    a(f"s_mov_b32 {s(sMsk)}, 0x000f000f"); a(f"s_mov_b32 {s(sMsk+1)}, 0x000f000f")
    a(f"s_mov_b32 {s(sNeed)}, {129*12}")
    a(f"s_mul_i32 {s(sU)}, {s(sG)}, {rotV}"); a(f"s_and_b32 {s(sU)}, {s(sU)}, {SPH-1}")
    a(f"s_mov_b32 {s(sN_)}, 0")
    a(f"s_add_u32 {s(sPO)}, {s(sG)}, {(HPG-1)*NG*(1-REV)}"); a(f"s_mul_i32 {s(sPO)}, {s(sPO)}, {GW}"); a(f"s_add_u32 {s(sPO)}, {s(sPO)}, {s(sI)}")
    a(f"s_lshl_b32 {s(sPO)}, {s(sPO)}, 10")
    a.label("L_vhead")
    for e in range(0, 12, 2): a(f"v_mov_b64 {vp(vAcc+e)}, 0")
    a(f"s_mov_b32 {s(sQ_)}, 0")
    a.label("L_pw")
    a(f"ds_read_b64 {vp(vD)}, {v(vCT)} offset:{C_PRDY-4}")
    a(f"ds_read_b32 {v(vF)}, {v(vCT)} offset:{C_EPO}")
    a(f"ds_read_b64 {vp(vSt)}, {v(vQa)}")
    a("s_waitcnt lgkmcnt(0)")
    a(f"v_readfirstlane_b32 {s(sT0)}, {v(vD+1)}")
    a(f"v_readfirstlane_b32 {s(sE)}, {v(vF)}")
    a(f"s_cmp_gt_u32 {s(sT0)}, {s(sN_)}")
    a("s_cbranch_scc1 L_pwg")
    a("s_sleep 2")
    a("s_branch L_pw")
    a.label("L_pwg")
    a(f"s_lshr_b32 {s(sE+1)}, {s(sE)}, 8"); a(f"s_lshr_b32 {s(sE+2)}, {s(sE)}, 16")
    a.label("L_vstep")
    a(f"s_xor_b32 {s(sT0)}, {s(sN_)}, {(HPG-1)*REV}")
    a(f"s_lshl_b32 {s(sT0)}, {s(sT0)}, {lg(SPH)}"); a(f"s_add_u32 {s(sT0)}, {s(sT0)}, {s(sU)}"); a(f"s_lshl_b32 {s(sT0)}, {s(sT0)}, 7")
    a(f"v_add_u32 {v(vXa)}, {s(sT0)}, {v(vX0)}")
    a(f"v_add_u32 {v(vRa)}, {s(sSl)}, {v(vRow)}")
    a(f"ds_read_b32 {v(vP)}, {v(vXa)}")
    wait_data("L_vw")
    for i in range(3): a(f"ds_read_b128 {v4(vD+4*i)}, {v(vRa)} offset:{64*i}")
    a(f"v_add_u32 {v(vPrg)}, 1, {v(vPrg)}")
    next_slot()
    a(f"s_add_u32 {s(sU)}, {s(sU)}, 1"); a(f"s_and_b32 {s(sU)}, {s(sU)}, {SPH-1}")
    a(f"s_add_u32 {s(sQ_)}, {s(sQ_)}, 1")
    a(f"s_cmp_lt_u32 {s(sQ_)}, {SPH}")
    for i in range(3):
        a(f"s_waitcnt lgkmcnt({2-i})")
        for e in range(4): a(f"v_cvt_f32_i32 {v(vD+4*i+e)}, {v(vD+4*i+e)}")
        for e in (0, 2):
            a(f"v_pk_fma_f32 {vp(vAcc+4*i+e)}, {vp(vD+4*i+e)}, {vp(vP)}, {vp(vAcc+4*i+e)} op_sel_hi:[1,0,1]")
    a("s_cbranch_scc0 L_vend")
    a(f"ds_write_b32 {v(vPa)}, {v(vPrg)}")
    a("s_branch L_vstep")
    a("; head finished: reduce over the 16 rows, remove the zero-point term, tag"); a.label("L_vend")
    O = vD
    for i in range(3):
        r_ = vAcc + 4*i
        a(f"v_permlane32_swap_b32 {v(r_)}, {v(r_+2)}")
        a(f"v_permlane32_swap_b32 {v(r_+1)}, {v(r_+3)}")
    for i in range(3):
        r_ = vAcc + 4*i
        a(f"v_pk_add_f32 {vp(r_)}, {vp(r_)}, {vp(r_+2)}")
    for i in range(3):
        r_ = vAcc + 4*i
        a(f"v_permlane16_swap_b32 {v(r_)}, {v(r_+1)}")
    for i in range(3):
        r_ = vAcc + 4*i
        a(f"v_add_f32 {v(O+i)}, {v(r_)}, {v(r_+1)}")
    a(f"v_mov_b32 {v(O+3)}, {v(vSt)}")
    for rr in (4, 8):
        for i in range(3): a(f"v_add_f32_dpp {v(O+i)}, {v(O+i)}, {v(O+i)} row_ror:{rr} {DPP}")
    for i in range(3): a(f"v_sub_f32 {v(O+i)}, {v(O+i)}, {v(vSt+1)}")
    for i in range(3): a(f"v_bfi_b32 {v(O+i)}, {v(vMask)}, {s(sE+i)}, {v(O+i)}")
    a(f"s_add_u32 {s(sN_)}, {s(sN_)}, 1")
    a(f"s_cmp_eq_u32 {s(sN_)}, {HPG}")
    a(f"s_mov_b64 exec, {sp(sMsk)}")
    a("s_cbranch_scc1 L_vlast")
    a(f"ds_write_b128 {v(vC)}, {v4(O)}")
    a("s_mov_b64 exec, -1")
    a(f"ds_write_b32 {v(vPa)}, {v(vPrg)}")
    a(f"v_add_u32 {v(vC)}, 1024, {v(vC)}"); a(f"v_add_u32 {v(vQa)}, 16, {v(vQa)}")
    a("s_branch L_vhead")
    a.label("L_vlast")
    a(f"buffer_store_dwordx4 {v4(O)}, {v(vRo)}, {srd(sWS)}, {s(sPO)} offen {stf}")
    if stamp:
        a("s_mov_b64 exec, -1")
        a(f"s_memrealtime {sp(sT0)}"); a("s_waitcnt lgkmcnt(0)")
        a(f"v_mov_b32 {v(vF)}, {s(sT0)}"); a(f"ds_write_b32 {v(vPa)}, {v(vF)} offset:64")
        a(f"ds_write_b32 {v(vPa)}, {v(vPrg)}")
    a("s_endpgm")

    a.label("L_aux")
    a(f"s_cmp_eq_u32 {s(sWave)}, 5")
    a("s_cbranch_scc0 L_pacer")
    sA, sDB, sOUT, sB = 4, 8, 16, 20
    sE = 28
    sN_, sSpin, sPO, sMe, sHc, sBk = 24, 25, 26, 32, 34, 35
    vQo0, vQo1, vSg, vH0, vH1, vX, vY, vZ, vU, vMask, vA0, vA1 = 5, 6, 7, 8, 9, 10, 11, 12, 13, 14, 15, 16
    qr, t_ = 20, 32
    vSv, vQv, sSo = 17, 56, 27
    NQL = (HPG * 24 + 63) // 64
    a("; ==== helper ====")
    a(f"v_lshlrev_b32 {v(vQo0)}, 3, {v(vLane)}")
    a(f"v_cmp_gt_u32 vcc, 24, {v(vLane)}")
    a(f"v_mov_b32 {v(vU)}, 0xffffff40"); a(f"v_mov_b32 {v(vX)}, 192")
    a(f"v_cndmask_b32 {v(vU)}, {v(vU)}, {v(vX)}, vcc")
    a(f"v_add_u32 {v(vQo1)}, {v(vQo0)}, {v(vU)}")
    a(f"v_mov_b32 {v(vX)}, 0x80008000")
    a(f"v_cndmask_b32 {v(vSg)}, 0, {v(vX)}, vcc")
    hpi = 32 // SPH
    a(f"v_lshrrev_b32 {v(vX)}, 1, {v(vLane)}")
    a(f"v_and_b32 {v(vY)}, {SPH-1}, {v(vX)}"); a(f"v_lshrrev_b32 {v(vX)}, {lg(SPH)}, {v(vX)}")
    a(f"v_mul_u32_u24 {v(vX)}, {NG*32768}, {v(vX)}"); a(f"v_mul_u32_u24 {v(vY)}, {GW*32}, {v(vY)}"); a(f"v_add_u32 {v(vX)}, {v(vX)}, {v(vY)}")
    a(f"v_and_b32 {v(vY)}, 1, {v(vLane)}"); a(f"v_lshl_add_u32 {v(vSv)}, {v(vY)}, 4, {v(vX)}")
    for k in range(NQL):
        a(f"v_add_u32 {v(vX)}, {64*k}, {v(vLane)}")
        a(f"v_mul_u32_u24 {v(vZ)}, 2731, {v(vX)}"); a(f"v_lshrrev_b32 {v(vZ)}, 16, {v(vZ)}")
        a(f"v_mul_u32_u24 {v(vZ)}, {(NG-1)*384}, {v(vZ)}"); a(f"v_lshl_add_u32 {v(vQv+k)}, {v(vX)}, 4, {v(vZ)}")
    a(f"v_cmp_eq_u32 {sp(sMe)}, 0, {v(vY)}")
    a(f"s_lshl_b32 {s(sSo)}, {s(sG)}, 15"); a(f"s_lshl_b32 {s(sT0)}, {s(sI)}, 5"); a(f"s_add_u32 {s(sSo)}, {s(sSo)}, {s(sT0)}")
    a(f"s_mov_b32 m0, {L_QS}")
    a("s_waitcnt lgkmcnt(0)")
    mk(sA, pQC, 384); mk(sB, pQS, 384)
    a(f"buffer_load_dwordx2 {vp(qr+8)}, {v(vQo0)}, {srd(sA)}, 0 offen")
    a(f"buffer_load_dwordx2 {vp(qr+10)}, {v(vQo0)}, {srd(sB)}, 0 offen")
    mk(sA, pQ, 12288)
    a(f"s_mul_i32 {s(sT0)}, {s(sG)}, 384")
    for k in range(NQL):
        a(f"buffer_load_dwordx4 {v(vQv+k)}, {srd(sA)}, {s(sT0)} offen lds")
        a("s_add_u32 m0, m0, 1024")
    if scpre == 2:
        a("; this workgroup's share of the scale arrays is pulled on chip now; the own pieces are fetched later")
        a(f"s_lshl_b32 {s(sT0)}, s2, 12")
        n_ = 0
        for p in (pKS, pKZ, pVS, pVZ):
            mk(sB, p, 1 << 20)
            for k in range(4):
                if n_ >= spw: a(f"s_waitcnt vmcnt({spw-1})")
                a(f"buffer_load_dwordx4 {v4(64)}, {v(vL16)}, {srd(sB)}, {s(sT0)} offen offset:{1024*k} {scf}"); n_ += 1
    def sc_prefetch():
        a("; whole lines of the scale arrays (shared by 4 workgroups) are pulled on chip first")
        vPv = 62
        a(f"s_and_b32 {s(sT0)}, {s(sI)}, 3"); a(f"s_lshl_b32 {s(sT0)}, {s(sT0)}, 3")
        a(f"v_lshrrev_b32 {v(vX)}, 3, {v(vLane)}"); a(f"v_add_u32 {v(vX)}, {s(sT0)}, {v(vX)}")
        a(f"v_and_b32 {v(vY)}, {SPH-1}, {v(vX)}"); a(f"v_lshrrev_b32 {v(vX)}, {lg(SPH)}, {v(vX)}")
        a(f"v_mul_u32_u24 {v(vX)}, {NG*32768}, {v(vX)}"); a(f"v_mul_u32_u24 {v(vY)}, {GW*32}, {v(vY)}"); a(f"v_add_u32 {v(vX)}, {v(vX)}, {v(vY)}")
        a(f"v_and_b32 {v(vY)}, 7, {v(vLane)}"); a(f"v_lshl_add_u32 {v(vPv)}, {v(vY)}, 4, {v(vX)}")
        for p in (pKS, pKZ, pVS, pVZ):
            mk(sB, p, 1 << 20)
            a(f"s_andn2_b32 {s(sT0)}, {s(sSo)}, 127")
            for k in range(4):
                if spw < 16: a(f"s_waitcnt vmcnt({spw-1})")
                a(f"buffer_load_dwordx4 {v4(64)}, {v(vPv)}, {srd(sB)}, {s(sT0)} offen")
                a(f"s_add_u32 {s(sT0)}, {s(sT0)}, {hpi*NG*32768}")
    if scpre == 3 and splate is None: sc_prefetch()
    NPF = min(16, spw) if scpre >= 2 and splate is None else 0
    mk(sWS, pWS, WSB); mk(sDB, pDBG, 256); mk(sOUT, pOUT, 12288)
    a(f"v_mov_b32 {v(vMask)}, 0xff")
    def unpack(dst, src):
        a(f"v_lshlrev_b32 {v(dst)}, 16, {v(src)}"); a(f"v_and_b32 {v(dst+1)}, 0xffff0000, {v(src)}")
        a(f"v_lshlrev_b32 {v(dst+2)}, 16, {v(src+1)}"); a(f"v_and_b32 {v(dst+3)}, 0xffff0000, {v(src+1)}")
    cF, sF, aF, bF, rr = t_, t_+4, t_+8, t_+12, t_+16
    a(f"v_add_u32 {v(vA0)}, {L_QS}, {v(vQo0)}"); a(f"v_add_u32 {v(vA1)}, {L_QS}, {v(vQo1)}")
    a(f"v_lshlrev_b32 {v(vH0)}, 1, {v(vQo0)}"); a(f"v_lshlrev_b32 {v(vH1)}, 1, {v(vQo1)}")
    a(f"v_add_u32 {v(vH0)}, {L_QT}, {v(vH0)}"); a(f"v_add_u32 {v(vH1)}, {L_QT}, {v(vH1)}")
    a(f"v_mov_b32 {v(vZ)}, 0")
    a(f"s_mov_b32 {s(sN_)}, 0")
    a(f"s_waitcnt vmcnt({NQL+NPF})")
    a(f"v_xor_b32 {v(qr+10)}, {v(qr+10)}, {v(vSg)}"); a(f"v_xor_b32 {v(qr+11)}, {v(qr+11)}, {v(vSg)}")
    unpack(cF, qr+8); unpack(sF, qr+10)
    a(f"v_and_b32 {v(vSg)}, 0x80000000, {v(vSg)}")
    a(f"s_waitcnt vmcnt({NPF})")
    a("s_mov_b32 exec_hi, 0xffff")
    a("; rotated q (rounded like the reference), stored as (qr[d], +-qr[d+-96]) pairs"); a.label("L_hq")
    a(f"ds_read_b64 {vp(qr)}, {v(vA0)}"); a(f"ds_read_b64 {vp(qr+2)}, {v(vA1)}")
    a(f"v_add_u32 {v(vA0)}, 384, {v(vA0)}"); a(f"v_add_u32 {v(vA1)}, 384, {v(vA1)}")
    a(f"v_add_u32 {v(vZ)}, 1, {v(vZ)}")
    a("s_waitcnt lgkmcnt(0)")
    unpack(aF, qr); unpack(bF, qr+2)
    for e in range(0, 4, 2):
        a(f"v_pk_mul_f32 {vp(aF+e)}, {vp(aF+e)}, {vp(cF+e)}"); a(f"v_pk_mul_f32 {vp(bF+e)}, {vp(bF+e)}, {vp(sF+e)}")
    for e in range(4): a(f"v_cvt_pk_bf16_f32 {v(aF+e)}, {v(aF+e)}, {v(bF+e)}")
    for e in range(4):
        a(f"v_and_b32 {v(bF+e)}, 0xffff0000, {v(aF+e)}"); a(f"v_lshlrev_b32 {v(aF+e)}, 16, {v(aF+e)}")
    for e in range(0, 4, 2): a(f"v_pk_add_f32 {vp(aF+e)}, {vp(aF+e)}, {vp(bF+e)}")
    for e in range(4): a(f"v_cvt_pk_bf16_f32 {v(rr+e)}, {v(aF+e)}, {v(aF+e)}")
    for e in range(4): a(f"v_xor_b32 {v(rr+e)}, {v(rr+e)}, {v(vSg)}")
    for e in range(4):
        a(f"ds_write_b16 {v(vH0)}, {v(rr+e)} offset:{4*e}")
        a(f"ds_write_b16_d16_hi {v(vH1)}, {v(rr+e)} offset:{4*e+2}")
    a(f"ds_write_b32 {v(vCT)}, {v(vZ)} offset:{C_QRDY}")
    a(f"v_add_u32 {v(vH0)}, 768, {v(vH0)}"); a(f"v_add_u32 {v(vH1)}, 768, {v(vH1)}")
    a(f"s_add_u32 {s(sN_)}, {s(sN_)}, 1")
    a(f"s_cmp_lt_u32 {s(sN_)}, {HPG}")
    a("s_cbranch_scc1 L_hq")
    a("s_mov_b32 exec_hi, -1")
    ev(0); evw(0, 7)
    if scpre == 3 and splate is not None:
        lds_wait("L_spl", C_STEP, splate, sT0, 2)
        sc_prefetch()
    if wspre:
        a("; touch the slots of the partials that are handed over last, so that they are on chip by then (data unused)")
        nw = HPG if wspre < 3 else wspre - 2
        a(f"s_add_u32 {s(sT0)}, {s(sG)}, {0 if REV else (HPG-nw)*NG}")
        a(f"s_mul_i32 {s(sT0)}, {s(sT0)}, {GW}"); a(f"s_add_u32 {s(sT0)}, {s(sT0)}, {s(sI)}"); a(f"s_lshl_b32 {s(sT0)}, {s(sT0)}, 10")
        for k in range(nw):
            a(f"buffer_load_dwordx4 {v4(64)}, {v(vL16)}, {srd(sWS)}, {s(sT0)} offen {'sc0 sc1' if wspre == 2 else ''}")
            a(f"s_add_u32 {s(sT0)}, {s(sT0)}, {NG*GW*1024}")
    def epoch_code():
        a("; launch epoch, agreed through d_debug[0]: workgroup 0 proposes at once, the others look later")
        a(f"v_mov_b32 {v(vA0)}, 0")
        a(f"s_mov_b32 {s(sSpin)}, 0")
        a("s_cmp_eq_u32 s2, 0")
        a("s_cbranch_scc1 L_epc")
        lds_wait("L_epw", C_STEP, epk, sT0, 16)
        if eps_:
            a(f"s_load_dword {s(sE)}, {sp(pDBG)}, 0")
            a("s_waitcnt lgkmcnt(0)")
            a(f"s_cmp_lg_u32 {s(sE)}, 0")
            a("s_cbranch_scc1 L_epd")
        a.label("L_ep")
        a("s_mov_b64 exec, 1")
        a(f"buffer_load_dword {v(vY)}, {v(vA0)}, {srd(sDB)}, 0 offen sc0 sc1")
        a("s_waitcnt vmcnt(0)")
        a(f"v_readfirstlane_b32 {s(sE)}, {v(vY)}")
        a("s_mov_b64 exec, -1")
        a(f"s_cmp_lg_u32 {s(sE)}, 0")
        a("s_cbranch_scc1 L_epd")
        a("s_sleep 32")
        a(f"s_add_u32 {s(sSpin)}, {s(sSpin)}, 1")
        a(f"s_cmp_lt_u32 {s(sSpin)}, 8")
        a("s_cbranch_scc1 L_ep")
        a.label("L_epc")
        a(f"s_mul_i32 {s(sE)}, {s(sStart)}, 0x9e3779b1")
        a(f"s_lshr_b32 {s(sT1)}, {s(sE)}, 15"); a(f"s_xor_b32 {s(sE)}, {s(sE)}, {s(sT1)}")
        a(f"s_mul_i32 {s(sE)}, {s(sE)}, 0x85ebca6b")
        a(f"s_lshr_b32 {s(sT1)}, {s(sE)}, 13"); a(f"s_xor_b32 {s(sE)}, {s(sE)}, {s(sT1)}")
        a(f"s_max_u32 {s(sE)}, {s(sE)}, 1")
        a(f"v_mov_b32 {v(qr)}, {s(sE)}"); a(f"v_mov_b32 {v(qr+1)}, 0")
        a("s_mov_b64 exec, 1")
        a(f"buffer_atomic_cmpswap {vp(qr)}, {v(vA0)}, {srd(sDB)}, 0 offen sc0 sc1")
        a("s_waitcnt vmcnt(0)")
        a(f"v_readfirstlane_b32 {s(sT0)}, {v(qr)}")
        a("s_mov_b64 exec, -1")
        a(f"s_cmp_eq_u32 {s(sT0)}, 0"); a(f"s_cselect_b32 {s(sE)}, {s(sE)}, {s(sT0)}")
        a.label("L_epd")
        a(f"v_mov_b32 {v(vZ)}, {s(sE)}")
        a(f"ds_write_b32 {v(vCT)}, {v(vZ)} offset:{C_EPO}")
        a(f"s_lshr_b32 {s(sE+1)}, {s(sE)}, 8"); a(f"s_lshr_b32 {s(sE+2)}, {s(sE)}, 16"); a(f"s_lshr_b32 {s(sE+3)}, {s(sE)}, 24")
    def scale_code():
        a("; the own 32-byte pieces of the scale arrays trickle into LDS, in an order that differs between workgroups")
        assert sc0 + 16*sct + 4 < TX and scpre != 1
        a(f"s_add_u32 {s(sN_)}, {s(sG)}, {sc0}" if scph else f"s_mov_b32 {s(sN_)}, {sc0}")
        a(f"s_mov_b32 {s(sSpin)}, 0")
        mk(sB, pKS, 1 << 20)
        lds_wait("L_sc", C_STEP, s(sN_), sT0, 16 if sct > 1 else 1)
        if scrot:
            a(f"s_lshr_b32 {s(sT0)}, {s(sI)}, 2"); a(f"s_add_u32 {s(sT0)}, {s(sT0)}, {s(sSpin)}"); a(f"s_and_b32 {s(sT0)}, {s(sT0)}, 15")
        else:
            a(f"s_mov_b32 {s(sT0)}, {s(sSpin)}")
        if "samesc" in dbg: a(f"s_lshr_b32 {s(sT0)}, {s(sI)}, 2")
        a(f"s_lshl_b32 {s(sT1)}, {s(sT0)}, 10"); a(f"s_add_u32 m0, {s(sT1)}, {L_SC}")
        a(f"s_mov_b64 {sp(sB)}, {sp(pKS)}")
        for k, p in ((4, pKZ), (8, pVS), (12, pVZ)):
            a(f"s_cmp_ge_u32 {s(sT0)}, {k}"); a(f"s_cselect_b64 {sp(sB)}, {sp(p)}, {sp(sB)}")
        a(f"s_and_b32 {s(sT0)}, {s(sT0)}, 3"); a(f"s_mul_i32 {s(sT0)}, {s(sT0)}, {hpi*NG*32768}"); a(f"s_add_u32 {s(sT0)}, {s(sT0)}, {s(sSo)}")
        if "nosc" not in dbg: a(f"buffer_load_dwordx4 {v(vSv)}, {srd(sB)}, {s(sT0)} offen {scf} lds")
        a(f"s_add_u32 {s(sSpin)}, {s(sSpin)}, 1")
        a(f"s_add_u32 {s(sN_)}, {s(sN_)}, {sct}")
        a(f"s_cmp_lt_u32 {s(sSpin)}, 16")
        a("s_cbranch_scc1 L_sc")
        a("s_waitcnt vmcnt(0)")
    if sc0 < epk:
        scale_code(); epoch_code()
    else:
        epoch_code(); scale_code()
    vx, vks, vvs, vvz, vS4, vPg, vkz, vx2 = 20, 28, 36, 44, 52, 56, 64, 72
    CEXP = (192.0 ** -0.5) * math.log2(math.e)
    for e in list(range(vks, vS4)) + list(range(vkz, vkz+8)): a(f"v_mov_b32 {v(e)}, 0")
    a(f"v_lshlrev_b32 {v(vA0)}, 3, {v(vLane)}"); a(f"v_add_u32 {v(vA0)}, {L_X+REV*(HPG-1)*512*NG}, {v(vA0)}")
    a(f"v_lshlrev_b32 {v(vA1)}, 1, {v(vLane)}"); a(f"v_add_u32 {v(vA1)}, {L_SC+REV*(HPG-1)*128*NG}, {v(vA1)}")
    a(f"v_mov_b32 {v(vH0)}, {L_ST}"); a(f"v_mov_b32 {v(vH1)}, 0")
    a(f"s_mov_b32 {s(sN_)}, {TX+4}")
    def wait_cons(lbl, val, sleep):
        a.label(lbl)
        if sleep: a(f"s_sleep {sleep}")
        a(f"ds_read_b128 {v4(vPg)}, {v(vCT)}")
        a("s_waitcnt lgkmcnt(0)")
        a(f"v_min3_i32 {v(vPg)}, {v(vPg)}, {v(vPg+1)}, {v(vPg+2)}"); a(f"v_min_i32 {v(vPg)}, {v(vPg)}, {v(vPg+3)}")
        a(f"v_readfirstlane_b32 {s(sT0)}, {v(vPg)}")
        a(f"s_cmp_lt_i32 {s(sT0)}, {val}")
        a(f"s_cbranch_scc1 {lbl}")
    wait_cons("L_hp", s(sN_), hsleep)
    for k in range(NG):
        a(f"ds_read_b64 {vp(vx2+2*k)}, {v(vA0)} offset:{512*k}")
        a(f"ds_read_u16_d16_hi {v(vks+k)}, {v(vA1)} offset:{128*k}")
        a(f"ds_read_u16_d16_hi {v(vkz+k)}, {v(vA1)} offset:{4096+128*k}")
    a("s_waitcnt lgkmcnt(0)")
    for k in range(NG):
        a(f"ds_read_u16_d16_hi {v(vvs+k)}, {v(vA1)} offset:{8192+128*k}")
        a(f"ds_read_u16_d16_hi {v(vvz+k)}, {v(vA1)} offset:{12288+128*k}")
    for k in range(NG): a(f"v_fma_f32 {v(vx+k)}, -{v(vkz+k)}, {v(vx2+2*k+1)}, {v(vx2+2*k)}")
    for k in range(NG): a(f"v_mul_f32 {v(vx+k)}, {v(vx+k)}, {v(vks+k)}")
    for k in range(NG): a(f"v_mul_f32 {v(vx+k)}, {hex(f2u(CEXP))}, {v(vx+k)}")
    a(f"v_mov_b32 {v(vS4)}, {v(vx)}")
    for k in range(1, NG): a(f"v_max_f32 {v(vS4)}, {v(vS4)}, {v(vx+k)}")
    row_reduce("v_max_f32", vS4); xrows("v_max_f32", vS4, vU)
    for k in range(NG): a(f"v_sub_f32 {v(vx+k)}, {v(vx+k)}, {v(vS4)}")
    for k in range(NG): a(f"v_exp_f32 {v(vx+k)}, {v(vx+k)}")
    a(f"v_mov_b32 {v(vS4+2)}, {v(vx)}")
    for k in range(1, NG): a(f"v_add_f32 {v(vS4+2)}, {v(vS4+2)}, {v(vx+k)}")
    a("s_waitcnt lgkmcnt(0)")
    for k in range(NG): a(f"v_mul_f32 {v(vx+k)}, {v(vx+k)}, {v(vvs+k)}")
    a(f"v_mul_f32 {v(vS4+1)}, {v(vx)}, {v(vvz)}")
    for k in range(1, NG): a(f"v_fmac_f32 {v(vS4+1)}, {v(vx+k)}, {v(vvz+k)}")
    for k in range(NG): a(f"ds_write_b32 {v(vA0)}, {v(vx+k)} offset:{512*k}")
    row_reduce("v_add_f32", vS4+2); xrows("v_add_f32", vS4+2, vU)
    row_reduce("v_add_f32", vS4+1); xrows("v_add_f32", vS4+1, vU)
    a(f"v_bfi_b32 {v(vS4+2)}, {v(vMask)}, {s(sE+3)}, {v(vS4+2)}")
    a(f"v_mov_b32 {v(vS4+3)}, {v(vS4+1)}")
    a(f"v_add_u32 {v(vH1)}, 1, {v(vH1)}")
    a("s_mov_b64 exec, 1")
    a(f"ds_write_b128 {v(vH0)}, {v4(vS4)}")
    a(f"ds_write_b32 {v(vCT)}, {v(vH1)} offset:{C_PRDY}")
    a("s_mov_b64 exec, -1")
    a(f"v_add_u32 {v(vA0)}, {512*NG*(1-2*REV)}, {v(vA0)}"); a(f"v_add_u32 {v(vA1)}, {128*NG*(1-2*REV)}, {v(vA1)}"); a(f"v_add_u32 {v(vH0)}, 16, {v(vH0)}")
    a(f"s_add_u32 {s(sN_)}, {s(sN_)}, 4")
    a(f"s_cmp_le_u32 {s(sN_)}, 128")
    a("s_cbranch_scc1 L_hp")
    NLD = GW // 8
    vFo, vFl, vKk = 140, vA0, vA1
    vFd, vFt, vO2 = 44, 20, 40
    sPa, sOo, sDry, sPW_ = 36, 37, 38, 40
    assert vFd + 4*NLD*pp <= vFo and not dry and not xpoll and fm, "combine register budget"
    def comb_setup():
        a(f"s_lshr_b32 {s(sHc)}, s2, 3"); a(f"s_and_b32 {s(sBk)}, s2, 7")
        a(f"v_lshrrev_b32 {v(vX)}, 3, {v(vLane)}"); a(f"v_and_b32 {v(vKk)}, 7, {v(vLane)}")
        a(f"v_lshlrev_b32 {v(vX)}, 10, {v(vX)}"); a(f"v_lshl_add_u32 {v(vFl)}, {v(vKk)}, 4, {v(vX)}")
        if gm:
            a(f"v_lshrrev_b32 {v(vX)}, 2, {v(vKk)}"); a(f"v_and_b32 {v(vKk)}, 3, {v(vKk)}"); a(f"v_lshl_add_u32 {v(vKk)}, {v(vKk)}, 2, {v(vX)}")
        a(f"v_lshlrev_b32 {v(vKk)}, 1, {v(vKk)}")
        if fm:
            a(f"v_bfe_u32 {v(vX)}, {v(vLane)}, 4, 1"); a(f"v_lshl_add_u32 {v(vKk)}, {v(vX)}, 6, {v(vKk)}")
            a(f"v_lshrrev_b32 {v(vX)}, 5, {v(vLane)}"); a(f"v_lshl_add_u32 {v(vKk)}, {v(vX)}, 5, {v(vKk)}")
        a(f"s_mov_b32 {s(sSpin)}, 0"); a(f"s_mov_b32 {s(sDry)}, 0")
        a(f"s_mul_i32 {s(sPa)}, {s(sHc)}, {GW*1024}"); a(f"s_lshl_b32 {s(sT3)}, {s(sBk)}, 7"); a(f"s_add_u32 {s(sPa)}, {s(sPa)}, {s(sT3)}")
        a(f"s_mul_i32 {s(sOo)}, {s(sHc)}, 384")
        a(f"s_lshr_b32 {s(sT3)}, {s(sBk)}, 1"); a(f"s_mul_i32 {s(sT3)}, {s(sT3)}, 96"); a(f"s_add_u32 {s(sOo)}, {s(sOo)}, {s(sT3)}")
        a(f"s_and_b32 {s(sT3)}, {s(sBk)}, 1"); a(f"s_lshl_b32 {s(sT3)}, {s(sT3)}, {2 if gm else 4}"); a(f"s_add_u32 {s(sOo)}, {s(sOo)}, {s(sT3)}")
        mk(sPW_, pWS, WSB); mk(sOUT, pOUT, 12288)
    a(f"s_add_u32 {s(sPO)}, {s(sG)}, {(HPG-1)*NG*REV}"); a(f"s_mul_i32 {s(sPO)}, {s(sPO)}, {GW}"); a(f"s_add_u32 {s(sPO)}, {s(sPO)}, {s(sI)}"); a(f"s_lshl_b32 {s(sPO)}, {s(sPO)}, 10")
    comb_setup()
    if dry:
        a("; run the combine code once on an empty buffer, without storing, so that it is in the instruction cache later")
        a(f"s_mov_b32 {s(sDry)}, 1"); a(f"s_mov_b32 {s(sPW_+2)}, 0")
        a("s_branch L_try")
        a.label("L_dryret")
        a(f"s_mov_b32 {s(sDry)}, 0"); a(f"s_mov_b32 {s(sPW_+2)}, {WSB}")
    a(f"v_add_u32 {v(vU)}, {L_QS}, {v(vL16)}")
    wait_cons("L_hf", NST - SPH, 32)
    NFL = HPG - 1
    assert vFo + 4 * NFL <= NV
    for p_ in range(NFL): a(f"ds_read_b128 {v4(vFo+4*p_)}, {v(vU)} offset:{1024*p_}")
    lds_wait("L_hn", C_STEP, NST - F, sT0, 2)
    for p_ in range(NFL):
        a(f"buffer_store_dwordx4 {v4(vFo+4*p_)}, {v(vL16)}, {srd(sWS)}, {s(sPO)} offen {stf}")
        a(f"{'s_sub_u32' if REV else 's_add_u32'} {s(sPO)}, {s(sPO)}, {NG*GW*1024}")
    lds_wait("L_hl", C_LAND, NST*12, sT0, 1)
    def p_issue(B):
        a(f"s_mov_b32 {s(sT0)}, {s(sPa)}")
        for i in range(NLD):
            a(f"buffer_load_dwordx4 {v4(B+4*i)}, {v(vFl)}, {srd(sPW_)}, {s(sT0)} offen {ldf}")
            if i < NLD-1: a(f"s_add_u32 {s(sT0)}, {s(sT0)}, 8192")
    def p_check(B, younger, ok):
        for i in range(NLD):
            a(f"s_waitcnt vmcnt({younger+NLD-1-i})")
            for e in range(4):
                z = vU if e == 3 else vZ
                if i == 0 and e in (0, 3):
                    a(f"v_xor_b32 {v(z)}, {s(sE+e)}, {v(B+e)}")
                else:
                    a(f"v_bitop3_b32 {v(z)}, {v(z)}, {v(B+4*i+e)}, {s(sE+e)} bitop3:0xf6")
        a(f"v_cndmask_b32 {v(vU)}, {v(vU)}, 0, {sp(sMe)}")
        a(f"v_bitop3_b32 {v(vZ)}, {v(vZ)}, {v(vU)}, {v(vMask)} bitop3:0xa8")
        a(f"v_cmp_ne_u32 vcc, 0, {v(vZ)}")
        a(f"s_cbranch_vccz {ok}")
    def p_math(B):
        if stamp == 2: a("s_memrealtime s[88:89]")
        a(f"v_max_f32 {v(vY)}, {v(B+3)}, {v(B+7)}")
        for i in range(2, NLD, 2): a(f"v_max3_f32 {v(vY)}, {v(vY)}, {v(B+4*i+3)}, {v(B+4*i+7)}")
        a(f"v_max_f32_dpp {v(vY)}, {v(vY)}, {v(vY)} row_ror:8 {DPP}")
        xrows("v_max_f32", vY, vU)
        a(f"v_mov_b32_dpp {v(vY)}, {v(vY)} quad_perm:[0,0,2,2] {DPP}")
        for i in range(NLD): a(f"v_sub_f32_dpp {v(vFt+i)}, {v(B+4*i+3)}, {v(vY)} quad_perm:[0,0,2,2] {DPP}")
        for i in range(NLD): a(f"v_exp_f32 {v(vFt+i)}, {v(vFt+i)}")
        for i in range(NLD):
            sel = f"op_sel:[0,{i&1}" ; selh = f"op_sel_hi:[1,{i&1}"
            for h in range(2):
                if i == 0:
                    a(f"v_pk_mul_f32 {vp(vO2+2*h)}, {vp(B+2*h)}, {vp(vFt)} {sel}] {selh}]")
                else:
                    a(f"v_pk_fma_f32 {vp(vO2+2*h)}, {vp(B+4*i+2*h)}, {vp(vFt+(i&~1))}, {vp(vO2+2*h)} {sel},0] {selh},1]")
    SETS = [vFd + 4*NLD*k for k in range(pp)]
    if stamp == 2: a("s_memrealtime s[86:87]")
    if pp == 1:
        a.label("L_try")
        p_issue(SETS[0]); p_check(SETS[0], 0, "L_ok0")
        if psleep: a(f"s_sleep {psleep}")
    else:
        p_issue(SETS[0]); p_check(SETS[0], 0, "L_ok0")
        for k in range(pp-1):
            p_issue(SETS[k]); a(f"s_sleep {pstag}")
        a.label("L_try")
        for k in range(pp):
            p_issue(SETS[(k+pp-1) % pp]); p_check(SETS[k], NLD*(pp-1), f"L_ok{k}")
    a(f"s_add_u32 {s(sSpin)}, {s(sSpin)}, 1")
    a(f"s_cmp_lt_u32 {s(sSpin)}, 2000000")
    a("s_cbranch_scc1 L_try")
    for k in range(pp-1, -1, -1):
        a.label(f"L_ok{k}")
        p_math(SETS[k])
        if k: a("s_branch L_fin")
    a.label("L_fin")
    a(f"v_permlane32_swap_b32 {v(vO2)}, {v(vO2+1)}")
    a(f"v_permlane32_swap_b32 {v(vO2+2)}, {v(vO2+3)}")
    a(f"v_add_f32 {v(vO2)}, {v(vO2)}, {v(vO2+1)}")
    a(f"v_add_f32 {v(vO2+2)}, {v(vO2+2)}, {v(vO2+3)}")
    a(f"v_permlane16_swap_b32 {v(vO2)}, {v(vO2+2)}")
    a(f"v_add_f32 {v(vO2)}, {v(vO2)}, {v(vO2+2)}")
    a(f"v_add_f32_dpp {v(vO2)}, {v(vO2)}, {v(vO2)} row_ror:8 {DPP}")
    a(f"v_rcp_f32 {v(vX)}, {v(vO2)}")
    a(f"v_readlane_b32 {s(sT1)}, {v(vX)}, 49")
    a(f"v_mul_f32 {v(vO2)}, {s(sT1)}, {v(vO2)}")
    a(f"v_cvt_pk_bf16_f32 {v(vO2)}, {v(vO2)}, {v(vO2)}")
    a("s_mov_b32 exec_lo, 0x00ff00ff"); a("s_mov_b32 exec_hi, 0xff")
    a(f"buffer_store_short {v(vO2)}, {v(vKk)}, {srd(sOUT)}, {s(sOo)} offen {outf}")
    if stamp == 2: a("s_memrealtime s[90:91]")
    if xpoll: a.label("L_cend")
    if stamp:
        a("s_mov_b64 exec, -1")
        a("s_waitcnt vmcnt(0)")
        a(f"s_memrealtime {sp(sT2)}")
        if xpoll:
            a("s_waitcnt lgkmcnt(0)")
            a(f"v_mov_b32 {v(vX)}, {s(sT2)}"); a(f"v_mov_b32 {v(vY)}, 1"); a("s_mov_b64 exec, 1")
            a(f"ds_max_u32 {v(vCT)}, {v(vX)} offset:80"); a(f"ds_add_u32 {v(vCT)}, {v(vY)} offset:84"); a("s_mov_b64 exec, -1")
            a(f"s_cmp_eq_u32 {s(sWave)}, 5"); a("s_cbranch_scc0 L_end")
            a(f"s_cmp_lt_u32 s2, {NG*8}" if REV else f"s_cmp_ge_u32 s2, {256-NG*8}")
            a(f"s_cselect_b32 {s(sT1)}, {1+xpoll}, 1")
            lds_wait("L_sx", 84, s(sT1), sT0, 1)
            lds_wait("L_sy", 80, 0, sT2, 0, cmp="s_cmp_eq_u32")
        wait_cons("L_sw", NST, 1)
        a(f"v_add_u32 {v(vU)}, {L_TS}, {v(vL16)}")
        a(f"ds_read_b128 {v4(64)}, {v(vU)}"); a(f"ds_read_b128 {v4(68)}, {v(vU)} offset:1024")
        a(f"ds_read_b128 {v4(72)}, {v(vCT)} offset:64")
        a("s_waitcnt lgkmcnt(0)")
        a(f"v_max3_u32 {v(72)}, {v(72)}, {v(73)}, {v(74)}"); a(f"v_max_u32 {v(69)}, {v(72)}, {v(75)}")
        a(f"v_mov_b32 {v(70)}, {s(sT2)}")
        a(f"s_lshl_b32 {s(sT0)}, s2, 11"); a(f"s_add_u32 {s(sT0)}, {s(sT0)}, {STAMP_OFF+8192}")
        a(f"buffer_store_dwordx4 {v4(64)}, {v(vL16)}, {srd(sWS)}, {s(sT0)} offen")
        a("s_mov_b64 exec, 1")
        a(f"buffer_store_dwordx4 {v4(68)}, {v(vL16)}, {srd(sWS)}, {s(sT0)} offen offset:1024")
        if stamp == 3:
            a(f"ds_read_b128 {v4(80)}, {v(vCT)} offset:96"); a(f"ds_read_b128 {v4(84)}, {v(vCT)} offset:112"); a("s_waitcnt lgkmcnt(0)")
            a(f"buffer_store_dwordx4 {v4(80)}, {v(vL16)}, {srd(sWS)}, {s(sT0)} offen offset:1040")
            a(f"buffer_store_dwordx4 {v4(84)}, {v(vL16)}, {srd(sWS)}, {s(sT0)} offen offset:1056")
        if stamp == 2:
            a("v_mov_b32 v80, s86"); a("v_mov_b32 v81, s88"); a("v_mov_b32 v82, s90"); a(f"v_mov_b32 v83, {s(sSpin)}")
            a(f"buffer_store_dwordx4 {v4(80)}, {v(vL16)}, {srd(sWS)}, {s(sT0)} offen offset:1040")
        a(f"v_mov_b32 {v(76)}, {s(sStart)}"); a(f"v_mov_b32 {v(77)}, {s(sStart+1)}"); a(f"v_mov_b32 {v(78)}, {s(sT2)}"); a(f"v_mov_b32 {v(79)}, {s(sT3)}")
        a(f"s_lshl_b32 {s(sT0)}, s2, 4"); a(f"s_add_u32 {s(sT0)}, {s(sT0)}, {STAMP_OFF}")
        a(f"buffer_store_dwordx4 {v4(76)}, {v(vL16)}, {srd(sWS)}, {s(sT0)} offen")
    a("s_endpgm")

    sCp, sXo, sKc, sPrev, sOk, sPub, sTn = 16, 17, 18, 19, 20, 21, 22
    sPW = 24
    vLs, vOwn, vPb, vA, vB, vCc = 5, 6, 7, 8, 9, 10
    PG = 256 // npub
    TQ = int(round(tau0 * 100 * 4096 / 16 / 32))
    a("; ==== pacer ===="); a.label("L_pacer")
    a(f"s_cmp_eq_u32 {s(sWave)}, 6")
    a("s_cbranch_scc0 L_exch")
    sKk, sThr, sW, sDith, sN, sNow = 4, 5, 6, 7, 8, 10
    vPr, vRef, vTs, vT = 8, 12, 14, 15
    a(f"s_mov_b32 {s(sKk)}, 0"); a(f"s_mov_b32 {s(sThr)}, 12"); a(f"s_mov_b32 {s(sW)}, 0"); a(f"s_mov_b32 {s(sDith)}, 128"); a(f"s_mov_b32 {s(sN)}, {nstart}"); a("s_mov_b32 s9, 0")
    a(f"v_mov_b32 {v(vTs)}, {L_TS}")
    a("s_waitcnt lgkmcnt(0)")
    a(f"s_lshl_b32 {s(sT0)}, {s(sStart)}, 12")
    a(f"s_add_u32 {s(sT0)}, {s(sT0)}, {int(round(t1*100*4096))}")
    a(f"v_mov_b32 {v(vRef)}, {s(sT0)}"); a(f"v_mov_b32 {v(vRef+1)}, {TQ}")
    a(f"ds_write_b64 {v(vCT)}, {vp(vRef)} offset:{C_REF}")
    a(f"v_mov_b32 {v(vT)}, {s(sStart)}"); a(f"ds_write_b32 {v(vTs)}, {v(vT)}")
    if tlbp:
        mk(12, pK, KVB)
        a(f"s_mul_i32 s18, {s(sG)}, {HS}"); a(f"s_mul_i32 {s(sT0)}, {s(sI)}, {SB}"); a(f"s_add_u32 s18, s18, {s(sT0)}")
    a.label("L_g")
    if gsleep: a(f"s_sleep {gsleep}")
    a(f"ds_read_b32 {v(vF)}, {v(vCT)} offset:{C_LAND}")
    a(f"s_memrealtime {sp(sNow)}")
    a(f"ds_read_b128 {v4(vPr)}, {v(vCT)}")
    a(f"ds_read_b64 {vp(vRef)}, {v(vCT)} offset:{C_REF}")
    a("s_waitcnt lgkmcnt(0)")
    a(f"v_readfirstlane_b32 {s(sT3)}, {v(vF)}")
    a(f"v_min3_i32 {v(vT)}, {v(vPr)}, {v(vPr+1)}, {v(vPr+2)}"); a(f"v_min_i32 {v(vPr)}, {v(vT)}, {v(vPr+3)}")
    if fine:
        sLm = 9
        a(f"v_readfirstlane_b32 {s(sT0)}, {v(vRef)}"); a(f"v_readfirstlane_b32 {s(sT1)}, {v(vRef+1)}")
        a(f"s_max_i32 {s(sLm)}, {s(sLm)}, {s(sT3)}")
        a(f"s_cmp_ge_i32 {s(sLm)}, {s(sThr)}")
        a("s_cbranch_scc0 L_gn")
        a(f"s_add_u32 {s(sKk)}, {s(sKk)}, 1"); a(f"s_add_u32 {s(sThr)}, {s(sThr)}, 12")
        a(f"v_add_u32 {v(vTs)}, 4, {v(vTs)}"); a(f"v_mov_b32 {v(vT)}, {s(sNow)}"); a(f"ds_write_b32 {v(vTs)}, {v(vT)}")
        a(f"v_mov_b32 {v(vT)}, {s(sKk)}"); a(f"ds_write_b32 {v(vCT)}, {v(vT)} offset:{C_STEP}")
        if tlbp:
            sP, sU_, sH_, sB_ = 12, 16, 17, 18
            a(f"s_add_u32 {s(sT2)}, {s(sKk)}, {tlbp}")
            a(f"s_cmp_lt_u32 {s(sT2)}, 128")
            a("s_cbranch_scc0 L_tv")
            a(f"s_lshr_b32 {s(sU_)}, {s(sT2)}, {2+lg(HPG)}"); a(f"s_lshl_b32 {s(sU_)}, {s(sU_)}, 2")
            a(f"s_and_b32 {s(sH_)}, {s(sT2)}, 3"); a(f"s_add_u32 {s(sU_)}, {s(sU_)}, {s(sH_)}")
            a(f"s_bfe_u32 {s(sH_)}, {s(sT2)}, {hex((lg(HPG) << 16) | 2)}")
            a(f"s_bitcmp1_b32 {s(sT2)}, {2+lg(HPG)}"); a(f"s_cselect_b32 {s(sT2)}, {HPG-1}, 0"); a(f"s_xor_b32 {s(sH_)}, {s(sH_)}, {s(sT2)}")
            a("s_branch L_tj")
            a.label("L_tv")
            a(f"s_cmp_lt_u32 {s(sT2)}, {NST}")
            a("s_cbranch_scc0 L_gn")
            a(f"s_mov_b64 {sp(sP)}, {sp(pV)}")
            a(f"s_mov_b32 {s(sU_)}, {s(sT2)}")
            a(f"s_bfe_u32 {s(sH_)}, {s(sT2)}, {hex((lg(HPG) << 16) | lg(SPH))}")
            a(f"s_xor_b32 {s(sH_)}, {s(sH_)}, {HPG-1}")
            a.label("L_tj")
            assert rotK == rotV and serp
            a(f"s_lshl2_add_u32 {s(sU_)}, {s(sG)}, {s(sU_)}"); a(f"s_and_b32 {s(sU_)}, {s(sU_)}, {SPH-1}")
            a(f"s_mul_i32 {s(sU_)}, {s(sU_)}, {GW*SB}"); a(f"s_mul_i32 {s(sH_)}, {s(sH_)}, {NG*HS}")
            a(f"s_add_u32 {s(sU_)}, {s(sU_)}, {s(sH_)}"); a(f"s_add_u32 {s(sU_)}, {s(sU_)}, {s(sB_)}")
            a("s_mov_b64 exec, 0xff")
            a(f"buffer_load_dwordx4 {v4(20)}, {v(vL16)}, {srd(sP)}, {s(sU_)} offen {tlbf}")
            a("s_mov_b64 exec, -1")
        a("; window = n0 + kp * (now - reference time for the loads that have landed)"); a.label("L_gn")
        a(f"s_mul_i32 {s(sW)}, {s(sLm)}, 43691"); a(f"s_lshr_b32 {s(sW)}, {s(sW)}, 14")
    else:
        a(f"s_cmp_ge_i32 {s(sT3)}, {s(sThr)}")
        a("s_cbranch_scc0 L_gw")
        a(f"v_readfirstlane_b32 {s(sT0)}, {v(vRef)}"); a(f"v_readfirstlane_b32 {s(sT1)}, {v(vRef+1)}")
        a(f"s_add_u32 {s(sKk)}, {s(sKk)}, 1"); a(f"s_add_u32 {s(sThr)}, {s(sThr)}, 12")
        a(f"s_cmp_le_u32 {s(sKk)}, {TX}"); a(f"s_addc_u32 {s(sW)}, {s(sW)}, 32" if wext else f"s_add_u32 {s(sW)}, {s(sW)}, 32")
        a(f"v_add_u32 {v(vTs)}, 4, {v(vTs)}"); a(f"v_mov_b32 {v(vT)}, {s(sNow)}"); a(f"ds_write_b32 {v(vTs)}, {v(vT)}")
        a(f"v_mov_b32 {v(vT)}, {s(sKk)}"); a(f"ds_write_b32 {v(vCT)}, {v(vT)} offset:{C_STEP}")
    a(f"s_mul_i32 {s(sT1)}, {s(sT1)}, {s(sW)}"); a(f"s_add_u32 {s(sT0)}, {s(sT0)}, {s(sT1)}")
    a(f"s_lshl_b32 {s(sT1)}, {s(sNow)}, 12"); a(f"s_sub_u32 {s(sT0)}, {s(sT1)}, {s(sT0)}")
    a(f"s_ashr_i32 {s(sT0)}, {s(sT0)}, 6")
    a(f"s_min_i32 {s(sT0)}, {s(sT0)}, 0x40000"); a(f"s_max_i32 {s(sT0)}, {s(sT0)}, {hex((-0x40000) & 0xffffffff)}")
    if kend:
        a(f"s_mov_b32 {s(sT1)}, {int(round(kp*163.84))}"); a(f"s_cmp_ge_u32 {s(sKk)}, {NST-kend[0]}"); a(f"s_cselect_b32 {s(sT1)}, {int(round(kend[1]*163.84))}, {s(sT1)}")
        a(f"s_mul_i32 {s(sT0)}, {s(sT0)}, {s(sT1)}"); a(f"s_ashr_i32 {s(sT0)}, {s(sT0)}, 12")
    else:
        a(f"s_mul_i32 {s(sT0)}, {s(sT0)}, {int(round(kp*163.84)) if ctl else 0}"); a(f"s_ashr_i32 {s(sT0)}, {s(sT0)}, 12")
    a(f"s_and_b32 {s(sDith)}, {s(sDith)}, 255"); a(f"s_add_u32 {s(sDith)}, {s(sDith)}, {s(sT0)}"); a(f"s_add_u32 {s(sDith)}, {s(sDith)}, {int(n0*256)}")
    a(f"s_ashr_i32 {s(sN)}, {s(sDith)}, 8")
    if boost:
        a(f"s_cmp_ge_u32 {s(sKk)}, {NST-boost[0]}"); a(f"s_cselect_b32 {s(sT0)}, {boost[1]}, 0"); a(f"s_add_u32 {s(sN)}, {s(sN)}, {s(sT0)}")
    a(f"s_min_i32 {s(sN)}, {s(sN)}, {nmax}"); a(f"s_max_i32 {s(sN)}, {s(sN)}, {nmin}")
    a(f"s_cmp_lt_u32 {s(sKk)}, {kstart}"); a(f"s_cselect_b32 {s(sN)}, {nstart}, {s(sN)}")
    a.label("L_gw")
    a(f"s_add_u32 {s(sT0)}, {s(sN)}, {RS << 8}")
    a(f"v_lshl_add_u32 {v(vT)}, {v(vPr)}, 8, {s(sT0)}")
    a(f"ds_write_b32 {v(vCT)}, {v(vT)} offset:{C_G}")
    a(f"s_cmp_lt_u32 {s(sKk)}, {NST}")
    a("s_cbranch_scc1 L_g")
    if xpoll:
        a("; idle waves of the workgroups that combine the heads finished last poll as well"); a.label("L_xpoll")
        a(f"s_cmp_lt_u32 s2, {NG*8}" if REV else f"s_cmp_ge_u32 s2, {256-NG*8}")
        a("s_cbranch_scc0 L_end")
        comb_setup()
        a(f"v_and_b32 {v(vY)}, 1, {v(vLane)}"); a(f"v_cmp_eq_u32 {sp(sMe)}, 0, {v(vY)}")
        lds_wait("L_xe", C_EPO, 0, sE, 0, cmp="s_cmp_eq_u32")
        a(f"s_lshr_b32 {s(sE+1)}, {s(sE)}, 8"); a(f"s_lshr_b32 {s(sE+2)}, {s(sE)}, 16"); a(f"s_lshr_b32 {s(sE+3)}, {s(sE)}, 24")
        lds_wait("L_xl", C_LAND, NST*12, sT0, 3)
        a("s_branch L_try")
    a("s_endpgm")
    a("; ==== exchange of progress stamps ===="); a.label("L_exch")
    if not ctl:
        a("s_endpgm")
    mk(sWS, pWS, WSB)
    a(f"s_mov_b32 {s(sT0)}, {LSTR}"); a(f"v_mul_lo_u32 {v(vLs)}, {v(vLane)}, {s(sT0)}")
    a(f"s_lshr_b32 {s(sT0)}, s2, 3"); a(f"s_mul_i32 {s(sPub)}, {s(sX)}, 5"); a(f"s_add_u32 {s(sPub)}, {s(sPub)}, {s(sT0)}")
    a(f"s_and_b32 {s(sPub)}, {s(sPub)}, {PG-1}"); a(f"s_lshr_b32 {s(sT0)}, {s(sT0)}, {lg(PG)}")
    a(f"s_lshl_b32 {s(sT0)}, {s(sT0)}, 3"); a(f"s_add_u32 {s(sT0)}, {s(sT0)}, {s(sX)}"); a(f"s_mul_i32 {s(sT0)}, {s(sT0)}, {LSTR}")
    a("s_waitcnt vmcnt(0)")
    a(f"v_mov_b32 {v(vPb)}, {s(sT0)}")
    a(f"s_mov_b32 {s(sCp)}, 0"); a(f"s_mov_b32 {s(sXo)}, {X_OFF}"); a(f"s_mov_b32 {s(sKc)}, {k0}"); a(f"s_mov_b32 {s(sOk)}, 0")
    a(f"s_mov_b32 {s(sPrev)}, 0"); a(f"s_mov_b32 {s(sPW)}, 0")
    a.label("L_pc0")
    lds_wait("L_pw1", C_STEP, s(sKc), sT0, hsleep)
    a(f"s_lshl_b32 {s(sT0)}, {s(sKc)}, 2"); a(f"s_add_u32 {s(sT0)}, {s(sT0)}, {L_TS}"); a(f"v_mov_b32 {v(vA)}, {s(sT0)}")
    a(f"ds_read_b32 {v(vOwn)}, {v(vA)}"); a("s_waitcnt lgkmcnt(0)")
    a(f"s_and_b32 {s(sT0)}, {s(sCp)}, {PG-1}"); a(f"s_cmp_eq_u32 {s(sT0)}, {s(sPub)}"); a("s_cbranch_scc0 L_np")
    a("s_mov_b64 exec, 1")
    a(f"buffer_store_dword {v(vOwn)}, {v(vPb)}, {srd(sWS)}, {s(sXo)} offen sc0 sc1")
    a("s_mov_b64 exec, -1")
    a.label("L_np")
    if xm == 1:
        sJ, sOwn, sSum, sCnt, sMx, sBp = 32, 26, 27, 28, 29, 30
        a(f"s_add_u32 {s(sT1)}, {s(sKc)}, {D1}")
        lds_wait("L_pw2", C_STEP, s(sT1), sT0, hsleep)
        a(f"s_add_u32 {s(sBp)}, {s(pWS)}, {s(sXo)}"); a(f"s_addc_u32 {s(sBp+1)}, {s(pWS+1)}, 0")
        for j in range(npub): a(f"s_load_dword {s(sJ+j)}, {sp(sBp)}, {j*LSTR}")
        a(f"s_memrealtime {sp(sTn)}")
        a(f"v_readfirstlane_b32 {s(sOwn)}, {v(vOwn)}")
        a(f"s_mov_b32 {s(sSum)}, 0"); a(f"s_mov_b32 {s(sCnt)}, 0"); a(f"s_mov_b32 {s(sMx)}, -4096")
        a("s_waitcnt lgkmcnt(0)")
        a(f"s_sub_u32 {s(sT3)}, {s(sTn)}, {s(sOwn)}")
        for j in range(npub):
            a(f"s_sub_u32 {s(sT0)}, {s(sJ+j)}, {s(sOwn)}"); a(f"s_add_u32 {s(sT1)}, {s(sT0)}, 4096"); a(f"s_cmp_lt_u32 {s(sT1)}, 0x2000")
            a(f"s_cselect_b32 {s(sT0)}, {s(sT0)}, {s(sT3)}"); a(f"s_addc_u32 {s(sCnt)}, {s(sCnt)}, 0"); a(f"s_add_u32 {s(sSum)}, {s(sSum)}, {s(sT0)}")
            if alpha: a(f"s_max_i32 {s(sMx)}, {s(sMx)}, {s(sT0)}")
        a(f"s_cmp_lt_u32 {s(sCnt)}, {npub//2}"); a("s_cbranch_scc1 L_pskip")
        a(f"s_mul_i32 {s(sSum)}, {s(sSum)}, {int(round((1-alpha)*4096/npub))}")
        a(f"s_lshl_b32 {s(sT0)}, {s(sOwn)}, 12"); a(f"s_add_u32 {s(sT0)}, {s(sT0)}, {s(sSum)}")
        if alpha:
            a(f"s_mul_i32 {s(sMx)}, {s(sMx)}, {int(round(alpha*4096))}"); a(f"s_add_u32 {s(sT0)}, {s(sT0)}, {s(sMx)}")
    else:
        a(f"s_mul_i32 {s(sT0)}, {s(sCp)}, 37"); a(f"s_add_u32 {s(sT0)}, {s(sT0)}, 5"); a(f"s_and_b32 {s(sT0)}, {s(sT0)}, 255")
        a(f"s_cmp_eq_u32 {s(sT0)}, s2"); a("s_cbranch_scc0 L_nagg")
        a(f"s_add_u32 {s(sT1)}, {s(sKc)}, {D1}")
        lds_wait("L_pw2", C_STEP, s(sT1), sT0, hsleep)
        if npub < 64: a(f"s_mov_b64 exec, {hex((1 << npub) - 1)}")
        a(f"buffer_load_dword {v(vA)}, {v(vLs)}, {srd(sWS)}, {s(sXo)} offen sc0 sc1")
        a(f"s_memrealtime {sp(sTn)}")
        a("s_waitcnt vmcnt(0) lgkmcnt(0)")
        a(f"v_sub_u32 {v(vA)}, {v(vA)}, {v(vOwn)}")
        a(f"v_sub_u32 {v(vB)}, {s(sTn)}, {v(vOwn)}")
        a(f"v_add_u32 {v(vCc)}, 4096, {v(vA)}")
        a(f"v_cmp_gt_u32 vcc, 0x2000, {v(vCc)}")
        a(f"v_cndmask_b32 {v(vA)}, {v(vB)}, {v(vA)}, vcc")
        a(f"s_bcnt1_i32_b64 {s(sT2)}, vcc")
        row_reduce("v_add_u32", vA)
        a("s_mov_b64 exec, -1")
        a(f"v_readlane_b32 {s(sT0)}, {v(vA)}, 0")
        for r in range(1, npub // 16):
            a(f"v_readlane_b32 {s(sT1)}, {v(vA)}, {16*r}"); a(f"s_add_u32 {s(sT0)}, {s(sT0)}, {s(sT1)}")
        a(f"s_cmp_lt_u32 {s(sT2)}, {npub//2}"); a("s_cbranch_scc1 L_nagg")
        a(f"s_mul_i32 {s(sT0)}, {s(sT0)}, {4096//npub}")
        a(f"v_lshl_add_u32 {v(vA)}, {v(vOwn)}, 12, {s(sT0)}"); a(f"v_not_b32 {v(vB)}, {v(vA)}")
        a(f"s_add_u32 {s(sT0)}, {s(sXo)}, {R_OFF-X_OFF}")
        a("s_mov_b64 exec, 0xff")
        a(f"buffer_store_dwordx2 {vp(vA)}, {v(vLs)}, {srd(sWS)}, {s(sT0)} offen sc0 sc1")
        a("s_mov_b64 exec, -1")
        a.label("L_nagg")
        a(f"s_add_u32 {s(sT1)}, {s(sKc)}, {D2}")
        lds_wait("L_pw3", C_STEP, s(sT1), sT0, hsleep)
        a(f"s_mul_i32 {s(sT0)}, {s(sX)}, {LSTR}"); a(f"s_add_u32 {s(sT0)}, {s(sT0)}, {s(sXo)}"); a(f"s_add_u32 {s(sT0)}, {s(sT0)}, {R_OFF-X_OFF}")
        a("s_mov_b64 exec, 1")
        a(f"buffer_load_dwordx2 {vp(vA)}, {v(vLs)}, {srd(sWS)}, {s(sT0)} offen sc0 sc1")
        a("s_waitcnt vmcnt(0)")
        a(f"v_readfirstlane_b32 {s(sT0)}, {v(vA)}"); a(f"v_readfirstlane_b32 {s(sT1)}, {v(vB)}"); a(f"v_readfirstlane_b32 {s(sT2)}, {v(vOwn)}")
        a("s_mov_b64 exec, -1")
        a(f"s_xor_b32 {s(sT1)}, {s(sT1)}, {s(sT0)}"); a(f"s_cmp_eq_u32 {s(sT1)}, -1"); a("s_cbranch_scc0 L_pskip")
        a(f"s_lshl_b32 {s(sT2)}, {s(sT2)}, 12"); a(f"s_sub_u32 {s(sT2)}, {s(sT2)}, {s(sT0)}"); a(f"s_add_u32 {s(sT2)}, {s(sT2)}, 0x1000000")
        a(f"s_cmp_lt_u32 {s(sT2)}, 0x2000000"); a("s_cbranch_scc0 L_pskip")
    a(f"s_min_u32 {s(sT2)}, {s(sKc)}, {TX if wext else 0}"); a(f"s_lshl_b32 {s(sT3)}, {s(sKc)}, 5"); a(f"s_add_u32 {s(sT2)}, {s(sT2)}, {s(sT3)}")
    a(f"s_sub_u32 {s(sT1)}, {s(sT0)}, {s(sPrev)}"); a(f"s_sub_u32 {s(sT3)}, {s(sT2)}, {s(sPW)}")
    a(f"v_cvt_f32_u32 {v(vA)}, {s(sT1)}"); a(f"v_cvt_f32_u32 {v(vB)}, {s(sT3)}")
    a(f"v_rcp_f32 {v(vB)}, {v(vB)}")
    a(f"v_mul_f32 {v(vA)}, {hex(f2u(1.0-eps))}, {v(vA)}")
    a(f"v_mul_f32 {v(vA)}, {v(vA)}, {v(vB)}")
    if tlo:
        a(f"v_mul_f32 {v(vB)}, {hex(f2u(1.0-tlo))}, {v(vA)}"); a(f"v_mov_b32 {v(vCc)}, {hex(f2u(float(TQ)))}")
        a(f"v_mul_f32 {v(vA)}, {hex(f2u(1.0+thi))}, {v(vA)}")
        a(f"v_med3_f32 {v(vA)}, {v(vA)}, {v(vB)}, {v(vCc)}")
    a(f"v_cvt_u32_f32 {v(vA)}, {v(vA)}")
    a(f"v_readfirstlane_b32 {s(sT1)}, {v(vA)}")
    a(f"s_mov_b32 {s(sPrev)}, {s(sT0)}"); a(f"s_mov_b32 {s(sPW)}, {s(sT2)}")
    a(f"s_cmp_eq_u32 {s(sOk)}, 0"); a(f"s_cselect_b32 {s(sT1)}, {TQ}, {s(sT1)}"); a(f"s_mov_b32 {s(sOk)}, 1")
    a(f"s_mul_i32 {s(sT2)}, {s(sT2)}, {s(sT1)}"); a(f"s_sub_u32 {s(sT0)}, {s(sT0)}, {s(sT2)}")
    a(f"v_mov_b32 {v(vA)}, {s(sT0)}"); a(f"v_mov_b32 {v(vB)}, {s(sT1)}")
    a(f"ds_write_b64 {v(vCT)}, {vp(vA)} offset:{C_REF}")
    a.label("L_pskip")
    a(f"s_add_u32 {s(sCp)}, {s(sCp)}, 1"); a(f"s_add_u32 {s(sXo)}, {s(sXo)}, {npub*LSTR}"); a(f"s_add_u32 {s(sKc)}, {s(sKc)}, {C}")
    a(f"s_cmp_lt_u32 {s(sKc)}, {NST-(D1 if xm else D2)-2}"); a("s_cbranch_scc1 L_pc0")
    if xpoll >= 2: a("s_branch L_xpoll")
    a.label("L_end")
    a("s_endpgm")
    a.raw('.section .rodata,"a"')
    a.raw(".p2align 6"); a.raw(f".amdhsa_kernel {KN}")
    a.raw(f"  .amdhsa_next_free_vgpr {NV}"); a.raw("  .amdhsa_next_free_sgpr 96"); a.raw(f"  .amdhsa_accum_offset {NV}")
    a.raw("  .amdhsa_group_segment_fixed_size 0"); a.raw("  .amdhsa_kernarg_size 112"); a.raw("  .amdhsa_user_sgpr_count 2")
    a.raw("  .amdhsa_user_sgpr_kernarg_segment_ptr 1"); a.raw("  .amdhsa_system_sgpr_workgroup_id_x 1"); a.raw(".end_amdhsa_kernel")
    return a.text()

if __name__ == "__main__":
    import argparse
    ap = argparse.ArgumentParser()
    ap.add_argument("-o", default="standalone__kv_cache_quant_pre_rope_vs_post_rope__decode.s")
    args = ap.parse_args()
    open(args.o, "w").write(gen())
```

```python
import sys, math, struct
from asmb import Asm

KN = "standalone__kv_cache_quant_pre_rope_vs_post_rope__decode_kernel"
HS = 16384 * 768
KVB = 32 * HS
CSB = 16384 * 384
WSB = 1610612736
X_OFF = 32 << 20
R_OFF = 40 << 20
STAMP_OFF = 1 << 30
SB = 12288

def f2u(f): return struct.unpack("<I", struct.pack("<f", f))[0]
HEADER = open("standalone__kv_cache_quant_pre_rope_vs_post_rope__decode.s.ref").read().split("; Override launch")[0]

def gen(NG=4, RS=9, nmin=12, nmax=36, n0=22.0, kp=6.0, tau0=6.38, t1=3.3, k0=8, C=16, D1=4, D2=10, npub=8, LSTR=4352, eps=0.0,
        rotV=4, rotK=4, F=3, stamp=0, csleep=1, hsleep=8, psleep=1, ipre=2, ctl=1, stf="sc0 sc1", ldf="sc0 sc1", csf="", scf="",
        wext=0, dbg="", epk=16, kstart=4, nstart=24, csw=4, sct=4, sc0=16, roles=(4,0,1,2,7,3,5,6), tlo=0.03, gsleep=1, scpre=3, spw=16, xm=1, serp=1, alpha=0.2, thi=0.02, boost=None, dry=0, xpoll=0, kend=None, outf="", gm=1, fm=1, pre=3, fine=1, gfresh=2, wspre=3, pp=2, pstag=6, csmode=2, scph=1, scrot=1, splate=None, eps_=1, tlbp=0, tlbf="", stampe=None, spf="", cs0f=None, warp=1, lead=22, FL=30):
    GW = 256 // NG; SPH = 4 * NG; HPG = 32 // NG; NQ = NG; PD = max(1, HPG // 4)
    A = min(4, HPG)
    lg = lambda x: x.bit_length() - 1
    NST = 256
    REV = 1 if (serp and NQ > 1) else 0
    TX = 128 - 4 * HPG
    L_RING = 0
    L_SC = RS * SB
    L_X = L_SC + 16384
    L_QS = L_X + 16384
    L_QT = L_QS + HPG * 1024
    L_ST = L_QT + HPG * 768
    L_TS = L_ST + HPG * 16
    L_CT = L_TS + 1088
    C_LAND, C_STEP, C_REF, C_QRDY, C_PRDY, C_EPO, C_G, C_DONE = 16, 20, 24, 32, 36, 40, 44, 48
    lds = L_CT + 256
    assert lds <= 163840, lds
    a = Asm()
    a.raw(HEADER.rstrip("\n"))
    a.raw(f"; @launch grid=(256,1,1) block=(512,1,1) lds={lds}")
    a.raw('.amdgcn_target "amdgcn-amd-amdhsa--gfx950"')
    for l in f"""Overview (256 workgroups, HBM-bandwidth bound; a workgroup owns {64*NG} rows x {HPG} heads, a step is 16 rows of one head):
 * wave 4 (loader) streams all K steps, then all V steps, into an LDS ring with LDS-DMA loads.  It never waits on a clock;
   it only picks how many loads it keeps in flight ({nmin}..{nmax}) from how far it is behind or ahead of the other workgroups,
   which keeps the chip's reads in one narrow address window and lets all workgroups finish together.
 * wave 6 (pacer) exchanges a few progress time stamps through d_ws for that purpose (speed only, never results).
 * waves 0-3, K steps: logit = ks * sum_d (k[d]-kz) * (qr[d]*cos[d] +- qr[d+-96]*sin[d+-96])  (RoPE moved onto q).
 * wave 5 (helper): rotated q table, scales, softmax weights relative to the true max of the workgroup's rows.
 * waves 0-3, V steps: 48 columns each; per head one partial (max, sum, 192 values) tagged with a per-launch epoch.
 * The helper of workgroup i finally combines 24 output columns (i&7) of head (i>>3) from all partials.""".split("\n"):
        a.raw("; " + l)
    a.raw(".text"); a.raw(f".globl {KN}"); a.raw(".p2align 8"); a.raw(f".type {KN},@function"); a.raw(f"{KN}:")
    srd = lambda b: f"s[{b}:{b+3}]"
    sp = lambda i: f"s[{i}:{i+1}]"
    v = lambda i: f"v{i}"
    vp = lambda i: f"v[{i}:{i+1}]"
    v4 = lambda i: f"v[{i}:{i+3}]"
    s = lambda i: f"s{i}"
    DPP = "row_mask:0xf bank_mask:0xf"
    pQ, pK, pKS, pKZ, pV, pVS, pVZ, pQC, pQS, pKC, pKSN, pOUT, pDBG, pWS = range(48, 76, 2)
    sWave, sG, sI, sX = 76, 77, 78, 79
    sT0, sT1, sT2, sT3 = 80, 81, 82, 83
    sStart = 84
    def mk(b, p, n):
        a(f"s_mov_b32 {s(b)}, {s(p)}"); a(f"s_mov_b32 {s(b+1)}, {s(p+1)}"); a(f"s_mov_b32 {s(b+2)}, {n}"); a(f"s_mov_b32 {s(b+3)}, 0x20000")
    vLane, vL16, vCT, vF = 1, 2, 3, 4
    def lds_wait(lbl, off, val, dst, sleep, cmp="s_cmp_lt_i32"):
        a.label(lbl)
        if sleep: a(f"s_sleep {sleep}")
        a(f"ds_read_b32 {v(vF)}, {v(vCT)} offset:{off}")
        a("s_waitcnt lgkmcnt(0)")
        a(f"v_readfirstlane_b32 {s(dst)}, {v(vF)}")
        a(f"{cmp} {s(dst)}, {val}")
        a(f"s_cbranch_scc1 {lbl}")
    def row_reduce(op, x):
        a(f"{op}_dpp {v(x)}, {v(x)}, {v(x)} quad_perm:[1,0,3,2] {DPP}")
        a(f"{op}_dpp {v(x)}, {v(x)}, {v(x)} quad_perm:[2,3,0,1] {DPP}")
        a(f"{op}_dpp {v(x)}, {v(x)}, {v(x)} row_half_mirror {DPP}")
        a(f"{op}_dpp {v(x)}, {v(x)}, {v(x)} row_mirror {DPP}")
    def xrows(op, x, t1_):
        a(f"v_mov_b32 {v(t1_)}, {v(x)}")
        a(f"v_permlane32_swap_b32 {v(x)}, {v(t1_)}")
        a(f"{op} {v(x)}, {v(x)}, {v(t1_)}")
        a(f"v_mov_b32 {v(t1_)}, {v(x)}")
        a(f"v_permlane16_swap_b32 {v(x)}, {v(t1_)}")
        a(f"{op} {v(x)}, {v(x)}, {v(t1_)}")

    def ev(k):
        if stamp == 3: a(f"s_memrealtime s[{86+2*k}:{87+2*k}]")
    def evw(k, slot, base=None):
        if stamp == 3:
            a("s_waitcnt lgkmcnt(0)"); a(f"v_mov_b32 {v(vF)}, s{86+2*k if base is None else base}"); a(f"ds_write_b32 {v(vCT)}, {v(vF)} offset:{96+4*slot}")
    sK = 4
    sBase, sOff, sT, sGw, sEnd, sN, sRotK, sRotV = 8, 9, 10, 11, 12, 15, 16, 17
    vI, vT, vG = 5, 6, 7
    G0 = (RS << 8) | nstart
    assert rotK % 4 == 0 and rotV % 4 == 0 and roles[0] == 4 and (NG-1)*rotK < SPH and nstart >= 24
    a("s_cmp_ge_u32 s2, 256")
    a("s_cbranch_scc1 L_end")
    a(f"s_load_dwordx2 {sp(sK)}, s[0:1], 8")
    if stamp: a(f"s_memrealtime {sp(sStart)}")
    a(f"v_readfirstlane_b32 {s(sWave)}, v0")
    a(f"s_and_b32 {s(sX)}, s2, 7")
    a(f"s_lshr_b32 {s(sI)}, s2, {3+lg(NG)+lg(A)}")
    a(f"s_lshl3_add_u32 {s(sI)}, {s(sI)}, {s(sX)}")
    a(f"s_lshr_b32 {s(sG)}, s2, 3")
    a(f"s_lshr_b32 {s(sT0)}, {s(sG)}, {lg(NG)}")
    a(f"s_and_b32 {s(sG)}, {s(sG)}, {NG-1}")
    a(f"s_and_b32 {s(sT0)}, {s(sT0)}, {A-1}")
    assert A == 4
    a(f"s_lshl2_add_u32 {s(sI)}, {s(sI)}, {s(sT0)}")
    a(f"s_cmp_lt_u32 {s(sWave)}, 64")
    a.lines.append("    s_cbranch_scc0 L_init")
    if ipre == 2:
        a(f"s_getpc_b64 {sp(26)}")
        a.label("L_pc", flush=False)
        a(f"s_lshl_b32 {s(sT1)}, s2, 6"); a(f"s_and_b32 {s(sT1)}, {s(sT1)}, 0x3e00")
        a(f"v_lshl_add_u32 v5, v0, 3, {s(sT1)}")
        a(f"v_min_u32 v5, L_end-L_pc, v5")
        a(f"global_load_dword v7, v5, {sp(26)}")
    a(f"v_lshlrev_b32 {v(vL16)}, 4, v0")
    a(f"s_mul_i32 {s(sOff)}, {s(sG)}, {HS + rotK*GW*SB}")
    a(f"s_mul_i32 {s(sT0)}, {s(sI)}, {SB}")
    a("s_mov_b32 m0, 0")
    a(f"s_add_u32 {s(sOff)}, {s(sOff)}, {s(sT0)}")
    a(f"s_mov_b32 {s(sK+2)}, {KVB}"); a(f"s_mov_b32 {s(sK+3)}, 0x20000")
    a(f"s_movk_i32 {s(sEnd)}, {SB}")
    a("s_waitcnt lgkmcnt(0)")
    ev(0)
    a.label("L_first", flush=False)
    for k in range(4):
        if pre > 2 and k % 2 == 0: a(f"s_waitcnt vmcnt({nstart-2})")
        a(f"buffer_load_dwordx4 {v(vL16)}, {srd(sK)}, {s(sOff)} offen offset:{k*1024} nt lds")
    a("s_addk_i32 m0, 4096"); a(f"s_addk_i32 {s(sOff)}, 4096")
    a(f"s_cmp_lg_u32 m0, {s(sEnd)}")
    a.lines.append("    s_cbranch_scc1 L_first")
    a(f"s_addk_i32 {s(sEnd)}, {SB}"); a(f"s_add_u32 {s(sOff)}, {s(sOff)}, {GW*SB-SB}")
    a(f"s_cmp_lt_u32 m0, {pre*SB}")
    a.lines.append("    s_cbranch_scc1 L_first")
    a(f"s_sub_u32 {s(sOff)}, {s(sOff)}, {GW*SB-SB}")
    ev(1)
    a("s_barrier")
    a(f"s_load_dwordx2 {sp(pV)}, s[0:1], 32")
    a("s_setprio 3")
    a(f"s_mul_i32 {s(sBase)}, {s(sG)}, {HS}")
    a(f"s_add_u32 {s(sBase)}, {s(sBase)}, {s(sT0)}")
    a(f"s_mul_i32 {s(sRotK)}, {s(sG)}, {rotK}")
    a(f"s_mul_i32 {s(sRotV)}, {s(sG)}, {rotV}")
    a(f"v_mov_b32 {v(vCT)}, {L_CT}")
    if stamp == 3:
        a("s_waitcnt vmcnt(23)"); ev(2); evw(0, 0, sStart); evw(0, 1); evw(1, 2); evw(2, 3)
    if ipre == 2: a(f"s_waitcnt vmcnt({nstart})")
    a(f"s_mov_b32 {s(sT)}, {pre-1}")
    a(f"v_mov_b32 {v(vI)}, {12*pre}"); a(f"v_mov_b32 {v(vG)}, {G0}")
    a("s_waitcnt lgkmcnt(0)")
    a("s_branch L_next")
    a("; ==== all other waves ===="); a.label("L_init")
    a("s_load_dwordx16 s[48:63], s[0:1], 0")
    a("s_load_dwordx8 s[64:71], s[0:1], 64")
    a("s_load_dwordx4 s[72:75], s[0:1], 96")
    if not stamp: a(f"s_memrealtime {sp(sStart)}")
    a(f"v_and_b32 {v(vLane)}, 63, v0")
    a(f"s_lshr_b32 {s(sWave)}, {s(sWave)}, 4")
    a(f"s_lshr_b32 {s(sWave)}, {hex(sum(r << (4*k) for k, r in enumerate(roles)))}, {s(sWave)}")
    a(f"s_and_b32 {s(sWave)}, {s(sWave)}, 7")
    if ipre == 1:
        a(f"s_cmp_eq_u32 {s(sWave)}, 7")
        a("s_cbranch_scc0 L_nopf")
        a(f"s_getpc_b64 {sp(26)}")
        a.label("L_pc", flush=False)
        a(f"s_sub_u32 s26, s26, L_pc-{KN}"); a("s_subb_u32 s27, s27, 0")
        a(f"s_lshr_b32 {s(sT0)}, s2, 3"); a(f"s_lshl_b32 {s(sT0)}, {s(sT0)}, 9")
        a(f"v_lshl_add_u32 v5, {v(vLane)}, 3, {s(sT0)}")
        a(f"v_min_u32 v5, L_end-{KN}, v5")
        a(f"global_load_dword v7, v5, {sp(26)}")
        a.label("L_nopf")
    a(f"v_lshlrev_b32 {v(vL16)}, 4, {v(vLane)}")
    a(f"v_mov_b32 {v(vCT)}, {L_CT}")
    a(f"v_cmp_eq_u32 vcc, {C_G//4}, {v(vLane)}")
    a(f"v_mov_b32 v5, {G0}")
    a(f"v_lshl_add_u32 v6, {v(vLane)}, 2, {v(vCT)}")
    a(f"v_cndmask_b32 v5, 0, v5, vcc")
    a("ds_write_b32 v6, v5")
    a("s_waitcnt lgkmcnt(0)")
    a("s_barrier")
    a("s_branch L_notld")
    a.label("L_next")
    a(f"s_add_u32 {s(sT)}, {s(sT)}, 1")
    a(f"s_cmp_eq_u32 m0, {RS*SB}"); a("s_cselect_b32 m0, 0, m0")
    a(f"s_waitcnt lgkmcnt({1 if gfresh else 4})")
    a(f"v_readfirstlane_b32 {s(sGw)}, {v(vG)}")
    a(f"s_add_u32 {s(sEnd)}, m0, {SB}")
    a(f"s_add_u32 {s(sOff)}, {s(sOff)}, {GW*SB-SB}")
    a(f"s_and_b32 {s(sT0)}, {s(sT)}, 3")
    a.lines.append("    s_cbranch_scc0 L_addr")
    a.label("L_aj", flush=False)
    a(f"s_lshr_b32 {s(sT0)}, {s(sGw)}, 8")
    if not gfresh: a(f"ds_read_b32 {v(vG)}, {v(vCT)} offset:{C_G}")
    a(f"s_cmp_gt_u32 {s(sT0)}, {s(sT)}")
    a.lines.append("    s_cbranch_scc0 L_full")
    a(f"s_and_b32 {s(sN)}, {s(sGw)}, 255")
    a.hist = []
    def tree(lo, hi):
        if lo == hi:
            a(f"s_branch L_v{lo}"); return
        mid = (lo + hi + 1) // 2
        a(f"s_cmp_ge_i32 {s(sN)}, {mid}"); a(f"s_cbranch_scc1 L_t_{mid}_{hi}" if mid < hi else f"s_cbranch_scc1 L_v{hi}")
        tree(lo, mid - 1)
        if mid < hi:
            a.label(f"L_t_{mid}_{hi}")
            tree(mid, hi)
    tree(nmin, nmax)
    for n in range(nmin, nmax + 1):
        a.label(f"L_v{n}")
        for q in range(3):
            a(f"s_waitcnt vmcnt({n-1})")
            a(f"buffer_load_dwordx4 {v(vL16)}, {srd(sK)}, {s(sOff)} offen offset:{q*1024} nt lds")
            if gfresh and q == gfresh - 1: a(f"ds_read_b32 {v(vG)}, {v(vCT)} offset:{C_G}")
        a(f"v_subrev_u32 {v(vT)}, {n-3}, {v(vI)}")
        a("s_add_u32 m0, m0, 3072")
        a(f"ds_write_b32 {v(vCT)}, {v(vT)} offset:{C_LAND}")
        a(f"v_add_u32 {v(vI)}, 3, {v(vI)}")
        a(f"s_add_u32 {s(sOff)}, {s(sOff)}, 3072")
        a(f"s_cmp_lg_u32 m0, {s(sEnd)}")
        a.lines.append(f"    s_cbranch_scc1 L_v{n}")
        a.lines.append("    s_branch L_next")
    a.label("L_full")
    if gfresh: a(f"ds_read_b32 {v(vG)}, {v(vCT)} offset:{C_G}")
    a("s_waitcnt lgkmcnt(0)")
    a(f"v_readfirstlane_b32 {s(sGw)}, {v(vG)}")
    a("s_branch L_aj")
    a("; every 4th step: new head and/or new row range"); a.label("L_addr")
    a(f"s_cmp_lt_u32 {s(sT)}, 128")
    a("s_cbranch_scc0 L_av")
    a(f"s_lshr_b32 {s(sT0)}, {s(sT)}, {2+lg(HPG)}"); a(f"s_lshl_b32 {s(sT0)}, {s(sT0)}, 2")
    a(f"s_add_u32 {s(sT0)}, {s(sT0)}, {s(sRotK)}")
    a(f"s_bfe_u32 {s(sT1)}, {s(sT)}, {hex((lg(HPG) << 16) | 2)}")
    if serp:
        a(f"s_bitcmp1_b32 {s(sT)}, {2+lg(HPG)}"); a(f"s_cselect_b32 {s(sT2)}, {HPG-1}, 0"); a(f"s_xor_b32 {s(sT1)}, {s(sT1)}, {s(sT2)}")
    a("s_branch L_ak")
    a.label("L_av")
    a(f"s_cmp_eq_u32 {s(sT)}, {NST}")
    a("s_cbranch_scc1 L_drain")
    a(f"s_mov_b32 {s(sK)}, {s(pV)}"); a(f"s_mov_b32 {s(sK+1)}, {s(pV+1)}")
    a(f"s_add_u32 {s(sT0)}, {s(sT)}, {s(sRotV)}")
    a(f"s_bfe_u32 {s(sT1)}, {s(sT)}, {hex((lg(HPG) << 16) | lg(SPH))}")
    if REV: a(f"s_xor_b32 {s(sT1)}, {s(sT1)}, {HPG-1}")
    a.label("L_ak")
    a(f"s_and_b32 {s(sT0)}, {s(sT0)}, {SPH-1}")
    a(f"s_mul_i32 {s(sT0)}, {s(sT0)}, {GW*SB}"); a(f"s_mul_i32 {s(sT1)}, {s(sT1)}, {NG*HS}")
    a(f"s_add_u32 {s(sOff)}, {s(sT0)}, {s(sT1)}"); a(f"s_add_u32 {s(sOff)}, {s(sOff)}, {s(sBase)}")
    a("s_branch L_aj")
    a.label("L_drain")
    for k in ((36, 24, 12, 0) if nmax > 36 else (24, 12, 0)):
        a(f"v_mov_b32 {v(vT)}, {NST*12-k}")
        a(f"s_waitcnt vmcnt({k})")
        a(f"ds_write_b32 {v(vCT)}, {v(vT)} offset:{C_LAND}")
    a("s_endpgm")

    a.label("L_notld")
    a(f"s_cmp_gt_u32 {s(sWave)}, 4")
    a("s_cbranch_scc1 L_aux")
    sC, sS, sWS = 4, 8, 12
    sCo, sNeed, sLand, sSl, sN_, sQ_, sSel0, sSel1, sU, sPO, sE = 16, 17, 18, 19, 20, 21, 22, 23, 24, 25, 28
    sMsk = 32
    vRow, vRa, vScA, vXa, vKz, vPrg, vPa, vC, vS1, vQa, vX0, vSc0 = 5, 6, 7, 8, 9, 10, 11, 16, 17, 18, 19, 20
    vAc, vSW = 12, 14
    vY, vZ, vMask = 21, 22, 23
    vW, vD, vQ, vTm, vCur, vNxt = 24, 36, 48, 60, 72, 120
    NV = 168
    a("; ==== consumers ====")
    a(f"v_lshrrev_b32 {v(vY)}, 4, {v(vLane)}")
    a(f"v_and_b32 {v(vZ)}, 15, {v(vLane)}")
    a(f"v_mul_u32_u24 {v(vC)}, 384, {v(vY)}")
    a(f"v_lshl_add_u32 {v(vC)}, {v(vZ)}, 3, {v(vC)}")
    a(f"v_cmp_gt_u32 vcc, 8, {v(vZ)}")
    a(f"v_xor_b32 {v(vS1)}, 64, {v(vC)}")
    a(f"s_mul_i32 {s(sU)}, {s(sG)}, {rotK}"); a(f"s_and_b32 {s(sU)}, {s(sU)}, {SPH-1}")
    a(f"s_lshl_b32 {s(sT0)}, {s(sI)}, 2"); a(f"s_add_u32 {s(sT0)}, {s(sT0)}, {s(sWave)}"); a(f"s_mul_i32 {s(sT3)}, {s(sT0)}, 1536")
    a(f"s_mul_i32 {s(sCo)}, {s(sU)}, {GW*6144}"); a(f"s_add_u32 {s(sCo)}, {s(sCo)}, {s(sT3)}")
    a("s_waitcnt lgkmcnt(0)")
    mk(sC, pKC, CSB); mk(sS, pKSN, CSB)
    def issue_cs(dst):
        for i in range(3):
            a(f"buffer_load_dwordx2 {vp(dst+2*i)}, {v(vC)}, {srd(sC)}, {s(sCo)} offen offset:{128*i} {csf}")
            a(f"buffer_load_dwordx2 {vp(dst+6+2*i)}, {v(vS1)}, {srd(sS)}, {s(sCo)} offen offset:{128*i} {csf}")
        a(f"s_add_u32 {s(sCo)}, {s(sCo)}, {GW*6144}")
    def pack_cs(dst, src):
        for i in range(3):
            for e in range(2):
                a(f"v_cndmask_b32 {v(vW+2*i+e)}, {v(src+6+2*((i+2)%3)+e)}, {v(src+6+2*((i+1)%3)+e)}, vcc")
        for i in range(3):
            c0, s0 = src+2*i, vW+2*i
            a(f"v_perm_b32 {v(dst+4*i+0)}, {v(s0)}, {v(c0)}, {s(sSel0)}")
            a(f"v_perm_b32 {v(dst+4*i+1)}, {v(s0)}, {v(c0)}, {s(sSel1)}")
            a(f"v_perm_b32 {v(dst+4*i+2)}, {v(s0+1)}, {v(c0+1)}, {s(sSel0)}")
            a(f"v_perm_b32 {v(dst+4*i+3)}, {v(s0+1)}, {v(c0+1)}, {s(sSel1)}")
    ev(0)
    for k in range(csw): issue_cs(vNxt + 12*k)
    ev(1)
    mk(sWS, pWS, WSB)
    a(f"s_mov_b32 {s(sSel0)}, 0x05040100"); a(f"s_mov_b32 {s(sSel1)}, 0x07060302")
    a(f"s_lshl_b32 {s(sT0)}, {s(sWave)}, 2")
    a(f"v_add_u32 {v(vY)}, {s(sT0)}, {v(vY)}")
    a(f"v_mul_u32_u24 {v(vRow)}, 768, {v(vY)}"); a(f"v_lshl_add_u32 {v(vRow)}, {v(vZ)}, 4, {v(vRow)}")
    a(f"v_lshlrev_b32 {v(vX0)}, 3, {v(vY)}"); a(f"v_add_u32 {v(vX0)}, {L_X}, {v(vX0)}")
    a(f"v_lshlrev_b32 {v(vQa)}, 4, {v(vZ)}"); a(f"v_add_u32 {v(vQa)}, {L_QT}, {v(vQa)}")
    a(f"v_add_u32 {v(vPa)}, {s(sT0)}, {v(vCT)}")
    a(f"v_mov_b32 {v(vPrg)}, 0"); a(f"v_mov_b32 {v(vMask)}, 0xff")
    a(f"s_mul_i32 {s(sNeed)}, {s(sWave)}, 3"); a(f"s_add_u32 {s(sNeed)}, {s(sNeed)}, 3")
    a(f"s_mov_b32 {s(sLand)}, 0"); a(f"s_mov_b32 {s(sSl)}, 0"); a(f"s_mov_b32 {s(sN_)}, 0"); a(f"s_mov_b32 {s(sQ_)}, 0")
    for k in range(4):
        a(f"s_waitcnt vmcnt({6*(min(4, k+csw)-k-1)})")
        if k + csw < 4: issue_cs(vNxt + 12*(k+csw))
        pack_cs(vCur + 12*k, vNxt + 12*k)
    ev(2); evw(0, 4); evw(1, 5); evw(2, 6)
    def wait_data(lbl):
        a(f"s_cmp_ge_i32 {s(sLand)}, {s(sNeed)}")
        a(f"s_cbranch_scc1 {lbl}g")
        a.label(lbl)
        a(f"ds_read_b32 {v(vF)}, {v(vCT)} offset:{C_LAND}")
        a("s_waitcnt lgkmcnt(0)")
        a(f"v_readfirstlane_b32 {s(sLand)}, {v(vF)}")
        a(f"s_cmp_ge_i32 {s(sLand)}, {s(sNeed)}")
        a(f"s_cbranch_scc1 {lbl}g")
        if csleep: a(f"s_sleep {csleep}")
        a(f"s_branch {lbl}")
        a.label(lbl + "g")
    def next_slot():
        a(f"s_add_u32 {s(sSl)}, {s(sSl)}, {SB}"); a(f"s_cmp_eq_u32 {s(sSl)}, {RS*SB}"); a(f"s_cselect_b32 {s(sSl)}, 0, {s(sSl)}")
        a(f"s_add_u32 {s(sNeed)}, {s(sNeed)}, 12")
    a.label("L_kvisit")
    sCs = 26
    def cs_one(dst, k):
        i = k // 2
        if "nocs" in dbg: return
        if k % 2 == 0: a(f"buffer_load_dwordx2 {vp(dst+2*i)}, {v(vC)}, {srd(sC)}, {s(sCo)} offen offset:{128*i} {csf}")
        else: a(f"buffer_load_dwordx2 {vp(dst+6+2*i)}, {v(vS1)}, {srd(sS)}, {s(sCo)} offen offset:{128*i} {csf}")
    if NQ > 1 and csmode == 0:
        a(f"s_and_b32 {s(sT0)}, {s(sN_)}, {PD-1}")
        a(f"s_cselect_b32 {s(sT0)}, {NQ}, {s(sQ_)}")
        a(f"s_cmp_lt_u32 {s(sT0)}, {NQ-1}")
        a("s_cbranch_scc0 L_nocs")
        if rotK:
            a(f"s_cmp_ge_u32 {s(sCo)}, {CSB}"); a(f"s_cselect_b32 {s(sT0)}, {CSB}, 0"); a(f"s_sub_u32 {s(sCo)}, {s(sCo)}, {s(sT0)}")
        issue_cs(vTm)
        a.label("L_nocs")
    if NQ > 1 and csmode:
        assert PD == 2
        a(f"s_cmp_ge_u32 {s(sCo)}, {CSB}"); a(f"s_cselect_b32 {s(sT0)}, {CSB}, 0"); a(f"s_sub_u32 {s(sCo)}, {s(sCo)}, {s(sT0)}")
        if csmode == 1:
            a(f"s_and_b32 {s(sT0)}, {s(sN_)}, 1"); a(f"s_cselect_b32 {s(sCs)}, 9, {s(sWave)}")
        else:
            a(f"s_and_b32 {s(sCs)}, {s(sN_)}, 1")
        a(f"s_cmp_lt_u32 {s(sQ_)}, {NQ-1}"); a(f"s_cselect_b32 {s(sCs)}, {s(sCs)}, 9")
    if serp:
        a(f"s_bitcmp1_b32 {s(sQ_)}, 0"); a(f"s_cselect_b32 {s(sT2)}, {HPG-1}, 0"); a(f"s_xor_b32 {s(sT2)}, {s(sT2)}, {s(sN_)}")
    else:
        a(f"s_mov_b32 {s(sT2)}, {s(sN_)}")
    a(f"s_mul_i32 {s(sT0)}, {s(sT2)}, 768")
    a(f"v_add_u32 {v(vRa)}, {s(sT0)}, {v(vQa)}")
    a(f"s_lshl_b32 {s(sT0)}, {s(sT2)}, {lg(SPH)}"); a(f"s_add_u32 {s(sT0)}, {s(sT0)}, {s(sU)}")
    a(f"s_lshl_b32 {s(sT1)}, {s(sT0)}, 7"); a(f"v_add_u32 {v(vXa)}, {s(sT1)}, {v(vX0)}")
    a.label("L_qw")
    a(f"ds_read_b32 {v(vF)}, {v(vCT)} offset:{C_QRDY}")
    for i in range(3): a(f"ds_read_b128 {v4(vQ+4*i)}, {v(vRa)} offset:{256*i}")
    a("s_waitcnt lgkmcnt(0)")
    a(f"v_readfirstlane_b32 {s(sT0)}, {v(vF)}")
    a(f"s_cmp_gt_u32 {s(sT0)}, {s(sT2)}")
    a("s_cbranch_scc1 L_qwg")
    a("s_sleep 2")
    a("s_branch L_qw")
    a.label("L_qwg")
    for st in range(4):
        if NQ > 1 and csmode == 1:
            a(f"s_cmp_eq_u32 {s(sCs)}, {st}"); a(f"s_cbranch_scc0 L_nc{st}")
            issue_cs(vTm)
            a.label(f"L_nc{st}")
        if NQ > 1 and csmode == 2:
            a(f"s_cmp_eq_u32 {s(sCs)}, 0"); a(f"s_cbranch_scc0 L_nc{st}")
            cs_one(vTm, st)
            a.label(f"L_nc{st}")
            if st < 2:
                a(f"s_cmp_eq_u32 {s(sCs)}, 1"); a(f"s_cbranch_scc0 L_nd{st}")
                cs_one(vTm, 4+st)
                if st == 1: a(f"s_add_u32 {s(sCo)}, {s(sCo)}, {GW*6144}")
                a.label(f"L_nd{st}")
        for e in range(12):
            a(f"v_dot2_f32_bf16 {v(vW+e)}, {v(vCur+12*st+e)}, {v(vQ+e)}, 0")
        a(f"v_add_u32 {v(vRa)}, {s(sSl)}, {v(vRow)}")
        a(f"v_pk_add_f32 {vp(vSW)}, {vp(vW)}, {vp(vW+2)}")
        for e in range(4, 12, 2): a(f"v_pk_add_f32 {vp(vSW)}, {vp(vSW)}, {vp(vW+e)}")
        wait_data(f"L_kw{st}")
        for i in range(3): a(f"ds_read_b128 {v4(vD+4*i)}, {v(vRa)} offset:{256*i}")
        a(f"v_add_u32 {v(vPrg)}, 1, {v(vPrg)}")
        next_slot()
        for i in range(3):
            a(f"s_waitcnt lgkmcnt({2-i})")
            for e in range(4): a(f"v_cvt_f32_i32 {v(vD+4*i+e)}, {v(vD+4*i+e)}")
            if i == 0:
                a(f"v_pk_mul_f32 {vp(vAc)}, {vp(vD)}, {vp(vW)}")
            else:
                a(f"v_pk_fma_f32 {vp(vAc)}, {vp(vD+4*i)}, {vp(vW+4*i)}, {vp(vAc)}")
            a(f"v_pk_fma_f32 {vp(vAc)}, {vp(vD+4*i+2)}, {vp(vW+4*i+2)}, {vp(vAc)}")
        a(f"v_add_f32 {v(vAc)}, {v(vAc)}, {v(vAc+1)}")
        a(f"v_add_f32 {v(vAc+1)}, {v(vSW)}, {v(vSW+1)}")
        for m_ in ("quad_perm:[1,0,3,2]", "quad_perm:[2,3,0,1]", "row_half_mirror", "row_mirror"):
            for e in range(2): a(f"v_add_f32_dpp {v(vAc+e)}, {v(vAc+e)}, {v(vAc+e)} {m_} {DPP}")
        a(f"ds_write_b64 {v(vXa)}, {vp(vAc)} offset:{128*st}")
        a(f"ds_write_b32 {v(vPa)}, {v(vPrg)}")
    a(f"s_add_u32 {s(sN_)}, {s(sN_)}, 1")
    if NQ > 1:
        a(f"s_and_b32 {s(sT0)}, {s(sN_)}, {PD-1}")
        a("s_cbranch_scc1 L_kvisit")
        for e in range(0, 36, 2): a(f"v_mov_b64 {vp(vNxt+e)}, {vp(vNxt+12+e)}")
        a("s_waitcnt vmcnt(0)")
        pack_cs(vNxt + 36, vTm)
    a(f"s_cmp_lt_u32 {s(sN_)}, {HPG}")
    a("s_cbranch_scc1 L_kvisit")
    if NQ > 1:
        for e in range(0, 48, 2): a(f"v_mov_b64 {vp(vCur+e)}, {vp(vNxt+e)}")
        a(f"s_mov_b32 {s(sN_)}, 0")
        a(f"s_add_u32 {s(sU)}, {s(sU)}, 4"); a(f"s_and_b32 {s(sU)}, {s(sU)}, {SPH-1}")
        a(f"s_add_u32 {s(sQ_)}, {s(sQ_)}, 1")
        a(f"s_cmp_lt_u32 {s(sQ_)}, {NQ}")
        a("s_cbranch_scc1 L_kvisit")
    vAcc, vP, vSt, vRo = vW, vAc, vSW, vScA
    a(f"v_lshrrev_b32 {v(vY)}, 2, {v(vLane)}"); a(f"v_and_b32 {v(vZ)}, 3, {v(vLane)}")
    a(f"v_mul_u32_u24 {v(vRow)}, 768, {v(vY)}"); a(f"v_lshl_add_u32 {v(vRow)}, {v(vZ)}, 4, {v(vRow)}")
    a(f"s_mul_i32 {s(sT0)}, {s(sWave)}, 192"); a(f"v_add_u32 {v(vRow)}, {s(sT0)}, {v(vRow)}")
    a(f"v_lshlrev_b32 {v(vX0)}, 3, {v(vY)}"); a(f"v_add_u32 {v(vX0)}, {L_X}, {v(vX0)}")
    a(f"v_lshrrev_b32 {v(vY)}, 4, {v(vLane)}")
    if gm:
        a(f"v_lshl_add_u32 {v(vRo)}, {v(vY)}, 2, {v(vZ)}")
    else:
        a(f"v_lshl_add_u32 {v(vRo)}, {v(vZ)}, 2, {v(vY)}")
    a(f"v_and_b32 {v(vY)}, 1, {v(vRo)}"); a(f"v_lshlrev_b32 {v(vRo)}, 4, {v(vRo)}")
    a(f"s_lshl_b32 {s(sT0)}, {s(sWave)}, 8"); a(f"v_add_u32 {v(vRo)}, {s(sT0)}, {v(vRo)}")
    a(f"v_lshlrev_b32 {v(vQa)}, 3, {v(vY)}"); a(f"v_add_u32 {v(vQa)}, {L_ST}, {v(vQa)}")
    a(f"v_add_u32 {v(vC)}, {L_QS}, {v(vRo)}")
    a(f"s_mov_b32 {s(sMsk)}, 0x000f000f"); a(f"s_mov_b32 {s(sMsk+1)}, 0x000f000f")
    a(f"s_mov_b32 {s(sNeed)}, {129*12}")
    a(f"s_mul_i32 {s(sU)}, {s(sG)}, {rotV}"); a(f"s_and_b32 {s(sU)}, {s(sU)}, {SPH-1}")
    a(f"s_mov_b32 {s(sN_)}, 0")
    a(f"s_add_u32 {s(sPO)}, {s(sG)}, {(HPG-1)*NG*(1-REV)}"); a(f"s_mul_i32 {s(sPO)}, {s(sPO)}, {GW}"); a(f"s_add_u32 {s(sPO)}, {s(sPO)}, {s(sI)}")
    a(f"s_lshl_b32 {s(sPO)}, {s(sPO)}, 10")
    a.label("L_vhead")
    for e in range(0, 12, 2): a(f"v_mov_b64 {vp(vAcc+e)}, 0")
    a(f"s_mov_b32 {s(sQ_)}, 0")
    a.label("L_pw")
    a(f"ds_read_b64 {vp(vD)}, {v(vCT)} offset:{C_PRDY-4}")
    a(f"ds_read_b32 {v(vF)}, {v(vCT)} offset:{C_EPO}")
    a(f"ds_read_b64 {vp(vSt)}, {v(vQa)}")
    a("s_waitcnt lgkmcnt(0)")
    a(f"v_readfirstlane_b32 {s(sT0)}, {v(vD+1)}")
    a(f"v_readfirstlane_b32 {s(sE)}, {v(vF)}")
    a(f"s_cmp_gt_u32 {s(sT0)}, {s(sN_)}")
    a("s_cbranch_scc1 L_pwg")
    a("s_sleep 2")
    a("s_branch L_pw")
    a.label("L_pwg")
    a(f"s_lshr_b32 {s(sE+1)}, {s(sE)}, 8"); a(f"s_lshr_b32 {s(sE+2)}, {s(sE)}, 16")
    a.label("L_vstep")
    a(f"s_xor_b32 {s(sT0)}, {s(sN_)}, {(HPG-1)*REV}")
    a(f"s_lshl_b32 {s(sT0)}, {s(sT0)}, {lg(SPH)}"); a(f"s_add_u32 {s(sT0)}, {s(sT0)}, {s(sU)}"); a(f"s_lshl_b32 {s(sT0)}, {s(sT0)}, 7")
    a(f"v_add_u32 {v(vXa)}, {s(sT0)}, {v(vX0)}")
    a(f"v_add_u32 {v(vRa)}, {s(sSl)}, {v(vRow)}")
    a(f"ds_read_b32 {v(vP)}, {v(vXa)}")
    wait_data("L_vw")
    for i in range(3): a(f"ds_read_b128 {v4(vD+4*i)}, {v(vRa)} offset:{64*i}")
    a(f"v_add_u32 {v(vPrg)}, 1, {v(vPrg)}")
    next_slot()
    a(f"s_add_u32 {s(sU)}, {s(sU)}, 1"); a(f"s_and_b32 {s(sU)}, {s(sU)}, {SPH-1}")
    a(f"s_add_u32 {s(sQ_)}, {s(sQ_)}, 1")
    a(f"s_cmp_lt_u32 {s(sQ_)}, {SPH}")
    for i in range(3):
        a(f"s_waitcnt lgkmcnt({2-i})")
        for e in range(4): a(f"v_cvt_f32_i32 {v(vD+4*i+e)}, {v(vD+4*i+e)}")
        for e in (0, 2):
            a(f"v_pk_fma_f32 {vp(vAcc+4*i+e)}, {vp(vD+4*i+e)}, {vp(vP)}, {vp(vAcc+4*i+e)} op_sel_hi:[1,0,1]")
    a("s_cbranch_scc0 L_vend")
    a(f"ds_write_b32 {v(vPa)}, {v(vPrg)}")
    a("s_branch L_vstep")
    a("; head finished: reduce over the 16 rows, remove the zero-point term, tag"); a.label("L_vend")
    O = vD
    for i in range(3):
        r_ = vAcc + 4*i
        a(f"v_permlane32_swap_b32 {v(r_)}, {v(r_+2)}")
        a(f"v_permlane32_swap_b32 {v(r_+1)}, {v(r_+3)}")
    for i in range(3):
        r_ = vAcc + 4*i
        a(f"v_pk_add_f32 {vp(r_)}, {vp(r_)}, {vp(r_+2)}")
    for i in range(3):
        r_ = vAcc + 4*i
        a(f"v_permlane16_swap_b32 {v(r_)}, {v(r_+1)}")
    for i in range(3):
        r_ = vAcc + 4*i
        a(f"v_add_f32 {v(O+i)}, {v(r_)}, {v(r_+1)}")
    a(f"v_mov_b32 {v(O+3)}, {v(vSt)}")
    for rr in (4, 8):
        for i in range(3): a(f"v_add_f32_dpp {v(O+i)}, {v(O+i)}, {v(O+i)} row_ror:{rr} {DPP}")
    for i in range(3): a(f"v_sub_f32 {v(O+i)}, {v(O+i)}, {v(vSt+1)}")
    for i in range(3): a(f"v_bfi_b32 {v(O+i)}, {v(vMask)}, {s(sE+i)}, {v(O+i)}")
    a(f"s_add_u32 {s(sN_)}, {s(sN_)}, 1")
    a(f"s_cmp_eq_u32 {s(sN_)}, {HPG}")
    a(f"s_mov_b64 exec, {sp(sMsk)}")
    a("s_cbranch_scc1 L_vlast")
    a(f"ds_write_b128 {v(vC)}, {v4(O)}")
    a("s_mov_b64 exec, -1")
    a(f"ds_write_b32 {v(vPa)}, {v(vPrg)}")
    a(f"v_add_u32 {v(vC)}, 1024, {v(vC)}"); a(f"v_add_u32 {v(vQa)}, 16, {v(vQa)}")
    a("s_branch L_vhead")
    a.label("L_vlast")
    a(f"buffer_store_dwordx4 {v4(O)}, {v(vRo)}, {srd(sWS)}, {s(sPO)} offen {stf}")
    if stamp:
        a("s_mov_b64 exec, -1")
        a(f"s_memrealtime {sp(sT0)}"); a("s_waitcnt lgkmcnt(0)")
        a(f"v_mov_b32 {v(vF)}, {s(sT0)}"); a(f"ds_write_b32 {v(vPa)}, {v(vF)} offset:64")
        a(f"ds_write_b32 {v(vPa)}, {v(vPrg)}")
    a("s_endpgm")

    a.label("L_aux")
    a(f"s_cmp_eq_u32 {s(sWave)}, 5")
    a("s_cbranch_scc0 L_pacer")
    sA, sDB, sOUT, sB = 4, 8, 16, 20
    sE = 28
    sN_, sSpin, sPO, sMe, sHc, sBk = 24, 25, 26, 32, 34, 35
    vQo0, vQo1, vSg, vH0, vH1, vX, vY, vZ, vU, vMask, vA0, vA1 = 5, 6, 7, 8, 9, 10, 11, 12, 13, 14, 15, 16
    qr, t_ = 20, 32
    vSv, vQv, sSo = 17, 56, 27
    NQL = (HPG * 24 + 63) // 64
    a("; ==== helper ====")
    a(f"v_lshlrev_b32 {v(vQo0)}, 3, {v(vLane)}")
    a(f"v_cmp_gt_u32 vcc, 24, {v(vLane)}")
    a(f"v_mov_b32 {v(vU)}, 0xffffff40"); a(f"v_mov_b32 {v(vX)}, 192")
    a(f"v_cndmask_b32 {v(vU)}, {v(vU)}, {v(vX)}, vcc")
    a(f"v_add_u32 {v(vQo1)}, {v(vQo0)}, {v(vU)}")
    a(f"v_mov_b32 {v(vX)}, 0x80008000")
    a(f"v_cndmask_b32 {v(vSg)}, 0, {v(vX)}, vcc")
    hpi = 32 // SPH
    a(f"v_lshrrev_b32 {v(vX)}, 1, {v(vLane)}")
    a(f"v_and_b32 {v(vY)}, {SPH-1}, {v(vX)}"); a(f"v_lshrrev_b32 {v(vX)}, {lg(SPH)}, {v(vX)}")
    a(f"v_mul_u32_u24 {v(vX)}, {NG*32768}, {v(vX)}"); a(f"v_mul_u32_u24 {v(vY)}, {GW*32}, {v(vY)}"); a(f"v_add_u32 {v(vX)}, {v(vX)}, {v(vY)}")
    a(f"v_and_b32 {v(vY)}, 1, {v(vLane)}"); a(f"v_lshl_add_u32 {v(vSv)}, {v(vY)}, 4, {v(vX)}")
    for k in range(NQL):
        a(f"v_add_u32 {v(vX)}, {64*k}, {v(vLane)}")
        a(f"v_mul_u32_u24 {v(vZ)}, 2731, {v(vX)}"); a(f"v_lshrrev_b32 {v(vZ)}, 16, {v(vZ)}")
        a(f"v_mul_u32_u24 {v(vZ)}, {(NG-1)*384}, {v(vZ)}"); a(f"v_lshl_add_u32 {v(vQv+k)}, {v(vX)}, 4, {v(vZ)}")
    a(f"v_cmp_eq_u32 {sp(sMe)}, 0, {v(vY)}")
    a(f"s_lshl_b32 {s(sSo)}, {s(sG)}, 15"); a(f"s_lshl_b32 {s(sT0)}, {s(sI)}, 5"); a(f"s_add_u32 {s(sSo)}, {s(sSo)}, {s(sT0)}")
    a(f"s_mov_b32 m0, {L_QS}")
    a("s_waitcnt lgkmcnt(0)")
    mk(sA, pQC, 384); mk(sB, pQS, 384)
    a(f"buffer_load_dwordx2 {vp(qr+8)}, {v(vQo0)}, {srd(sA)}, 0 offen")
    a(f"buffer_load_dwordx2 {vp(qr+10)}, {v(vQo0)}, {srd(sB)}, 0 offen")
    mk(sA, pQ, 12288)
    a(f"s_mul_i32 {s(sT0)}, {s(sG)}, 384")
    for k in range(NQL):
        a(f"buffer_load_dwordx4 {v(vQv+k)}, {srd(sA)}, {s(sT0)} offen lds")
        a("s_add_u32 m0, m0, 1024")
    if scpre == 2:
        a("; this workgroup's share of the scale arrays is pulled on chip now; the own pieces are fetched later")
        a(f"s_lshl_b32 {s(sT0)}, s2, 12")
        n_ = 0
        for p in (pKS, pKZ, pVS, pVZ):
            mk(sB, p, 1 << 20)
            for k in range(4):
                if n_ >= spw: a(f"s_waitcnt vmcnt({spw-1})")
                a(f"buffer_load_dwordx4 {v4(64)}, {v(vL16)}, {srd(sB)}, {s(sT0)} offen offset:{1024*k} {scf}"); n_ += 1
    def sc_prefetch():
        a("; whole lines of the scale arrays (shared by 4 workgroups) are pulled on chip first")
        vPv = 62
        a(f"s_and_b32 {s(sT0)}, {s(sI)}, 3"); a(f"s_lshl_b32 {s(sT0)}, {s(sT0)}, 3")
        a(f"v_lshrrev_b32 {v(vX)}, 3, {v(vLane)}"); a(f"v_add_u32 {v(vX)}, {s(sT0)}, {v(vX)}")
        a(f"v_and_b32 {v(vY)}, {SPH-1}, {v(vX)}"); a(f"v_lshrrev_b32 {v(vX)}, {lg(SPH)}, {v(vX)}")
        a(f"v_mul_u32_u24 {v(vX)}, {NG*32768}, {v(vX)}"); a(f"v_mul_u32_u24 {v(vY)}, {GW*32}, {v(vY)}"); a(f"v_add_u32 {v(vX)}, {v(vX)}, {v(vY)}")
        a(f"v_and_b32 {v(vY)}, 7, {v(vLane)}"); a(f"v_lshl_add_u32 {v(vPv)}, {v(vY)}, 4, {v(vX)}")
        for p in (pKS, pKZ, pVS, pVZ):
            mk(sB, p, 1 << 20)
            a(f"s_andn2_b32 {s(sT0)}, {s(sSo)}, 127")
            for k in range(4):
                if spw < 16: a(f"s_waitcnt vmcnt({spw-1})")
                a(f"buffer_load_dwordx4 {v4(64)}, {v(vPv)}, {srd(sB)}, {s(sT0)} offen {spf}")
                a(f"s_add_u32 {s(sT0)}, {s(sT0)}, {hpi*NG*32768}")
    if scpre == 3 and splate is None: sc_prefetch()
    NPF = min(16, spw) if scpre >= 2 and splate is None else 0
    mk(sWS, pWS, WSB); mk(sDB, pDBG, 256); mk(sOUT, pOUT, 12288)
    a(f"v_mov_b32 {v(vMask)}, 0xff")
    def unpack(dst, src):
        a(f"v_lshlrev_b32 {v(dst)}, 16, {v(src)}"); a(f"v_and_b32 {v(dst+1)}, 0xffff0000, {v(src)}")
        a(f"v_lshlrev_b32 {v(dst+2)}, 16, {v(src+1)}"); a(f"v_and_b32 {v(dst+3)}, 0xffff0000, {v(src+1)}")
    cF, sF, aF, bF, rr = t_, t_+4, t_+8, t_+12, t_+16
    a(f"v_add_u32 {v(vA0)}, {L_QS}, {v(vQo0)}"); a(f"v_add_u32 {v(vA1)}, {L_QS}, {v(vQo1)}")
    a(f"v_lshlrev_b32 {v(vH0)}, 1, {v(vQo0)}"); a(f"v_lshlrev_b32 {v(vH1)}, 1, {v(vQo1)}")
    a(f"v_add_u32 {v(vH0)}, {L_QT}, {v(vH0)}"); a(f"v_add_u32 {v(vH1)}, {L_QT}, {v(vH1)}")
    a(f"v_mov_b32 {v(vZ)}, 0")
    a(f"s_mov_b32 {s(sN_)}, 0")
    a(f"s_waitcnt vmcnt({NQL+NPF})")
    a(f"v_xor_b32 {v(qr+10)}, {v(qr+10)}, {v(vSg)}"); a(f"v_xor_b32 {v(qr+11)}, {v(qr+11)}, {v(vSg)}")
    unpack(cF, qr+8); unpack(sF, qr+10)
    a(f"v_and_b32 {v(vSg)}, 0x80000000, {v(vSg)}")
    a(f"s_waitcnt vmcnt({NPF})")
    a("s_mov_b32 exec_hi, 0xffff")
    a("; rotated q (rounded like the reference), stored as (qr[d], +-qr[d+-96]) pairs"); a.label("L_hq")
    a(f"ds_read_b64 {vp(qr)}, {v(vA0)}"); a(f"ds_read_b64 {vp(qr+2)}, {v(vA1)}")
    a(f"v_add_u32 {v(vA0)}, 384, {v(vA0)}"); a(f"v_add_u32 {v(vA1)}, 384, {v(vA1)}")
    a(f"v_add_u32 {v(vZ)}, 1, {v(vZ)}")
    a("s_waitcnt lgkmcnt(0)")
    unpack(aF, qr); unpack(bF, qr+2)
    for e in range(0, 4, 2):
        a(f"v_pk_mul_f32 {vp(aF+e)}, {vp(aF+e)}, {vp(cF+e)}"); a(f"v_pk_mul_f32 {vp(bF+e)}, {vp(bF+e)}, {vp(sF+e)}")
    for e in range(4): a(f"v_cvt_pk_bf16_f32 {v(aF+e)}, {v(aF+e)}, {v(bF+e)}")
    for e in range(4):
        a(f"v_and_b32 {v(bF+e)}, 0xffff0000, {v(aF+e)}"); a(f"v_lshlrev_b32 {v(aF+e)}, 16, {v(aF+e)}")
    for e in range(0, 4, 2): a(f"v_pk_add_f32 {vp(aF+e)}, {vp(aF+e)}, {vp(bF+e)}")
    for e in range(4): a(f"v_cvt_pk_bf16_f32 {v(rr+e)}, {v(aF+e)}, {v(aF+e)}")
    for e in range(4): a(f"v_xor_b32 {v(rr+e)}, {v(rr+e)}, {v(vSg)}")
    for e in range(4):
        a(f"ds_write_b16 {v(vH0)}, {v(rr+e)} offset:{4*e}")
        a(f"ds_write_b16_d16_hi {v(vH1)}, {v(rr+e)} offset:{4*e+2}")
    a(f"ds_write_b32 {v(vCT)}, {v(vZ)} offset:{C_QRDY}")
    a(f"v_add_u32 {v(vH0)}, 768, {v(vH0)}"); a(f"v_add_u32 {v(vH1)}, 768, {v(vH1)}")
    a(f"s_add_u32 {s(sN_)}, {s(sN_)}, 1")
    a(f"s_cmp_lt_u32 {s(sN_)}, {HPG}")
    a("s_cbranch_scc1 L_hq")
    a("s_mov_b32 exec_hi, -1")
    ev(0); evw(0, 7)
    if scpre == 3 and splate is not None:
        lds_wait("L_spl", C_STEP, splate, sT0, 2)
        sc_prefetch()
    if wspre:
        a("; touch the slots of the partials that are handed over last, so that they are on chip by then (data unused)")
        nw = HPG if wspre < 3 else wspre - 2
        a(f"s_add_u32 {s(sT0)}, {s(sG)}, {0 if REV else (HPG-nw)*NG}")
        a(f"s_mul_i32 {s(sT0)}, {s(sT0)}, {GW}"); a(f"s_add_u32 {s(sT0)}, {s(sT0)}, {s(sI)}"); a(f"s_lshl_b32 {s(sT0)}, {s(sT0)}, 10")
        for k in range(nw):
            a(f"buffer_load_dwordx4 {v4(64)}, {v(vL16)}, {srd(sWS)}, {s(sT0)} offen {'sc0 sc1' if wspre == 2 else ''}")
            a(f"s_add_u32 {s(sT0)}, {s(sT0)}, {NG*GW*1024}")
    def epoch_code():
        a("; launch epoch, agreed through d_debug[0]: workgroup 0 proposes at once, the others look later")
        a(f"v_mov_b32 {v(vA0)}, 0")
        a(f"s_mov_b32 {s(sSpin)}, 0")
        a("s_cmp_eq_u32 s2, 0")
        a("s_cbranch_scc1 L_epc")
        lds_wait("L_epw", C_STEP, epk, sT0, 16)
        if eps_:
            a(f"s_load_dword {s(sE)}, {sp(pDBG)}, 0")
            a("s_waitcnt lgkmcnt(0)")
            a(f"s_cmp_lg_u32 {s(sE)}, 0")
            a("s_cbranch_scc1 L_epd")
        a.label("L_ep")
        a("s_mov_b64 exec, 1")
        a(f"buffer_load_dword {v(vY)}, {v(vA0)}, {srd(sDB)}, 0 offen sc0 sc1")
        a("s_waitcnt vmcnt(0)")
        a(f"v_readfirstlane_b32 {s(sE)}, {v(vY)}")
        a("s_mov_b64 exec, -1")
        a(f"s_cmp_lg_u32 {s(sE)}, 0")
        a("s_cbranch_scc1 L_epd")
        a("s_sleep 32")
        a(f"s_add_u32 {s(sSpin)}, {s(sSpin)}, 1")
        a(f"s_cmp_lt_u32 {s(sSpin)}, 8")
        a("s_cbranch_scc1 L_ep")
        a.label("L_epc")
        a(f"s_mul_i32 {s(sE)}, {s(sStart)}, 0x9e3779b1")
        a(f"s_lshr_b32 {s(sT1)}, {s(sE)}, 15"); a(f"s_xor_b32 {s(sE)}, {s(sE)}, {s(sT1)}")
        a(f"s_mul_i32 {s(sE)}, {s(sE)}, 0x85ebca6b")
        a(f"s_lshr_b32 {s(sT1)}, {s(sE)}, 13"); a(f"s_xor_b32 {s(sE)}, {s(sE)}, {s(sT1)}")
        a(f"s_max_u32 {s(sE)}, {s(sE)}, 1")
        a(f"v_mov_b32 {v(qr)}, {s(sE)}"); a(f"v_mov_b32 {v(qr+1)}, 0")
        a("s_mov_b64 exec, 1")
        a(f"buffer_atomic_cmpswap {vp(qr)}, {v(vA0)}, {srd(sDB)}, 0 offen sc0 sc1")
        a("s_waitcnt vmcnt(0)")
        a(f"v_readfirstlane_b32 {s(sT0)}, {v(qr)}")
        a("s_mov_b64 exec, -1")
        a(f"s_cmp_eq_u32 {s(sT0)}, 0"); a(f"s_cselect_b32 {s(sE)}, {s(sE)}, {s(sT0)}")
        a.label("L_epd")
        a(f"v_mov_b32 {v(vZ)}, {s(sE)}")
        a(f"ds_write_b32 {v(vCT)}, {v(vZ)} offset:{C_EPO}")
        a(f"s_lshr_b32 {s(sE+1)}, {s(sE)}, 8"); a(f"s_lshr_b32 {s(sE+2)}, {s(sE)}, 16"); a(f"s_lshr_b32 {s(sE+3)}, {s(sE)}, 24")
    def scale_code():
        a("; the own 32-byte pieces of the scale arrays trickle into LDS, in an order that differs between workgroups")
        assert sc0 + 16*sct + 4 < TX and scpre != 1
        a(f"s_add_u32 {s(sN_)}, {s(sG)}, {sc0}" if scph else f"s_mov_b32 {s(sN_)}, {sc0}")
        a(f"s_mov_b32 {s(sSpin)}, 0")
        mk(sB, pKS, 1 << 20)
        lds_wait("L_sc", C_STEP, s(sN_), sT0, 16 if sct > 1 else 1)
        if scrot:
            a(f"s_lshr_b32 {s(sT0)}, {s(sI)}, 2"); a(f"s_add_u32 {s(sT0)}, {s(sT0)}, {s(sSpin)}"); a(f"s_and_b32 {s(sT0)}, {s(sT0)}, 15")
        else:
            a(f"s_mov_b32 {s(sT0)}, {s(sSpin)}")
        if "samesc" in dbg: a(f"s_lshr_b32 {s(sT0)}, {s(sI)}, 2")
        a(f"s_lshl_b32 {s(sT1)}, {s(sT0)}, 10"); a(f"s_add_u32 m0, {s(sT1)}, {L_SC}")
        a(f"s_mov_b64 {sp(sB)}, {sp(pKS)}")
        for k, p in ((4, pKZ), (8, pVS), (12, pVZ)):
            a(f"s_cmp_ge_u32 {s(sT0)}, {k}"); a(f"s_cselect_b64 {sp(sB)}, {sp(p)}, {sp(sB)}")
        a(f"s_and_b32 {s(sT0)}, {s(sT0)}, 3"); a(f"s_mul_i32 {s(sT0)}, {s(sT0)}, {hpi*NG*32768}"); a(f"s_add_u32 {s(sT0)}, {s(sT0)}, {s(sSo)}")
        if "nosc" not in dbg: a(f"buffer_load_dwordx4 {v(vSv)}, {srd(sB)}, {s(sT0)} offen {scf} lds")
        a(f"s_add_u32 {s(sSpin)}, {s(sSpin)}, 1")
        a(f"s_add_u32 {s(sN_)}, {s(sN_)}, {sct}")
        a(f"s_cmp_lt_u32 {s(sSpin)}, 16")
        a("s_cbranch_scc1 L_sc")
        a("s_waitcnt vmcnt(0)")
    if sc0 < epk:
        scale_code(); epoch_code()
    else:
        epoch_code(); scale_code()
    vx, vks, vvs, vvz, vS4, vPg, vkz, vx2 = 20, 28, 36, 44, 52, 56, 64, 72
    CEXP = (192.0 ** -0.5) * math.log2(math.e)
    for e in list(range(vks, vS4)) + list(range(vkz, vkz+8)): a(f"v_mov_b32 {v(e)}, 0")
    a(f"v_lshlrev_b32 {v(vA0)}, 3, {v(vLane)}"); a(f"v_add_u32 {v(vA0)}, {L_X+REV*(HPG-1)*512*NG}, {v(vA0)}")
    a(f"v_lshlrev_b32 {v(vA1)}, 1, {v(vLane)}"); a(f"v_add_u32 {v(vA1)}, {L_SC+REV*(HPG-1)*128*NG}, {v(vA1)}")
    a(f"v_mov_b32 {v(vH0)}, {L_ST}"); a(f"v_mov_b32 {v(vH1)}, 0")
    a(f"s_mov_b32 {s(sN_)}, {TX+4}")
    def wait_cons(lbl, val, sleep):
        a.label(lbl)
        if sleep: a(f"s_sleep {sleep}")
        a(f"ds_read_b128 {v4(vPg)}, {v(vCT)}")
        a("s_waitcnt lgkmcnt(0)")
        a(f"v_min3_i32 {v(vPg)}, {v(vPg)}, {v(vPg+1)}, {v(vPg+2)}"); a(f"v_min_i32 {v(vPg)}, {v(vPg)}, {v(vPg+3)}")
        a(f"v_readfirstlane_b32 {s(sT0)}, {v(vPg)}")
        a(f"s_cmp_lt_i32 {s(sT0)}, {val}")
        a(f"s_cbranch_scc1 {lbl}")
    wait_cons("L_hp", s(sN_), hsleep)
    for k in range(NG):
        a(f"ds_read_b64 {vp(vx2+2*k)}, {v(vA0)} offset:{512*k}")
        a(f"ds_read_u16_d16_hi {v(vks+k)}, {v(vA1)} offset:{128*k}")
        a(f"ds_read_u16_d16_hi {v(vkz+k)}, {v(vA1)} offset:{4096+128*k}")
    a("s_waitcnt lgkmcnt(0)")
    for k in range(NG):
        a(f"ds_read_u16_d16_hi {v(vvs+k)}, {v(vA1)} offset:{8192+128*k}")
        a(f"ds_read_u16_d16_hi {v(vvz+k)}, {v(vA1)} offset:{12288+128*k}")
    for k in range(NG): a(f"v_fma_f32 {v(vx+k)}, -{v(vkz+k)}, {v(vx2+2*k+1)}, {v(vx2+2*k)}")
    for k in range(NG): a(f"v_mul_f32 {v(vx+k)}, {v(vx+k)}, {v(vks+k)}")
    for k in range(NG): a(f"v_mul_f32 {v(vx+k)}, {hex(f2u(CEXP))}, {v(vx+k)}")
    a(f"v_mov_b32 {v(vS4)}, {v(vx)}")
    for k in range(1, NG): a(f"v_max_f32 {v(vS4)}, {v(vS4)}, {v(vx+k)}")
    row_reduce("v_max_f32", vS4); xrows("v_max_f32", vS4, vU)
    for k in range(NG): a(f"v_sub_f32 {v(vx+k)}, {v(vx+k)}, {v(vS4)}")
    for k in range(NG): a(f"v_exp_f32 {v(vx+k)}, {v(vx+k)}")
    a(f"v_mov_b32 {v(vS4+2)}, {v(vx)}")
    for k in range(1, NG): a(f"v_add_f32 {v(vS4+2)}, {v(vS4+2)}, {v(vx+k)}")
    a("s_waitcnt lgkmcnt(0)")
    for k in range(NG): a(f"v_mul_f32 {v(vx+k)}, {v(vx+k)}, {v(vvs+k)}")
    a(f"v_mul_f32 {v(vS4+1)}, {v(vx)}, {v(vvz)}")
    for k in range(1, NG): a(f"v_fmac_f32 {v(vS4+1)}, {v(vx+k)}, {v(vvz+k)}")
    for k in range(NG): a(f"ds_write_b32 {v(vA0)}, {v(vx+k)} offset:{512*k}")
    row_reduce("v_add_f32", vS4+2); xrows("v_add_f32", vS4+2, vU)
    row_reduce("v_add_f32", vS4+1); xrows("v_add_f32", vS4+1, vU)
    a(f"v_bfi_b32 {v(vS4+2)}, {v(vMask)}, {s(sE+3)}, {v(vS4+2)}")
    a(f"v_mov_b32 {v(vS4+3)}, {v(vS4+1)}")
    a(f"v_add_u32 {v(vH1)}, 1, {v(vH1)}")
    a("s_mov_b64 exec, 1")
    a(f"ds_write_b128 {v(vH0)}, {v4(vS4)}")
    a(f"ds_write_b32 {v(vCT)}, {v(vH1)} offset:{C_PRDY}")
    a("s_mov_b64 exec, -1")
    a(f"v_add_u32 {v(vA0)}, {512*NG*(1-2*REV)}, {v(vA0)}"); a(f"v_add_u32 {v(vA1)}, {128*NG*(1-2*REV)}, {v(vA1)}"); a(f"v_add_u32 {v(vH0)}, 16, {v(vH0)}")
    a(f"s_add_u32 {s(sN_)}, {s(sN_)}, 4")
    a(f"s_cmp_le_u32 {s(sN_)}, 128")
    a("s_cbranch_scc1 L_hp")
    NLD = GW // 8
    vFo, vFl, vKk = 140, vA0, vA1
    vFd, vFt, vO2 = 44, 20, 40
    sPa, sOo, sDry, sPW_ = 36, 37, 38, 40
    assert vFd + 4*NLD*pp <= vFo and not dry and not xpoll and fm, "combine register budget"
    def comb_setup():
        a(f"s_lshr_b32 {s(sHc)}, s2, 3"); a(f"s_and_b32 {s(sBk)}, s2, 7")
        a(f"v_lshrrev_b32 {v(vX)}, 3, {v(vLane)}"); a(f"v_and_b32 {v(vKk)}, 7, {v(vLane)}")
        a(f"v_lshlrev_b32 {v(vX)}, 10, {v(vX)}"); a(f"v_lshl_add_u32 {v(vFl)}, {v(vKk)}, 4, {v(vX)}")
        if gm:
            a(f"v_lshrrev_b32 {v(vX)}, 2, {v(vKk)}"); a(f"v_and_b32 {v(vKk)}, 3, {v(vKk)}"); a(f"v_lshl_add_u32 {v(vKk)}, {v(vKk)}, 2, {v(vX)}")
        a(f"v_lshlrev_b32 {v(vKk)}, 1, {v(vKk)}")
        if fm:
            a(f"v_bfe_u32 {v(vX)}, {v(vLane)}, 4, 1"); a(f"v_lshl_add_u32 {v(vKk)}, {v(vX)}, 6, {v(vKk)}")
            a(f"v_lshrrev_b32 {v(vX)}, 5, {v(vLane)}"); a(f"v_lshl_add_u32 {v(vKk)}, {v(vX)}, 5, {v(vKk)}")
        a(f"s_mov_b32 {s(sSpin)}, 0"); a(f"s_mov_b32 {s(sDry)}, 0")
        a(f"s_mul_i32 {s(sPa)}, {s(sHc)}, {GW*1024}"); a(f"s_lshl_b32 {s(sT3)}, {s(sBk)}, 7"); a(f"s_add_u32 {s(sPa)}, {s(sPa)}, {s(sT3)}")
        a(f"s_mul_i32 {s(sOo)}, {s(sHc)}, 384")
        a(f"s_lshr_b32 {s(sT3)}, {s(sBk)}, 1"); a(f"s_mul_i32 {s(sT3)}, {s(sT3)}, 96"); a(f"s_add_u32 {s(sOo)}, {s(sOo)}, {s(sT3)}")
        a(f"s_and_b32 {s(sT3)}, {s(sBk)}, 1"); a(f"s_lshl_b32 {s(sT3)}, {s(sT3)}, {2 if gm else 4}"); a(f"s_add_u32 {s(sOo)}, {s(sOo)}, {s(sT3)}")
        mk(sPW_, pWS, WSB); mk(sOUT, pOUT, 12288)
    a(f"s_add_u32 {s(sPO)}, {s(sG)}, {(HPG-1)*NG*REV}"); a(f"s_mul_i32 {s(sPO)}, {s(sPO)}, {GW}"); a(f"s_add_u32 {s(sPO)}, {s(sPO)}, {s(sI)}"); a(f"s_lshl_b32 {s(sPO)}, {s(sPO)}, 10")
    comb_setup()
    if dry:
        a("; run the combine code once on an empty buffer, without storing, so that it is in the instruction cache later")
        a(f"s_mov_b32 {s(sDry)}, 1"); a(f"s_mov_b32 {s(sPW_+2)}, 0")
        a("s_branch L_try")
        a.label("L_dryret")
        a(f"s_mov_b32 {s(sDry)}, 0"); a(f"s_mov_b32 {s(sPW_+2)}, {WSB}")
    a(f"v_add_u32 {v(vU)}, {L_QS}, {v(vL16)}")
    wait_cons("L_hf", NST - SPH, 32)
    NFL = HPG - 1
    assert vFo + 4 * NFL <= NV
    for p_ in range(NFL): a(f"ds_read_b128 {v4(vFo+4*p_)}, {v(vU)} offset:{1024*p_}")
    lds_wait("L_hn", C_LAND, NST*12 - FL, sT0, 2)
    for p_ in range(NFL):
        a(f"buffer_store_dwordx4 {v4(vFo+4*p_)}, {v(vL16)}, {srd(sWS)}, {s(sPO)} offen {stf}")
        a(f"{'s_sub_u32' if REV else 's_add_u32'} {s(sPO)}, {s(sPO)}, {NG*GW*1024}")
    lds_wait("L_hl", C_LAND, NST*12, sT0, 1)
    def p_issue(B):
        a(f"s_mov_b32 {s(sT0)}, {s(sPa)}")
        for i in range(NLD):
            a(f"buffer_load_dwordx4 {v4(B+4*i)}, {v(vFl)}, {srd(sPW_)}, {s(sT0)} offen {ldf}")
            if i < NLD-1: a(f"s_add_u32 {s(sT0)}, {s(sT0)}, 8192")
    def p_check(B, younger, ok):
        for i in range(NLD):
            a(f"s_waitcnt vmcnt({younger+NLD-1-i})")
            for e in range(4):
                z = vU if e == 3 else vZ
                if i == 0 and e in (0, 3):
                    a(f"v_xor_b32 {v(z)}, {s(sE+e)}, {v(B+e)}")
                else:
                    a(f"v_bitop3_b32 {v(z)}, {v(z)}, {v(B+4*i+e)}, {s(sE+e)} bitop3:0xf6")
        a(f"v_cndmask_b32 {v(vU)}, {v(vU)}, 0, {sp(sMe)}")
        a(f"v_bitop3_b32 {v(vZ)}, {v(vZ)}, {v(vU)}, {v(vMask)} bitop3:0xa8")
        a(f"v_cmp_ne_u32 vcc, 0, {v(vZ)}")
        a(f"s_cbranch_vccz {ok}")
    def p_math(B):
        if stamp == 2: a("s_memrealtime s[88:89]")
        a(f"v_max_f32 {v(vY)}, {v(B+3)}, {v(B+7)}")
        for i in range(2, NLD, 2): a(f"v_max3_f32 {v(vY)}, {v(vY)}, {v(B+4*i+3)}, {v(B+4*i+7)}")
        a(f"v_max_f32_dpp {v(vY)}, {v(vY)}, {v(vY)} row_ror:8 {DPP}")
        xrows("v_max_f32", vY, vU)
        a(f"v_mov_b32_dpp {v(vY)}, {v(vY)} quad_perm:[0,0,2,2] {DPP}")
        for i in range(NLD): a(f"v_sub_f32_dpp {v(vFt+i)}, {v(B+4*i+3)}, {v(vY)} quad_perm:[0,0,2,2] {DPP}")
        for i in range(NLD): a(f"v_exp_f32 {v(vFt+i)}, {v(vFt+i)}")
        for i in range(NLD):
            sel = f"op_sel:[0,{i&1}" ; selh = f"op_sel_hi:[1,{i&1}"
            for h in range(2):
                if i == 0:
                    a(f"v_pk_mul_f32 {vp(vO2+2*h)}, {vp(B+2*h)}, {vp(vFt)} {sel}] {selh}]")
                else:
                    a(f"v_pk_fma_f32 {vp(vO2+2*h)}, {vp(B+4*i+2*h)}, {vp(vFt+(i&~1))}, {vp(vO2+2*h)} {sel},0] {selh},1]")
    SETS = [vFd + 4*NLD*k for k in range(pp)]
    if stamp == 2: a("s_memrealtime s[86:87]")
    if pp == 1:
        a.label("L_try")
        p_issue(SETS[0]); p_check(SETS[0], 0, "L_ok0")
        if psleep: a(f"s_sleep {psleep}")
    else:
        p_issue(SETS[0]); p_check(SETS[0], 0, "L_ok0")
        for k in range(pp-1):
            p_issue(SETS[k]); a(f"s_sleep {pstag}")
        a.label("L_try")
        for k in range(pp):
            p_issue(SETS[(k+pp-1) % pp]); p_check(SETS[k], NLD*(pp-1), f"L_ok{k}")
    a(f"s_add_u32 {s(sSpin)}, {s(sSpin)}, 1")
    a(f"s_cmp_lt_u32 {s(sSpin)}, 2000000")
    a("s_cbranch_scc1 L_try")
    for k in range(pp-1, -1, -1):
        a.label(f"L_ok{k}")
        p_math(SETS[k])
        if k: a("s_branch L_fin")
    a.label("L_fin")
    a(f"v_permlane32_swap_b32 {v(vO2)}, {v(vO2+1)}")
    a(f"v_permlane32_swap_b32 {v(vO2+2)}, {v(vO2+3)}")
    a(f"v_add_f32 {v(vO2)}, {v(vO2)}, {v(vO2+1)}")
    a(f"v_add_f32 {v(vO2+2)}, {v(vO2+2)}, {v(vO2+3)}")
    a(f"v_permlane16_swap_b32 {v(vO2)}, {v(vO2+2)}")
    a(f"v_add_f32 {v(vO2)}, {v(vO2)}, {v(vO2+2)}")
    a(f"v_add_f32_dpp {v(vO2)}, {v(vO2)}, {v(vO2)} row_ror:8 {DPP}")
    a(f"v_rcp_f32 {v(vX)}, {v(vO2)}")
    a(f"v_readlane_b32 {s(sT1)}, {v(vX)}, 49")
    a(f"v_mul_f32 {v(vO2)}, {s(sT1)}, {v(vO2)}")
    a(f"v_cvt_pk_bf16_f32 {v(vO2)}, {v(vO2)}, {v(vO2)}")
    a("s_mov_b32 exec_lo, 0x00ff00ff"); a("s_mov_b32 exec_hi, 0xff")
    a(f"buffer_store_short {v(vO2)}, {v(vKk)}, {srd(sOUT)}, {s(sOo)} offen {outf}")
    if stamp == 2: a("s_memrealtime s[90:91]")
    if xpoll: a.label("L_cend")
    if stamp:
        a("s_mov_b64 exec, -1")
        a("s_waitcnt vmcnt(0)")
        a(f"s_memrealtime {sp(sT2)}")
        if xpoll:
            a("s_waitcnt lgkmcnt(0)")
            a(f"v_mov_b32 {v(vX)}, {s(sT2)}"); a(f"v_mov_b32 {v(vY)}, 1"); a("s_mov_b64 exec, 1")
            a(f"ds_max_u32 {v(vCT)}, {v(vX)} offset:80"); a(f"ds_add_u32 {v(vCT)}, {v(vY)} offset:84"); a("s_mov_b64 exec, -1")
            a(f"s_cmp_eq_u32 {s(sWave)}, 5"); a("s_cbranch_scc0 L_end")
            a(f"s_cmp_lt_u32 s2, {NG*8}" if REV else f"s_cmp_ge_u32 s2, {256-NG*8}")
            a(f"s_cselect_b32 {s(sT1)}, {1+xpoll}, 1")
            lds_wait("L_sx", 84, s(sT1), sT0, 1)
            lds_wait("L_sy", 80, 0, sT2, 0, cmp="s_cmp_eq_u32")
        wait_cons("L_sw", NST, 1)
        a(f"v_add_u32 {v(vU)}, {L_TS}, {v(vL16)}")
        a(f"ds_read_b128 {v4(64)}, {v(vU)}"); a(f"ds_read_b128 {v4(68)}, {v(vU)} offset:1024")
        a(f"ds_read_b128 {v4(72)}, {v(vCT)} offset:64")
        a("s_waitcnt lgkmcnt(0)")
        a(f"v_max3_u32 {v(72)}, {v(72)}, {v(73)}, {v(74)}"); a(f"v_max_u32 {v(69)}, {v(72)}, {v(75)}")
        a(f"v_mov_b32 {v(70)}, {s(sT2)}")
        a(f"s_lshl_b32 {s(sT0)}, s2, 11"); a(f"s_add_u32 {s(sT0)}, {s(sT0)}, {STAMP_OFF+8192}")
        a(f"buffer_store_dwordx4 {v4(64)}, {v(vL16)}, {srd(sWS)}, {s(sT0)} offen")
        a("s_mov_b64 exec, 1")
        a(f"buffer_store_dwordx4 {v4(68)}, {v(vL16)}, {srd(sWS)}, {s(sT0)} offen offset:1024")
        if stamp == 3:
            a(f"ds_read_b128 {v4(80)}, {v(vCT)} offset:96"); a(f"ds_read_b128 {v4(84)}, {v(vCT)} offset:112"); a("s_waitcnt lgkmcnt(0)")
            a(f"buffer_store_dwordx4 {v4(80)}, {v(vL16)}, {srd(sWS)}, {s(sT0)} offen offset:1040")
            a(f"buffer_store_dwordx4 {v4(84)}, {v(vL16)}, {srd(sWS)}, {s(sT0)} offen offset:1056")
        if stamp == 2:
            a("v_mov_b32 v80, s86"); a("v_mov_b32 v81, s88"); a("v_mov_b32 v82, s90"); a(f"v_mov_b32 v83, {s(sSpin)}")
            a(f"buffer_store_dwordx4 {v4(80)}, {v(vL16)}, {srd(sWS)}, {s(sT0)} offen offset:1040")
        a(f"v_mov_b32 {v(76)}, {s(sStart)}"); a(f"v_mov_b32 {v(77)}, {s(sStart+1)}"); a(f"v_mov_b32 {v(78)}, {s(sT2)}"); a(f"v_mov_b32 {v(79)}, {s(sT3)}")
        if stampe is not None:
            a(f"v_mov_b32 v78, {L_TS+4*stampe}"); a("ds_read_b32 v78, v78"); a("s_waitcnt lgkmcnt(0)")
        a(f"s_lshl_b32 {s(sT0)}, s2, 4"); a(f"s_add_u32 {s(sT0)}, {s(sT0)}, {STAMP_OFF}")
        a(f"buffer_store_dwordx4 {v4(76)}, {v(vL16)}, {srd(sWS)}, {s(sT0)} offen")
    a("s_endpgm")

    sCp, sXo, sKc, sPrev, sOk, sPub, sTn = 16, 17, 18, 19, 20, 21, 22
    sPW = 24
    vLs, vOwn, vPb, vA, vB, vCc = 5, 6, 7, 8, 9, 10
    PG = 256 // npub
    TQ = int(round(tau0 * 100 * 4096 / 16 / 32))
    a("; ==== pacer ===="); a.label("L_pacer")
    a(f"s_cmp_eq_u32 {s(sWave)}, 6")
    a("s_cbranch_scc0 L_exch")
    sKk, sThr, sW, sDith, sN, sLm, sNow = 4, 5, 6, 7, 8, 9, 10
    sL0, sLn, sW0, sWn, sSl, sIx, sLf, sIf, sN0 = 12, 13, 14, 15, 16, 17, 18, 19, 20
    vPr, vRef, vTs, vT, vOl, vVs, vSlp, vNr = 8, 12, 14, 15, 16, 17, 18, 19
    if warp == 0: SEG = [(128,)*4, (128,)*4]
    if warp == 1: SEG = [(24,20,20,20), (16,24,24,24), (48,40,40,40), (16,20,24,24), (24,24,20,20), (32,44,48,48), (96,84,80,80)]
    if warp == 2: SEG = [(128,)*4, (32,44,48,48), (96,84,80,80)]
    if warp == 3: SEG = [(24,20,20,20), (16,24,24,24), (48,40,40,40), (16,20,24,24), (24,24,20,20), (32,44,48,48), (48,36,40,48), (48,48,40,32)]
    assert all(sum(x[g] for x in SEG) == NST for g in range(4)) and NG == 4 and (warp == 0 or (rotK == 4 and rotV == 4 and serp))
    a(f"v_mov_b32 {v(vOl)}, -1")
    for k, x in enumerate(SEG):
        a(f"s_mov_b32 {s(sT0)}, {hex(sum(x[g] << (8*g) for g in range(4)))}"); a(f"v_writelane_b32 {v(vOl)}, {s(sT0)}, {k}")
    a(f"s_lshl_b32 {s(sT0)}, {s(sG)}, 3")
    a(f"v_sad_u8 {v(vVs)}, {v(vOl)}, 0, 0")
    a(f"v_bfe_u32 {v(vOl)}, {v(vOl)}, {s(sT0)}, 8")
    a(f"v_cvt_f32_u32 {v(vT)}, {v(vVs)}"); a(f"v_cvt_f32_u32 {v(vF)}, {v(vOl)}")
    a(f"v_rcp_f32 {v(vSlp)}, {v(vF)}"); a(f"v_rcp_f32 {v(vNr)}, {v(vT)}")
    a(f"v_mul_f32 {v(vT)}, {hex(f2u(65536*8/12))}, {v(vT)}"); a(f"v_mul_f32 {v(vF)}, {hex(f2u(n0*256*4))}, {v(vF)}")
    a(f"v_mul_f32 {v(vSlp)}, {v(vSlp)}, {v(vT)}"); a(f"v_mul_f32 {v(vNr)}, {v(vNr)}, {v(vF)}")
    a(f"v_cvt_u32_f32 {v(vSlp)}, {v(vSlp)}"); a(f"v_cvt_u32_f32 {v(vNr)}, {v(vNr)}")
    a(f"v_mul_u32_u24 {v(vOl)}, 12, {v(vOl)}"); a(f"v_lshlrev_b32 {v(vVs)}, 3, {v(vVs)}")
    for r in (sKk, sLm, sLn, sWn, sIx, sLf, sIf): a(f"s_mov_b32 {s(r)}, 0")
    a(f"s_mov_b32 {s(sThr)}, 32"); a(f"s_mov_b32 {s(sDith)}, 128")
    a(f"v_mov_b32 {v(vTs)}, {L_TS}")
    a(f"s_lshl_b32 {s(sT0)}, {s(sStart)}, 12")
    a(f"s_add_u32 {s(sT0)}, {s(sT0)}, {int(round(t1*100*4096))}")
    a(f"v_mov_b32 {v(vRef)}, {s(sT0)}"); a(f"v_mov_b32 {v(vRef+1)}, {TQ}")
    a(f"ds_write_b64 {v(vCT)}, {vp(vRef)} offset:{C_REF}")
    a(f"v_mov_b32 {v(vT)}, {s(sStart)}"); a(f"ds_write_b32 {v(vTs)}, {v(vT)}")
    a.label("L_g")
    if gsleep: a(f"s_sleep {gsleep}")
    a(f"ds_read_b32 {v(vF)}, {v(vCT)} offset:{C_LAND}")
    a(f"s_memrealtime {sp(sNow)}")
    a(f"ds_read_b128 {v4(vPr)}, {v(vCT)}")
    a(f"ds_read_b64 {vp(vRef)}, {v(vCT)} offset:{C_REF}")
    a("s_waitcnt lgkmcnt(0)")
    a(f"v_readfirstlane_b32 {s(sT3)}, {v(vF)}")
    a(f"v_min3_i32 {v(vT)}, {v(vPr)}, {v(vPr+1)}, {v(vPr+2)}"); a(f"v_min_i32 {v(vPr)}, {v(vT)}, {v(vPr+3)}")
    a(f"v_readfirstlane_b32 {s(sT0)}, {v(vRef)}"); a(f"v_readfirstlane_b32 {s(sT1)}, {v(vRef+1)}")
    a(f"s_max_i32 {s(sLm)}, {s(sLm)}, {s(sT3)}")
    a(f"s_cmp_ge_u32 {s(sLm)}, {s(sLn)}")
    a("s_cbranch_scc0 L_gs")
    a(f"s_mov_b32 {s(sL0)}, {s(sLn)}"); a(f"s_mov_b32 {s(sW0)}, {s(sWn)}")
    a(f"v_readlane_b32 {s(sT2)}, {v(vOl)}, {s(sIx)}"); a(f"v_readlane_b32 {s(sT3)}, {v(vVs)}, {s(sIx)}"); a(f"v_readlane_b32 {s(sSl)}, {v(vSlp)}, {s(sIx)}")
    a(f"s_add_u32 {s(sIx)}, {s(sIx)}, 1")
    a(f"s_add_u32 {s(sLn)}, {s(sLn)}, {s(sT2)}"); a(f"s_add_u32 {s(sWn)}, {s(sWn)}, {s(sT3)}")
    a.label("L_gs")
    a(f"s_add_u32 {s(sT2)}, {s(sLm)}, {lead}")
    a(f"s_cmp_ge_u32 {s(sT2)}, {s(sLf)}")
    a("s_cbranch_scc0 L_gf")
    a(f"v_readlane_b32 {s(sT2)}, {v(vOl)}, {s(sIf)}"); a(f"v_readlane_b32 {s(sN0)}, {v(vNr)}, {s(sIf)}")
    a(f"s_add_u32 {s(sIf)}, {s(sIf)}, 1")
    a(f"s_add_u32 {s(sLf)}, {s(sLf)}, {s(sT2)}")
    a.label("L_gf")
    a(f"s_sub_u32 {s(sW)}, {s(sLm)}, {s(sL0)}"); a(f"s_mul_i32 {s(sW)}, {s(sW)}, {s(sSl)}"); a(f"s_lshr_b32 {s(sW)}, {s(sW)}, 16"); a(f"s_add_u32 {s(sW)}, {s(sW)}, {s(sW0)}")
    a(f"s_cmp_ge_u32 {s(sW)}, {s(sThr)}")
    a("s_cbranch_scc0 L_gn")
    a(f"s_add_u32 {s(sKk)}, {s(sKk)}, 1"); a(f"s_add_u32 {s(sThr)}, {s(sThr)}, 32")
    a(f"v_add_u32 {v(vTs)}, 4, {v(vTs)}"); a(f"v_mov_b32 {v(vT)}, {s(sNow)}"); a(f"ds_write_b32 {v(vTs)}, {v(vT)}")
    a(f"v_mov_b32 {v(vT)}, {s(sKk)}"); a(f"ds_write_b32 {v(vCT)}, {v(vT)} offset:{C_STEP}")
    a("; window = n0 * share + kp * (now - reference time for the loads that have landed)"); a.label("L_gn")
    a(f"s_mul_i32 {s(sT1)}, {s(sT1)}, {s(sW)}"); a(f"s_add_u32 {s(sT0)}, {s(sT0)}, {s(sT1)}")
    a(f"s_lshl_b32 {s(sT1)}, {s(sNow)}, 12"); a(f"s_sub_u32 {s(sT0)}, {s(sT1)}, {s(sT0)}")
    a(f"s_ashr_i32 {s(sT0)}, {s(sT0)}, 6")
    a(f"s_min_i32 {s(sT0)}, {s(sT0)}, 0x40000"); a(f"s_max_i32 {s(sT0)}, {s(sT0)}, {hex((-0x40000) & 0xffffffff)}")
    a(f"s_mul_i32 {s(sT0)}, {s(sT0)}, {int(round(kp*163.84)) if ctl else 0}"); a(f"s_ashr_i32 {s(sT0)}, {s(sT0)}, 12")
    a(f"s_and_b32 {s(sDith)}, {s(sDith)}, 255"); a(f"s_add_u32 {s(sDith)}, {s(sDith)}, {s(sT0)}"); a(f"s_add_u32 {s(sDith)}, {s(sDith)}, {s(sN0)}")
    a(f"s_ashr_i32 {s(sN)}, {s(sDith)}, 8")
    a(f"s_min_i32 {s(sN)}, {s(sN)}, {nmax}"); a(f"s_max_i32 {s(sN)}, {s(sN)}, {nmin}")
    a(f"s_cmp_lt_u32 {s(sKk)}, {kstart}"); a(f"s_cselect_b32 {s(sN)}, {nstart}, {s(sN)}")
    a(f"s_add_u32 {s(sT0)}, {s(sN)}, {RS << 8}")
    a(f"v_lshl_add_u32 {v(vT)}, {v(vPr)}, 8, {s(sT0)}")
    a(f"ds_write_b32 {v(vCT)}, {v(vT)} offset:{C_G}")
    a(f"s_cmp_lt_u32 {s(sKk)}, {NST}")
    a("s_cbranch_scc1 L_g")
    if xpoll:
        a("; idle waves of the workgroups that combine the heads finished last poll as well"); a.label("L_xpoll")
        a(f"s_cmp_lt_u32 s2, {NG*8}" if REV else f"s_cmp_ge_u32 s2, {256-NG*8}")
        a("s_cbranch_scc0 L_end")
        comb_setup()
        a(f"v_and_b32 {v(vY)}, 1, {v(vLane)}"); a(f"v_cmp_eq_u32 {sp(sMe)}, 0, {v(vY)}")
        lds_wait("L_xe", C_EPO, 0, sE, 0, cmp="s_cmp_eq_u32")
        a(f"s_lshr_b32 {s(sE+1)}, {s(sE)}, 8"); a(f"s_lshr_b32 {s(sE+2)}, {s(sE)}, 16"); a(f"s_lshr_b32 {s(sE+3)}, {s(sE)}, 24")
        lds_wait("L_xl", C_LAND, NST*12, sT0, 3)
        a("s_branch L_try")
    a("s_endpgm")
    a("; ==== exchange of progress stamps ===="); a.label("L_exch")
    if not ctl:
        a("s_endpgm")
    mk(sWS, pWS, WSB)
    a(f"s_mov_b32 {s(sT0)}, {LSTR}"); a(f"v_mul_lo_u32 {v(vLs)}, {v(vLane)}, {s(sT0)}")
    a(f"s_lshr_b32 {s(sT0)}, s2, 3"); a(f"s_mul_i32 {s(sPub)}, {s(sX)}, 5"); a(f"s_add_u32 {s(sPub)}, {s(sPub)}, {s(sT0)}")
    a(f"s_and_b32 {s(sPub)}, {s(sPub)}, {PG-1}"); a(f"s_lshr_b32 {s(sT0)}, {s(sT0)}, {lg(PG)}")
    a(f"s_lshl_b32 {s(sT0)}, {s(sT0)}, 3"); a(f"s_add_u32 {s(sT0)}, {s(sT0)}, {s(sX)}"); a(f"s_mul_i32 {s(sT0)}, {s(sT0)}, {LSTR}")
    a("s_waitcnt vmcnt(0)")
    a(f"v_mov_b32 {v(vPb)}, {s(sT0)}")
    a(f"s_mov_b32 {s(sCp)}, 0"); a(f"s_mov_b32 {s(sXo)}, {X_OFF}"); a(f"s_mov_b32 {s(sKc)}, {k0}"); a(f"s_mov_b32 {s(sOk)}, 0")
    a(f"s_mov_b32 {s(sPrev)}, 0"); a(f"s_mov_b32 {s(sPW)}, 0")
    a.label("L_pc0")
    lds_wait("L_pw1", C_STEP, s(sKc), sT0, hsleep)
    a(f"s_lshl_b32 {s(sT0)}, {s(sKc)}, 2"); a(f"s_add_u32 {s(sT0)}, {s(sT0)}, {L_TS}"); a(f"v_mov_b32 {v(vA)}, {s(sT0)}")
    a(f"ds_read_b32 {v(vOwn)}, {v(vA)}"); a("s_waitcnt lgkmcnt(0)")
    a(f"s_and_b32 {s(sT0)}, {s(sCp)}, {PG-1}"); a(f"s_cmp_eq_u32 {s(sT0)}, {s(sPub)}"); a("s_cbranch_scc0 L_np")
    a("s_mov_b64 exec, 1")
    a(f"buffer_store_dword {v(vOwn)}, {v(vPb)}, {srd(sWS)}, {s(sXo)} offen sc0 sc1")
    a("s_mov_b64 exec, -1")
    a.label("L_np")
    if xm == 1:
        sJ, sOwn, sSum, sCnt, sMx, sBp = 32, 26, 27, 28, 29, 30
        a(f"s_add_u32 {s(sT1)}, {s(sKc)}, {D1}")
        lds_wait("L_pw2", C_STEP, s(sT1), sT0, hsleep)
        a(f"s_add_u32 {s(sBp)}, {s(pWS)}, {s(sXo)}"); a(f"s_addc_u32 {s(sBp+1)}, {s(pWS+1)}, 0")
        for j in range(npub): a(f"s_load_dword {s(sJ+j)}, {sp(sBp)}, {j*LSTR}")
        a(f"s_memrealtime {sp(sTn)}")
        a(f"v_readfirstlane_b32 {s(sOwn)}, {v(vOwn)}")
        a(f"s_mov_b32 {s(sSum)}, 0"); a(f"s_mov_b32 {s(sCnt)}, 0"); a(f"s_mov_b32 {s(sMx)}, -4096")
        a("s_waitcnt lgkmcnt(0)")
        a(f"s_sub_u32 {s(sT3)}, {s(sTn)}, {s(sOwn)}")
        for j in range(npub):
            a(f"s_sub_u32 {s(sT0)}, {s(sJ+j)}, {s(sOwn)}"); a(f"s_add_u32 {s(sT1)}, {s(sT0)}, 4096"); a(f"s_cmp_lt_u32 {s(sT1)}, 0x2000")
            a(f"s_cselect_b32 {s(sT0)}, {s(sT0)}, {s(sT3)}"); a(f"s_addc_u32 {s(sCnt)}, {s(sCnt)}, 0"); a(f"s_add_u32 {s(sSum)}, {s(sSum)}, {s(sT0)}")
            if alpha: a(f"s_max_i32 {s(sMx)}, {s(sMx)}, {s(sT0)}")
        a(f"s_cmp_lt_u32 {s(sCnt)}, {npub//2}"); a("s_cbranch_scc1 L_pskip")
        a(f"s_mul_i32 {s(sSum)}, {s(sSum)}, {int(round((1-alpha)*4096/npub))}")
        a(f"s_lshl_b32 {s(sT0)}, {s(sOwn)}, 12"); a(f"s_add_u32 {s(sT0)}, {s(sT0)}, {s(sSum)}")
        if alpha:
            a(f"s_mul_i32 {s(sMx)}, {s(sMx)}, {int(round(alpha*4096))}"); a(f"s_add_u32 {s(sT0)}, {s(sT0)}, {s(sMx)}")
    else:
        a(f"s_mul_i32 {s(sT0)}, {s(sCp)}, 37"); a(f"s_add_u32 {s(sT0)}, {s(sT0)}, 5"); a(f"s_and_b32 {s(sT0)}, {s(sT0)}, 255")
        a(f"s_cmp_eq_u32 {s(sT0)}, s2"); a("s_cbranch_scc0 L_nagg")
        a(f"s_add_u32 {s(sT1)}, {s(sKc)}, {D1}")
        lds_wait("L_pw2", C_STEP, s(sT1), sT0, hsleep)
        if npub < 64: a(f"s_mov_b64 exec, {hex((1 << npub) - 1)}")
        a(f"buffer_load_dword {v(vA)}, {v(vLs)}, {srd(sWS)}, {s(sXo)} offen sc0 sc1")
        a(f"s_memrealtime {sp(sTn)}")
        a("s_waitcnt vmcnt(0) lgkmcnt(0)")
        a(f"v_sub_u32 {v(vA)}, {v(vA)}, {v(vOwn)}")
        a(f"v_sub_u32 {v(vB)}, {s(sTn)}, {v(vOwn)}")
        a(f"v_add_u32 {v(vCc)}, 4096, {v(vA)}")
        a(f"v_cmp_gt_u32 vcc, 0x2000, {v(vCc)}")
        a(f"v_cndmask_b32 {v(vA)}, {v(vB)}, {v(vA)}, vcc")
        a(f"s_bcnt1_i32_b64 {s(sT2)}, vcc")
        row_reduce("v_add_u32", vA)
        a("s_mov_b64 exec, -1")
        a(f"v_readlane_b32 {s(sT0)}, {v(vA)}, 0")
        for r in range(1, npub // 16):
            a(f"v_readlane_b32 {s(sT1)}, {v(vA)}, {16*r}"); a(f"s_add_u32 {s(sT0)}, {s(sT0)}, {s(sT1)}")
        a(f"s_cmp_lt_u32 {s(sT2)}, {npub//2}"); a("s_cbranch_scc1 L_nagg")
        a(f"s_mul_i32 {s(sT0)}, {s(sT0)}, {4096//npub}")
        a(f"v_lshl_add_u32 {v(vA)}, {v(vOwn)}, 12, {s(sT0)}"); a(f"v_not_b32 {v(vB)}, {v(vA)}")
        a(f"s_add_u32 {s(sT0)}, {s(sXo)}, {R_OFF-X_OFF}")
        a("s_mov_b64 exec, 0xff")
        a(f"buffer_store_dwordx2 {vp(vA)}, {v(vLs)}, {srd(sWS)}, {s(sT0)} offen sc0 sc1")
        a("s_mov_b64 exec, -1")
        a.label("L_nagg")
        a(f"s_add_u32 {s(sT1)}, {s(sKc)}, {D2}")
        lds_wait("L_pw3", C_STEP, s(sT1), sT0, hsleep)
        a(f"s_mul_i32 {s(sT0)}, {s(sX)}, {LSTR}"); a(f"s_add_u32 {s(sT0)}, {s(sT0)}, {s(sXo)}"); a(f"s_add_u32 {s(sT0)}, {s(sT0)}, {R_OFF-X_OFF}")
        a("s_mov_b64 exec, 1")
        a(f"buffer_load_dwordx2 {vp(vA)}, {v(vLs)}, {srd(sWS)}, {s(sT0)} offen sc0 sc1")
        a("s_waitcnt vmcnt(0)")
        a(f"v_readfirstlane_b32 {s(sT0)}, {v(vA)}"); a(f"v_readfirstlane_b32 {s(sT1)}, {v(vB)}"); a(f"v_readfirstlane_b32 {s(sT2)}, {v(vOwn)}")
        a("s_mov_b64 exec, -1")
        a(f"s_xor_b32 {s(sT1)}, {s(sT1)}, {s(sT0)}"); a(f"s_cmp_eq_u32 {s(sT1)}, -1"); a("s_cbranch_scc0 L_pskip")
        a(f"s_lshl_b32 {s(sT2)}, {s(sT2)}, 12"); a(f"s_sub_u32 {s(sT2)}, {s(sT2)}, {s(sT0)}"); a(f"s_add_u32 {s(sT2)}, {s(sT2)}, 0x1000000")
        a(f"s_cmp_lt_u32 {s(sT2)}, 0x2000000"); a("s_cbranch_scc0 L_pskip")
    a(f"s_min_u32 {s(sT2)}, {s(sKc)}, {TX if wext else 0}"); a(f"s_lshl_b32 {s(sT3)}, {s(sKc)}, 5"); a(f"s_add_u32 {s(sT2)}, {s(sT2)}, {s(sT3)}")
    a(f"s_sub_u32 {s(sT1)}, {s(sT0)}, {s(sPrev)}"); a(f"s_sub_u32 {s(sT3)}, {s(sT2)}, {s(sPW)}")
    a(f"v_cvt_f32_u32 {v(vA)}, {s(sT1)}"); a(f"v_cvt_f32_u32 {v(vB)}, {s(sT3)}")
    a(f"v_rcp_f32 {v(vB)}, {v(vB)}")
    a(f"v_mul_f32 {v(vA)}, {hex(f2u(1.0-eps))}, {v(vA)}")
    a(f"v_mul_f32 {v(vA)}, {v(vA)}, {v(vB)}")
    if tlo:
        a(f"v_mul_f32 {v(vB)}, {hex(f2u(1.0-tlo))}, {v(vA)}"); a(f"v_mov_b32 {v(vCc)}, {hex(f2u(float(TQ)))}")
        a(f"v_mul_f32 {v(vA)}, {hex(f2u(1.0+thi))}, {v(vA)}")
        a(f"v_med3_f32 {v(vA)}, {v(vA)}, {v(vB)}, {v(vCc)}")
    a(f"v_cvt_u32_f32 {v(vA)}, {v(vA)}")
    a(f"v_readfirstlane_b32 {s(sT1)}, {v(vA)}")
    a(f"s_mov_b32 {s(sPrev)}, {s(sT0)}"); a(f"s_mov_b32 {s(sPW)}, {s(sT2)}")
    a(f"s_cmp_eq_u32 {s(sOk)}, 0"); a(f"s_cselect_b32 {s(sT1)}, {TQ}, {s(sT1)}"); a(f"s_mov_b32 {s(sOk)}, 1")
    a(f"s_mul_i32 {s(sT2)}, {s(sT2)}, {s(sT1)}"); a(f"s_sub_u32 {s(sT0)}, {s(sT0)}, {s(sT2)}")
    a(f"v_mov_b32 {v(vA)}, {s(sT0)}"); a(f"v_mov_b32 {v(vB)}, {s(sT1)}")
    a(f"ds_write_b64 {v(vCT)}, {vp(vA)} offset:{C_REF}")
    a.label("L_pskip")
    a(f"s_add_u32 {s(sCp)}, {s(sCp)}, 1"); a(f"s_add_u32 {s(sXo)}, {s(sXo)}, {npub*LSTR}"); a(f"s_add_u32 {s(sKc)}, {s(sKc)}, {C}")
    a(f"s_cmp_lt_u32 {s(sKc)}, {NST-(D1 if xm else D2)-2}"); a("s_cbranch_scc1 L_pc0")
    if xpoll >= 2: a("s_branch L_xpoll")
    a.label("L_end")
    a("s_endpgm")
    a.raw('.section .rodata,"a"')
    a.raw(".p2align 6"); a.raw(f".amdhsa_kernel {KN}")
    a.raw(f"  .amdhsa_next_free_vgpr {NV}"); a.raw("  .amdhsa_next_free_sgpr 96"); a.raw(f"  .amdhsa_accum_offset {NV}")
    a.raw("  .amdhsa_group_segment_fixed_size 0"); a.raw("  .amdhsa_kernarg_size 112"); a.raw("  .amdhsa_user_sgpr_count 2")
    a.raw("  .amdhsa_user_sgpr_kernarg_segment_ptr 1"); a.raw("  .amdhsa_system_sgpr_workgroup_id_x 1"); a.raw(".end_amdhsa_kernel")
    return a.text()

if __name__ == "__main__":
    import argparse
    ap = argparse.ArgumentParser()
    ap.add_argument("-o", default="standalone__kv_cache_quant_pre_rope_vs_post_rope__decode.s")
    args = ap.parse_args()
    open(args.o, "w").write(gen())
```

```python
import re, gen_d as k
KN=k.KN
src=open('probe.py').read()
ns={}
body=src[src.index('def mkprobe'):src.index("B='bench/'")]
exec("KN=%r\n"%KN+body, ns)
def mk(s, mode, K=10, base=10000):
    L=re.search(r'; @launch grid.*', s).group(0)
    s=s.replace(L,'; @launch grid=(256,1,1) block=(256,1,1) lds=16384')
    s=ns['mkprobe'](s,mode,K,base)
    return s.replace('grid=(256,1,1) block=(256,1,1) lds=16384', L.split('@launch ')[1])
B='bench/'
s=k.gen(stamp=1)
open(B+'t_prz.s','w').write(mk(s,0,K=0))
open(B+'t_pr0.s','w').write(mk(s,0,K=10))
open(B+'t_pr1.s','w').write(mk(s,1,K=10))

for e,base in ((16,500),(64,2500),(128,5000),(160,6300),(192,7500),(256,10000)):
    open(B+f't_pe{e}.s','w').write(mk(k.gen(stamp=1,stampe=e),0,K=10,base=base))
```

```python
import sys, math, struct
from asmb import Asm

KN = "standalone__kv_cache_quant_pre_rope_vs_post_rope__decode_kernel"
HS = 16384 * 768
KVB = 32 * HS
CSB = 16384 * 384
WSB = 1610612736
X_OFF = 32 << 20
R_OFF = 40 << 20
STAMP_OFF = 1 << 30
SB = 12288

def f2u(f): return struct.unpack("<I", struct.pack("<f", f))[0]
HEADER = open("standalone__kv_cache_quant_pre_rope_vs_post_rope__decode.s.ref").read().split("; Override launch")[0]

def gen(NG=4, RS=9, nmin=12, nmax=36, n0=22.0, kp=6.0, tau0=6.38, t1=3.3, k0=8, C=16, D1=4, D2=10, npub=8, LSTR=4352, eps=0.0,
        rotV=4, rotK=4, F=3, stamp=0, csleep=1, hsleep=8, psleep=1, ipre=2, ctl=1, stf="sc0 sc1", ldf="sc0 sc1", csf="", scf="",
        wext=0, dbg="", epk=16, kstart=4, nstart=24, csw=4, sct=4, sc0=16, roles=(4,0,1,2,7,3,5,6), tlo=0.03, gsleep=1, scpre=3, spw=16, xm=1, serp=1, alpha=0.2, thi=0.02, boost=None, dry=0, xpoll=0, kend=None, outf="", gm=1, fm=1, pre=3, fine=1, gfresh=2, wspre=3, pp=2, pstag=6, csmode=2, scph=1, scrot=1, splate=None, eps_=1, tlbp=0, tlbf="", stampe=None, spf="", cs0f=None, warp=1, lead=22, FL=30, slew=0.01, gap=1.0, gap0=0.15):
    GW = 256 // NG; SPH = 4 * NG; HPG = 32 // NG; NQ = NG; PD = max(1, HPG // 4)
    A = min(4, HPG)
    lg = lambda x: x.bit_length() - 1
    NST = 256
    REV = 1 if (serp and NQ > 1) else 0
    TX = 128 - 4 * HPG
    L_RING = 0
    L_SC = RS * SB
    L_X = L_SC + 16384
    L_QS = L_X + 16384
    L_QT = L_QS + HPG * 1024
    L_ST = L_QT + HPG * 768
    L_TS = L_ST + HPG * 16
    L_CT = L_TS + 1088
    C_LAND, C_STEP, C_REF, C_QRDY, C_PRDY, C_EPO, C_G, C_DONE = 16, 20, 24, 32, 36, 40, 44, 48
    lds = L_CT + 256
    assert lds <= 163840, lds
    a = Asm()
    a.raw(HEADER.rstrip("\n"))
    a.raw(f"; @launch grid=(256,1,1) block=(512,1,1) lds={lds}")
    a.raw('.amdgcn_target "amdgcn-amd-amdhsa--gfx950"')
    for l in f"""Overview (256 workgroups, HBM-bandwidth bound; a workgroup owns {64*NG} rows x {HPG} heads, a step is 16 rows of one head):
 * wave 4 (loader) streams all K steps, then all V steps, into an LDS ring with LDS-DMA loads.  It never waits on a clock;
   it only picks how many loads it keeps in flight ({nmin}..{nmax}) from how far it is behind or ahead of the other workgroups,
   which keeps the chip's reads in one narrow address window and lets all workgroups finish together.
 * wave 6 (pacer) exchanges a few progress time stamps through d_ws for that purpose (speed only, never results).
 * waves 0-3, K steps: logit = ks * sum_d (k[d]-kz) * (qr[d]*cos[d] +- qr[d+-96]*sin[d+-96])  (RoPE moved onto q).
 * wave 5 (helper): rotated q table, scales, softmax weights relative to the true max of the workgroup's rows.
 * waves 0-3, V steps: 48 columns each; per head one partial (max, sum, 192 values) tagged with a per-launch epoch.
 * The helper of workgroup i finally combines 24 output columns (i&7) of head (i>>3) from all partials.""".split("\n"):
        a.raw("; " + l)
    a.raw(".text"); a.raw(f".globl {KN}"); a.raw(".p2align 8"); a.raw(f".type {KN},@function"); a.raw(f"{KN}:")
    srd = lambda b: f"s[{b}:{b+3}]"
    sp = lambda i: f"s[{i}:{i+1}]"
    v = lambda i: f"v{i}"
    vp = lambda i: f"v[{i}:{i+1}]"
    v4 = lambda i: f"v[{i}:{i+3}]"
    s = lambda i: f"s{i}"
    DPP = "row_mask:0xf bank_mask:0xf"
    pQ, pK, pKS, pKZ, pV, pVS, pVZ, pQC, pQS, pKC, pKSN, pOUT, pDBG, pWS = range(48, 76, 2)
    sWave, sG, sI, sX = 76, 77, 78, 79
    sT0, sT1, sT2, sT3 = 80, 81, 82, 83
    sStart = 84
    def mk(b, p, n):
        a(f"s_mov_b32 {s(b)}, {s(p)}"); a(f"s_mov_b32 {s(b+1)}, {s(p+1)}"); a(f"s_mov_b32 {s(b+2)}, {n}"); a(f"s_mov_b32 {s(b+3)}, 0x20000")
    vLane, vL16, vCT, vF = 1, 2, 3, 4
    def lds_wait(lbl, off, val, dst, sleep, cmp="s_cmp_lt_i32"):
        a.label(lbl)
        if sleep: a(f"s_sleep {sleep}")
        a(f"ds_read_b32 {v(vF)}, {v(vCT)} offset:{off}")
        a("s_waitcnt lgkmcnt(0)")
        a(f"v_readfirstlane_b32 {s(dst)}, {v(vF)}")
        a(f"{cmp} {s(dst)}, {val}")
        a(f"s_cbranch_scc1 {lbl}")
    def row_reduce(op, x):
        a(f"{op}_dpp {v(x)}, {v(x)}, {v(x)} quad_perm:[1,0,3,2] {DPP}")
        a(f"{op}_dpp {v(x)}, {v(x)}, {v(x)} quad_perm:[2,3,0,1] {DPP}")
        a(f"{op}_dpp {v(x)}, {v(x)}, {v(x)} row_half_mirror {DPP}")
        a(f"{op}_dpp {v(x)}, {v(x)}, {v(x)} row_mirror {DPP}")
    def xrows(op, x, t1_):
        a(f"v_mov_b32 {v(t1_)}, {v(x)}")
        a(f"v_permlane32_swap_b32 {v(x)}, {v(t1_)}")
        a(f"{op} {v(x)}, {v(x)}, {v(t1_)}")
        a(f"v_mov_b32 {v(t1_)}, {v(x)}")
        a(f"v_permlane16_swap_b32 {v(x)}, {v(t1_)}")
        a(f"{op} {v(x)}, {v(x)}, {v(t1_)}")

    def ev(k):
        if stamp == 3: a(f"s_memrealtime s[{86+2*k}:{87+2*k}]")
    def evw(k, slot, base=None):
        if stamp == 3:
            a("s_waitcnt lgkmcnt(0)"); a(f"v_mov_b32 {v(vF)}, s{86+2*k if base is None else base}"); a(f"ds_write_b32 {v(vCT)}, {v(vF)} offset:{96+4*slot}")
    sK = 4
    sBase, sOff, sT, sGw, sEnd, sN, sRotK, sRotV = 8, 9, 10, 11, 12, 15, 16, 17
    vI, vT, vG = 5, 6, 7
    G0 = (RS << 8) | nstart
    assert rotK % 4 == 0 and rotV % 4 == 0 and roles[0] == 4 and (NG-1)*rotK < SPH and nstart >= 24
    a("s_cmp_ge_u32 s2, 256")
    a("s_cbranch_scc1 L_end")
    a(f"s_load_dwordx2 {sp(sK)}, s[0:1], 8")
    if stamp: a(f"s_memrealtime {sp(sStart)}")
    a(f"v_readfirstlane_b32 {s(sWave)}, v0")
    a(f"s_and_b32 {s(sX)}, s2, 7")
    a(f"s_lshr_b32 {s(sI)}, s2, {3+lg(NG)+lg(A)}")
    a(f"s_lshl3_add_u32 {s(sI)}, {s(sI)}, {s(sX)}")
    a(f"s_lshr_b32 {s(sG)}, s2, 3")
    a(f"s_lshr_b32 {s(sT0)}, {s(sG)}, {lg(NG)}")
    a(f"s_and_b32 {s(sG)}, {s(sG)}, {NG-1}")
    a(f"s_and_b32 {s(sT0)}, {s(sT0)}, {A-1}")
    assert A == 4
    a(f"s_lshl2_add_u32 {s(sI)}, {s(sI)}, {s(sT0)}")
    a(f"s_cmp_lt_u32 {s(sWave)}, 64")
    a.lines.append("    s_cbranch_scc0 L_init")
    if ipre == 2:
        a(f"s_getpc_b64 {sp(26)}")
        a.label("L_pc", flush=False)
        a(f"s_lshl_b32 {s(sT1)}, s2, 6"); a(f"s_and_b32 {s(sT1)}, {s(sT1)}, 0x3e00")
        a(f"v_lshl_add_u32 v5, v0, 3, {s(sT1)}")
        a(f"v_min_u32 v5, L_end-L_pc, v5")
        a(f"global_load_dword v7, v5, {sp(26)}")
    a(f"v_lshlrev_b32 {v(vL16)}, 4, v0")
    a(f"s_mul_i32 {s(sOff)}, {s(sG)}, {HS + rotK*GW*SB}")
    a(f"s_mul_i32 {s(sT0)}, {s(sI)}, {SB}")
    a("s_mov_b32 m0, 0")
    a(f"s_add_u32 {s(sOff)}, {s(sOff)}, {s(sT0)}")
    a(f"s_mov_b32 {s(sK+2)}, {KVB}"); a(f"s_mov_b32 {s(sK+3)}, 0x20000")
    a(f"s_movk_i32 {s(sEnd)}, {SB}")
    a("s_waitcnt lgkmcnt(0)")
    ev(0)
    a.label("L_first", flush=False)
    for k in range(4):
        if pre > 2 and k % 2 == 0: a(f"s_waitcnt vmcnt({nstart-2})")
        a(f"buffer_load_dwordx4 {v(vL16)}, {srd(sK)}, {s(sOff)} offen offset:{k*1024} nt lds")
    a("s_addk_i32 m0, 4096"); a(f"s_addk_i32 {s(sOff)}, 4096")
    a(f"s_cmp_lg_u32 m0, {s(sEnd)}")
    a.lines.append("    s_cbranch_scc1 L_first")
    a(f"s_addk_i32 {s(sEnd)}, {SB}"); a(f"s_add_u32 {s(sOff)}, {s(sOff)}, {GW*SB-SB}")
    a(f"s_cmp_lt_u32 m0, {pre*SB}")
    a.lines.append("    s_cbranch_scc1 L_first")
    a(f"s_sub_u32 {s(sOff)}, {s(sOff)}, {GW*SB-SB}")
    ev(1)
    a("s_barrier")
    a(f"s_load_dwordx2 {sp(pV)}, s[0:1], 32")
    a("s_setprio 3")
    a(f"s_mul_i32 {s(sBase)}, {s(sG)}, {HS}")
    a(f"s_add_u32 {s(sBase)}, {s(sBase)}, {s(sT0)}")
    a(f"s_mul_i32 {s(sRotK)}, {s(sG)}, {rotK}")
    a(f"s_mul_i32 {s(sRotV)}, {s(sG)}, {rotV}")
    a(f"v_mov_b32 {v(vCT)}, {L_CT}")
    if stamp == 3:
        a("s_waitcnt vmcnt(23)"); ev(2); evw(0, 0, sStart); evw(0, 1); evw(1, 2); evw(2, 3)
    if ipre == 2: a(f"s_waitcnt vmcnt({nstart})")
    a(f"s_mov_b32 {s(sT)}, {pre-1}")
    a(f"v_mov_b32 {v(vI)}, {12*pre}"); a(f"v_mov_b32 {v(vG)}, {G0}")
    a("s_waitcnt lgkmcnt(0)")
    a("s_branch L_next")
    a("; ==== all other waves ===="); a.label("L_init")
    a("s_load_dwordx16 s[48:63], s[0:1], 0")
    a("s_load_dwordx8 s[64:71], s[0:1], 64")
    a("s_load_dwordx4 s[72:75], s[0:1], 96")
    if not stamp: a(f"s_memrealtime {sp(sStart)}")
    a(f"v_and_b32 {v(vLane)}, 63, v0")
    a(f"s_lshr_b32 {s(sWave)}, {s(sWave)}, 4")
    a(f"s_lshr_b32 {s(sWave)}, {hex(sum(r << (4*k) for k, r in enumerate(roles)))}, {s(sWave)}")
    a(f"s_and_b32 {s(sWave)}, {s(sWave)}, 7")
    if ipre == 1:
        a(f"s_cmp_eq_u32 {s(sWave)}, 7")
        a("s_cbranch_scc0 L_nopf")
        a(f"s_getpc_b64 {sp(26)}")
        a.label("L_pc", flush=False)
        a(f"s_sub_u32 s26, s26, L_pc-{KN}"); a("s_subb_u32 s27, s27, 0")
        a(f"s_lshr_b32 {s(sT0)}, s2, 3"); a(f"s_lshl_b32 {s(sT0)}, {s(sT0)}, 9")
        a(f"v_lshl_add_u32 v5, {v(vLane)}, 3, {s(sT0)}")
        a(f"v_min_u32 v5, L_end-{KN}, v5")
        a(f"global_load_dword v7, v5, {sp(26)}")
        a.label("L_nopf")
    a(f"v_lshlrev_b32 {v(vL16)}, 4, {v(vLane)}")
    a(f"v_mov_b32 {v(vCT)}, {L_CT}")
    a(f"v_cmp_eq_u32 vcc, {C_G//4}, {v(vLane)}")
    a(f"v_mov_b32 v5, {G0}")
    a(f"v_lshl_add_u32 v6, {v(vLane)}, 2, {v(vCT)}")
    a(f"v_cndmask_b32 v5, 0, v5, vcc")
    a("ds_write_b32 v6, v5")
    a("s_waitcnt lgkmcnt(0)")
    a("s_barrier")
    a("s_branch L_notld")
    a.label("L_next")
    a(f"s_add_u32 {s(sT)}, {s(sT)}, 1")
    a(f"s_cmp_eq_u32 m0, {RS*SB}"); a("s_cselect_b32 m0, 0, m0")
    a(f"s_waitcnt lgkmcnt({1 if gfresh else 4})")
    a(f"v_readfirstlane_b32 {s(sGw)}, {v(vG)}")
    a(f"s_add_u32 {s(sEnd)}, m0, {SB}")
    a(f"s_add_u32 {s(sOff)}, {s(sOff)}, {GW*SB-SB}")
    a(f"s_and_b32 {s(sT0)}, {s(sT)}, 3")
    a.lines.append("    s_cbranch_scc0 L_addr")
    a.label("L_aj", flush=False)
    a(f"s_lshr_b32 {s(sT0)}, {s(sGw)}, 8")
    if not gfresh: a(f"ds_read_b32 {v(vG)}, {v(vCT)} offset:{C_G}")
    a(f"s_cmp_gt_u32 {s(sT0)}, {s(sT)}")
    a.lines.append("    s_cbranch_scc0 L_full")
    a(f"s_and_b32 {s(sN)}, {s(sGw)}, 255")
    a.hist = []
    def tree(lo, hi):
        if lo == hi:
            a(f"s_branch L_v{lo}"); return
        mid = (lo + hi + 1) // 2
        a(f"s_cmp_ge_i32 {s(sN)}, {mid}"); a(f"s_cbranch_scc1 L_t_{mid}_{hi}" if mid < hi else f"s_cbranch_scc1 L_v{hi}")
        tree(lo, mid - 1)
        if mid < hi:
            a.label(f"L_t_{mid}_{hi}")
            tree(mid, hi)
    tree(nmin, nmax)
    for n in range(nmin, nmax + 1):
        a.label(f"L_v{n}")
        for q in range(3):
            a(f"s_waitcnt vmcnt({n-1})")
            a(f"buffer_load_dwordx4 {v(vL16)}, {srd(sK)}, {s(sOff)} offen offset:{q*1024} nt lds")
            if gfresh and q == gfresh - 1: a(f"ds_read_b32 {v(vG)}, {v(vCT)} offset:{C_G}")
        a(f"v_subrev_u32 {v(vT)}, {n-3}, {v(vI)}")
        a("s_add_u32 m0, m0, 3072")
        a(f"ds_write_b32 {v(vCT)}, {v(vT)} offset:{C_LAND}")
        a(f"v_add_u32 {v(vI)}, 3, {v(vI)}")
        a(f"s_add_u32 {s(sOff)}, {s(sOff)}, 3072")
        a(f"s_cmp_lg_u32 m0, {s(sEnd)}")
        a.lines.append(f"    s_cbranch_scc1 L_v{n}")
        a.lines.append("    s_branch L_next")
    a.label("L_full")
    if gfresh: a(f"ds_read_b32 {v(vG)}, {v(vCT)} offset:{C_G}")
    a("s_waitcnt lgkmcnt(0)")
    a(f"v_readfirstlane_b32 {s(sGw)}, {v(vG)}")
    a("s_branch L_aj")
    a("; every 4th step: new head and/or new row range"); a.label("L_addr")
    a(f"s_cmp_lt_u32 {s(sT)}, 128")
    a("s_cbranch_scc0 L_av")
    a(f"s_lshr_b32 {s(sT0)}, {s(sT)}, {2+lg(HPG)}"); a(f"s_lshl_b32 {s(sT0)}, {s(sT0)}, 2")
    a(f"s_add_u32 {s(sT0)}, {s(sT0)}, {s(sRotK)}")
    a(f"s_bfe_u32 {s(sT1)}, {s(sT)}, {hex((lg(HPG) << 16) | 2)}")
    if serp:
        a(f"s_bitcmp1_b32 {s(sT)}, {2+lg(HPG)}"); a(f"s_cselect_b32 {s(sT2)}, {HPG-1}, 0"); a(f"s_xor_b32 {s(sT1)}, {s(sT1)}, {s(sT2)}")
    a("s_branch L_ak")
    a.label("L_av")
    a(f"s_cmp_eq_u32 {s(sT)}, {NST}")
    a("s_cbranch_scc1 L_drain")
    a(f"s_mov_b32 {s(sK)}, {s(pV)}"); a(f"s_mov_b32 {s(sK+1)}, {s(pV+1)}")
    a(f"s_add_u32 {s(sT0)}, {s(sT)}, {s(sRotV)}")
    a(f"s_bfe_u32 {s(sT1)}, {s(sT)}, {hex((lg(HPG) << 16) | lg(SPH))}")
    if REV: a(f"s_xor_b32 {s(sT1)}, {s(sT1)}, {HPG-1}")
    a.label("L_ak")
    a(f"s_and_b32 {s(sT0)}, {s(sT0)}, {SPH-1}")
    a(f"s_mul_i32 {s(sT0)}, {s(sT0)}, {GW*SB}"); a(f"s_mul_i32 {s(sT1)}, {s(sT1)}, {NG*HS}")
    a(f"s_add_u32 {s(sOff)}, {s(sT0)}, {s(sT1)}"); a(f"s_add_u32 {s(sOff)}, {s(sOff)}, {s(sBase)}")
    a("s_branch L_aj")
    a.label("L_drain")
    for k in ((36, 24, 12, 0) if nmax > 36 else (24, 12, 0)):
        a(f"v_mov_b32 {v(vT)}, {NST*12-k}")
        a(f"s_waitcnt vmcnt({k})")
        a(f"ds_write_b32 {v(vCT)}, {v(vT)} offset:{C_LAND}")
    a("s_endpgm")

    a.label("L_notld")
    a(f"s_cmp_gt_u32 {s(sWave)}, 4")
    a("s_cbranch_scc1 L_aux")
    sC, sS, sWS = 4, 8, 12
    sCo, sNeed, sLand, sSl, sN_, sQ_, sSel0, sSel1, sU, sPO, sE = 16, 17, 18, 19, 20, 21, 22, 23, 24, 25, 28
    sMsk = 32
    vRow, vRa, vScA, vXa, vKz, vPrg, vPa, vC, vS1, vQa, vX0, vSc0 = 5, 6, 7, 8, 9, 10, 11, 16, 17, 18, 19, 20
    vAc, vSW = 12, 14
    vY, vZ, vMask = 21, 22, 23
    vW, vD, vQ, vTm, vCur, vNxt = 24, 36, 48, 60, 72, 120
    NV = 168
    a("; ==== consumers ====")
    a(f"v_lshrrev_b32 {v(vY)}, 4, {v(vLane)}")
    a(f"v_and_b32 {v(vZ)}, 15, {v(vLane)}")
    a(f"v_mul_u32_u24 {v(vC)}, 384, {v(vY)}")
    a(f"v_lshl_add_u32 {v(vC)}, {v(vZ)}, 3, {v(vC)}")
    a(f"v_cmp_gt_u32 vcc, 8, {v(vZ)}")
    a(f"v_xor_b32 {v(vS1)}, 64, {v(vC)}")
    a(f"s_mul_i32 {s(sU)}, {s(sG)}, {rotK}"); a(f"s_and_b32 {s(sU)}, {s(sU)}, {SPH-1}")
    a(f"s_lshl_b32 {s(sT0)}, {s(sI)}, 2"); a(f"s_add_u32 {s(sT0)}, {s(sT0)}, {s(sWave)}"); a(f"s_mul_i32 {s(sT3)}, {s(sT0)}, 1536")
    a(f"s_mul_i32 {s(sCo)}, {s(sU)}, {GW*6144}"); a(f"s_add_u32 {s(sCo)}, {s(sCo)}, {s(sT3)}")
    a("s_waitcnt lgkmcnt(0)")
    mk(sC, pKC, CSB); mk(sS, pKSN, CSB)
    def issue_cs(dst):
        for i in range(3):
            a(f"buffer_load_dwordx2 {vp(dst+2*i)}, {v(vC)}, {srd(sC)}, {s(sCo)} offen offset:{128*i} {csf}")
            a(f"buffer_load_dwordx2 {vp(dst+6+2*i)}, {v(vS1)}, {srd(sS)}, {s(sCo)} offen offset:{128*i} {csf}")
        a(f"s_add_u32 {s(sCo)}, {s(sCo)}, {GW*6144}")
    def pack_cs(dst, src):
        for i in range(3):
            for e in range(2):
                a(f"v_cndmask_b32 {v(vW+2*i+e)}, {v(src+6+2*((i+2)%3)+e)}, {v(src+6+2*((i+1)%3)+e)}, vcc")
        for i in range(3):
            c0, s0 = src+2*i, vW+2*i
            a(f"v_perm_b32 {v(dst+4*i+0)}, {v(s0)}, {v(c0)}, {s(sSel0)}")
            a(f"v_perm_b32 {v(dst+4*i+1)}, {v(s0)}, {v(c0)}, {s(sSel1)}")
            a(f"v_perm_b32 {v(dst+4*i+2)}, {v(s0+1)}, {v(c0+1)}, {s(sSel0)}")
            a(f"v_perm_b32 {v(dst+4*i+3)}, {v(s0+1)}, {v(c0+1)}, {s(sSel1)}")
    ev(0)
    for k in range(csw): issue_cs(vNxt + 12*k)
    ev(1)
    mk(sWS, pWS, WSB)
    a(f"s_mov_b32 {s(sSel0)}, 0x05040100"); a(f"s_mov_b32 {s(sSel1)}, 0x07060302")
    a(f"s_lshl_b32 {s(sT0)}, {s(sWave)}, 2")
    a(f"v_add_u32 {v(vY)}, {s(sT0)}, {v(vY)}")
    a(f"v_mul_u32_u24 {v(vRow)}, 768, {v(vY)}"); a(f"v_lshl_add_u32 {v(vRow)}, {v(vZ)}, 4, {v(vRow)}")
    a(f"v_lshlrev_b32 {v(vX0)}, 3, {v(vY)}"); a(f"v_add_u32 {v(vX0)}, {L_X}, {v(vX0)}")
    a(f"v_lshlrev_b32 {v(vQa)}, 4, {v(vZ)}"); a(f"v_add_u32 {v(vQa)}, {L_QT}, {v(vQa)}")
    a(f"v_add_u32 {v(vPa)}, {s(sT0)}, {v(vCT)}")
    a(f"v_mov_b32 {v(vPrg)}, 0"); a(f"v_mov_b32 {v(vMask)}, 0xff")
    a(f"s_mul_i32 {s(sNeed)}, {s(sWave)}, 3"); a(f"s_add_u32 {s(sNeed)}, {s(sNeed)}, 3")
    a(f"s_mov_b32 {s(sLand)}, 0"); a(f"s_mov_b32 {s(sSl)}, 0"); a(f"s_mov_b32 {s(sN_)}, 0"); a(f"s_mov_b32 {s(sQ_)}, 0")
    for k in range(4):
        a(f"s_waitcnt vmcnt({6*(min(4, k+csw)-k-1)})")
        if k + csw < 4: issue_cs(vNxt + 12*(k+csw))
        pack_cs(vCur + 12*k, vNxt + 12*k)
    ev(2); evw(0, 4); evw(1, 5); evw(2, 6)
    def wait_data(lbl):
        a(f"s_cmp_ge_i32 {s(sLand)}, {s(sNeed)}")
        a(f"s_cbranch_scc1 {lbl}g")
        a.label(lbl)
        a(f"ds_read_b32 {v(vF)}, {v(vCT)} offset:{C_LAND}")
        a("s_waitcnt lgkmcnt(0)")
        a(f"v_readfirstlane_b32 {s(sLand)}, {v(vF)}")
        a(f"s_cmp_ge_i32 {s(sLand)}, {s(sNeed)}")
        a(f"s_cbranch_scc1 {lbl}g")
        if csleep: a(f"s_sleep {csleep}")
        a(f"s_branch {lbl}")
        a.label(lbl + "g")
    def next_slot():
        a(f"s_add_u32 {s(sSl)}, {s(sSl)}, {SB}"); a(f"s_cmp_eq_u32 {s(sSl)}, {RS*SB}"); a(f"s_cselect_b32 {s(sSl)}, 0, {s(sSl)}")
        a(f"s_add_u32 {s(sNeed)}, {s(sNeed)}, 12")
    a.label("L_kvisit")
    sCs = 26
    def cs_one(dst, k):
        i = k // 2
        if "nocs" in dbg: return
        if k % 2 == 0: a(f"buffer_load_dwordx2 {vp(dst+2*i)}, {v(vC)}, {srd(sC)}, {s(sCo)} offen offset:{128*i} {csf}")
        else: a(f"buffer_load_dwordx2 {vp(dst+6+2*i)}, {v(vS1)}, {srd(sS)}, {s(sCo)} offen offset:{128*i} {csf}")
    if NQ > 1 and csmode == 0:
        a(f"s_and_b32 {s(sT0)}, {s(sN_)}, {PD-1}")
        a(f"s_cselect_b32 {s(sT0)}, {NQ}, {s(sQ_)}")
        a(f"s_cmp_lt_u32 {s(sT0)}, {NQ-1}")
        a("s_cbranch_scc0 L_nocs")
        if rotK:
            a(f"s_cmp_ge_u32 {s(sCo)}, {CSB}"); a(f"s_cselect_b32 {s(sT0)}, {CSB}, 0"); a(f"s_sub_u32 {s(sCo)}, {s(sCo)}, {s(sT0)}")
        issue_cs(vTm)
        a.label("L_nocs")
    if NQ > 1 and csmode:
        assert PD == 2
        a(f"s_cmp_ge_u32 {s(sCo)}, {CSB}"); a(f"s_cselect_b32 {s(sT0)}, {CSB}, 0"); a(f"s_sub_u32 {s(sCo)}, {s(sCo)}, {s(sT0)}")
        if csmode == 1:
            a(f"s_and_b32 {s(sT0)}, {s(sN_)}, 1"); a(f"s_cselect_b32 {s(sCs)}, 9, {s(sWave)}")
        else:
            a(f"s_and_b32 {s(sCs)}, {s(sN_)}, 1")
        a(f"s_cmp_lt_u32 {s(sQ_)}, {NQ-1}"); a(f"s_cselect_b32 {s(sCs)}, {s(sCs)}, 9")
    if serp:
        a(f"s_bitcmp1_b32 {s(sQ_)}, 0"); a(f"s_cselect_b32 {s(sT2)}, {HPG-1}, 0"); a(f"s_xor_b32 {s(sT2)}, {s(sT2)}, {s(sN_)}")
    else:
        a(f"s_mov_b32 {s(sT2)}, {s(sN_)}")
    a(f"s_mul_i32 {s(sT0)}, {s(sT2)}, 768")
    a(f"v_add_u32 {v(vRa)}, {s(sT0)}, {v(vQa)}")
    a(f"s_lshl_b32 {s(sT0)}, {s(sT2)}, {lg(SPH)}"); a(f"s_add_u32 {s(sT0)}, {s(sT0)}, {s(sU)}")
    a(f"s_lshl_b32 {s(sT1)}, {s(sT0)}, 7"); a(f"v_add_u32 {v(vXa)}, {s(sT1)}, {v(vX0)}")
    a.label("L_qw")
    a(f"ds_read_b32 {v(vF)}, {v(vCT)} offset:{C_QRDY}")
    for i in range(3): a(f"ds_read_b128 {v4(vQ+4*i)}, {v(vRa)} offset:{256*i}")
    a("s_waitcnt lgkmcnt(0)")
    a(f"v_readfirstlane_b32 {s(sT0)}, {v(vF)}")
    a(f"s_cmp_gt_u32 {s(sT0)}, {s(sT2)}")
    a("s_cbranch_scc1 L_qwg")
    a("s_sleep 2")
    a("s_branch L_qw")
    a.label("L_qwg")
    for st in range(4):
        if NQ > 1 and csmode == 1:
            a(f"s_cmp_eq_u32 {s(sCs)}, {st}"); a(f"s_cbranch_scc0 L_nc{st}")
            issue_cs(vTm)
            a.label(f"L_nc{st}")
        if NQ > 1 and csmode == 2:
            a(f"s_cmp_eq_u32 {s(sCs)}, 0"); a(f"s_cbranch_scc0 L_nc{st}")
            cs_one(vTm, st)
            a.label(f"L_nc{st}")
            if st < 2:
                a(f"s_cmp_eq_u32 {s(sCs)}, 1"); a(f"s_cbranch_scc0 L_nd{st}")
                cs_one(vTm, 4+st)
                if st == 1: a(f"s_add_u32 {s(sCo)}, {s(sCo)}, {GW*6144}")
                a.label(f"L_nd{st}")
        for e in range(12):
            a(f"v_dot2_f32_bf16 {v(vW+e)}, {v(vCur+12*st+e)}, {v(vQ+e)}, 0")
        a(f"v_add_u32 {v(vRa)}, {s(sSl)}, {v(vRow)}")
        a(f"v_pk_add_f32 {vp(vSW)}, {vp(vW)}, {vp(vW+2)}")
        for e in range(4, 12, 2): a(f"v_pk_add_f32 {vp(vSW)}, {vp(vSW)}, {vp(vW+e)}")
        wait_data(f"L_kw{st}")
        for i in range(3): a(f"ds_read_b128 {v4(vD+4*i)}, {v(vRa)} offset:{256*i}")
        a(f"v_add_u32 {v(vPrg)}, 1, {v(vPrg)}")
        next_slot()
        for i in range(3):
            a(f"s_waitcnt lgkmcnt({2-i})")
            for e in range(4): a(f"v_cvt_f32_i32 {v(vD+4*i+e)}, {v(vD+4*i+e)}")
            if i == 0:
                a(f"v_pk_mul_f32 {vp(vAc)}, {vp(vD)}, {vp(vW)}")
            else:
                a(f"v_pk_fma_f32 {vp(vAc)}, {vp(vD+4*i)}, {vp(vW+4*i)}, {vp(vAc)}")
            a(f"v_pk_fma_f32 {vp(vAc)}, {vp(vD+4*i+2)}, {vp(vW+4*i+2)}, {vp(vAc)}")
        a(f"v_add_f32 {v(vAc)}, {v(vAc)}, {v(vAc+1)}")
        a(f"v_add_f32 {v(vAc+1)}, {v(vSW)}, {v(vSW+1)}")
        for m_ in ("quad_perm:[1,0,3,2]", "quad_perm:[2,3,0,1]", "row_half_mirror", "row_mirror"):
            for e in range(2): a(f"v_add_f32_dpp {v(vAc+e)}, {v(vAc+e)}, {v(vAc+e)} {m_} {DPP}")
        a(f"ds_write_b64 {v(vXa)}, {vp(vAc)} offset:{128*st}")
        a(f"ds_write_b32 {v(vPa)}, {v(vPrg)}")
    a(f"s_add_u32 {s(sN_)}, {s(sN_)}, 1")
    if NQ > 1:
        a(f"s_and_b32 {s(sT0)}, {s(sN_)}, {PD-1}")
        a("s_cbranch_scc1 L_kvisit")
        for e in range(0, 36, 2): a(f"v_mov_b64 {vp(vNxt+e)}, {vp(vNxt+12+e)}")
        a("s_waitcnt vmcnt(0)")
        pack_cs(vNxt + 36, vTm)
    a(f"s_cmp_lt_u32 {s(sN_)}, {HPG}")
    a("s_cbranch_scc1 L_kvisit")
    if NQ > 1:
        for e in range(0, 48, 2): a(f"v_mov_b64 {vp(vCur+e)}, {vp(vNxt+e)}")
        a(f"s_mov_b32 {s(sN_)}, 0")
        a(f"s_add_u32 {s(sU)}, {s(sU)}, 4"); a(f"s_and_b32 {s(sU)}, {s(sU)}, {SPH-1}")
        a(f"s_add_u32 {s(sQ_)}, {s(sQ_)}, 1")
        a(f"s_cmp_lt_u32 {s(sQ_)}, {NQ}")
        a("s_cbranch_scc1 L_kvisit")
    vAcc, vP, vSt, vRo = vW, vAc, vSW, vScA
    a(f"v_lshrrev_b32 {v(vY)}, 2, {v(vLane)}"); a(f"v_and_b32 {v(vZ)}, 3, {v(vLane)}")
    a(f"v_mul_u32_u24 {v(vRow)}, 768, {v(vY)}"); a(f"v_lshl_add_u32 {v(vRow)}, {v(vZ)}, 4, {v(vRow)}")
    a(f"s_mul_i32 {s(sT0)}, {s(sWave)}, 192"); a(f"v_add_u32 {v(vRow)}, {s(sT0)}, {v(vRow)}")
    a(f"v_lshlrev_b32 {v(vX0)}, 3, {v(vY)}"); a(f"v_add_u32 {v(vX0)}, {L_X}, {v(vX0)}")
    a(f"v_lshrrev_b32 {v(vY)}, 4, {v(vLane)}")
    if gm:
        a(f"v_lshl_add_u32 {v(vRo)}, {v(vY)}, 2, {v(vZ)}")
    else:
        a(f"v_lshl_add_u32 {v(vRo)}, {v(vZ)}, 2, {v(vY)}")
    a(f"v_and_b32 {v(vY)}, 1, {v(vRo)}"); a(f"v_lshlrev_b32 {v(vRo)}, 4, {v(vRo)}")
    a(f"s_lshl_b32 {s(sT0)}, {s(sWave)}, 8"); a(f"v_add_u32 {v(vRo)}, {s(sT0)}, {v(vRo)}")
    a(f"v_lshlrev_b32 {v(vQa)}, 3, {v(vY)}"); a(f"v_add_u32 {v(vQa)}, {L_ST}, {v(vQa)}")
    a(f"v_add_u32 {v(vC)}, {L_QS}, {v(vRo)}")
    a(f"s_mov_b32 {s(sMsk)}, 0x000f000f"); a(f"s_mov_b32 {s(sMsk+1)}, 0x000f000f")
    a(f"s_mov_b32 {s(sNeed)}, {129*12}")
    a(f"s_mul_i32 {s(sU)}, {s(sG)}, {rotV}"); a(f"s_and_b32 {s(sU)}, {s(sU)}, {SPH-1}")
    a(f"s_mov_b32 {s(sN_)}, 0")
    a(f"s_add_u32 {s(sPO)}, {s(sG)}, {(HPG-1)*NG*(1-REV)}"); a(f"s_mul_i32 {s(sPO)}, {s(sPO)}, {GW}"); a(f"s_add_u32 {s(sPO)}, {s(sPO)}, {s(sI)}")
    a(f"s_lshl_b32 {s(sPO)}, {s(sPO)}, 10")
    a.label("L_vhead")
    for e in range(0, 12, 2): a(f"v_mov_b64 {vp(vAcc+e)}, 0")
    a(f"s_mov_b32 {s(sQ_)}, 0")
    a.label("L_pw")
    a(f"ds_read_b64 {vp(vD)}, {v(vCT)} offset:{C_PRDY-4}")
    a(f"ds_read_b32 {v(vF)}, {v(vCT)} offset:{C_EPO}")
    a(f"ds_read_b64 {vp(vSt)}, {v(vQa)}")
    a("s_waitcnt lgkmcnt(0)")
    a(f"v_readfirstlane_b32 {s(sT0)}, {v(vD+1)}")
    a(f"v_readfirstlane_b32 {s(sE)}, {v(vF)}")
    a(f"s_cmp_gt_u32 {s(sT0)}, {s(sN_)}")
    a("s_cbranch_scc1 L_pwg")
    a("s_sleep 2")
    a("s_branch L_pw")
    a.label("L_pwg")
    a(f"s_lshr_b32 {s(sE+1)}, {s(sE)}, 8"); a(f"s_lshr_b32 {s(sE+2)}, {s(sE)}, 16")
    a.label("L_vstep")
    a(f"s_xor_b32 {s(sT0)}, {s(sN_)}, {(HPG-1)*REV}")
    a(f"s_lshl_b32 {s(sT0)}, {s(sT0)}, {lg(SPH)}"); a(f"s_add_u32 {s(sT0)}, {s(sT0)}, {s(sU)}"); a(f"s_lshl_b32 {s(sT0)}, {s(sT0)}, 7")
    a(f"v_add_u32 {v(vXa)}, {s(sT0)}, {v(vX0)}")
    a(f"v_add_u32 {v(vRa)}, {s(sSl)}, {v(vRow)}")
    a(f"ds_read_b32 {v(vP)}, {v(vXa)}")
    wait_data("L_vw")
    for i in range(3): a(f"ds_read_b128 {v4(vD+4*i)}, {v(vRa)} offset:{64*i}")
    a(f"v_add_u32 {v(vPrg)}, 1, {v(vPrg)}")
    next_slot()
    a(f"s_add_u32 {s(sU)}, {s(sU)}, 1"); a(f"s_and_b32 {s(sU)}, {s(sU)}, {SPH-1}")
    a(f"s_add_u32 {s(sQ_)}, {s(sQ_)}, 1")
    a(f"s_cmp_lt_u32 {s(sQ_)}, {SPH}")
    for i in range(3):
        a(f"s_waitcnt lgkmcnt({2-i})")
        for e in range(4): a(f"v_cvt_f32_i32 {v(vD+4*i+e)}, {v(vD+4*i+e)}")
        for e in (0, 2):
            a(f"v_pk_fma_f32 {vp(vAcc+4*i+e)}, {vp(vD+4*i+e)}, {vp(vP)}, {vp(vAcc+4*i+e)} op_sel_hi:[1,0,1]")
    a("s_cbranch_scc0 L_vend")
    a(f"ds_write_b32 {v(vPa)}, {v(vPrg)}")
    a("s_branch L_vstep")
    a("; head finished: reduce over the 16 rows, remove the zero-point term, tag"); a.label("L_vend")
    O = vD
    for i in range(3):
        r_ = vAcc + 4*i
        a(f"v_permlane32_swap_b32 {v(r_)}, {v(r_+2)}")
        a(f"v_permlane32_swap_b32 {v(r_+1)}, {v(r_+3)}")
    for i in range(3):
        r_ = vAcc + 4*i
        a(f"v_pk_add_f32 {vp(r_)}, {vp(r_)}, {vp(r_+2)}")
    for i in range(3):
        r_ = vAcc + 4*i
        a(f"v_permlane16_swap_b32 {v(r_)}, {v(r_+1)}")
    for i in range(3):
        r_ = vAcc + 4*i
        a(f"v_add_f32 {v(O+i)}, {v(r_)}, {v(r_+1)}")
    a(f"v_mov_b32 {v(O+3)}, {v(vSt)}")
    for rr in (4, 8):
        for i in range(3): a(f"v_add_f32_dpp {v(O+i)}, {v(O+i)}, {v(O+i)} row_ror:{rr} {DPP}")
    for i in range(3): a(f"v_sub_f32 {v(O+i)}, {v(O+i)}, {v(vSt+1)}")
    for i in range(3): a(f"v_bfi_b32 {v(O+i)}, {v(vMask)}, {s(sE+i)}, {v(O+i)}")
    a(f"s_add_u32 {s(sN_)}, {s(sN_)}, 1")
    a(f"s_cmp_eq_u32 {s(sN_)}, {HPG}")
    a(f"s_mov_b64 exec, {sp(sMsk)}")
    a("s_cbranch_scc1 L_vlast")
    a(f"ds_write_b128 {v(vC)}, {v4(O)}")
    a("s_mov_b64 exec, -1")
    a(f"ds_write_b32 {v(vPa)}, {v(vPrg)}")
    a(f"v_add_u32 {v(vC)}, 1024, {v(vC)}"); a(f"v_add_u32 {v(vQa)}, 16, {v(vQa)}")
    a("s_branch L_vhead")
    a.label("L_vlast")
    a(f"buffer_store_dwordx4 {v4(O)}, {v(vRo)}, {srd(sWS)}, {s(sPO)} offen {stf}")
    if stamp:
        a("s_mov_b64 exec, -1")
        a(f"s_memrealtime {sp(sT0)}"); a("s_waitcnt lgkmcnt(0)")
        a(f"v_mov_b32 {v(vF)}, {s(sT0)}"); a(f"ds_write_b32 {v(vPa)}, {v(vF)} offset:64")
        a(f"ds_write_b32 {v(vPa)}, {v(vPrg)}")
    a("s_endpgm")

    a.label("L_aux")
    a(f"s_cmp_eq_u32 {s(sWave)}, 5")
    a("s_cbranch_scc0 L_pacer")
    sA, sDB, sOUT, sB = 4, 8, 16, 20
    sE = 28
    sN_, sSpin, sPO, sMe, sHc, sBk = 24, 25, 26, 32, 34, 35
    vQo0, vQo1, vSg, vH0, vH1, vX, vY, vZ, vU, vMask, vA0, vA1 = 5, 6, 7, 8, 9, 10, 11, 12, 13, 14, 15, 16
    qr, t_ = 20, 32
    vSv, vQv, sSo = 17, 56, 27
    NQL = (HPG * 24 + 63) // 64
    a("; ==== helper ====")
    a(f"v_lshlrev_b32 {v(vQo0)}, 3, {v(vLane)}")
    a(f"v_cmp_gt_u32 vcc, 24, {v(vLane)}")
    a(f"v_mov_b32 {v(vU)}, 0xffffff40"); a(f"v_mov_b32 {v(vX)}, 192")
    a(f"v_cndmask_b32 {v(vU)}, {v(vU)}, {v(vX)}, vcc")
    a(f"v_add_u32 {v(vQo1)}, {v(vQo0)}, {v(vU)}")
    a(f"v_mov_b32 {v(vX)}, 0x80008000")
    a(f"v_cndmask_b32 {v(vSg)}, 0, {v(vX)}, vcc")
    hpi = 32 // SPH
    a(f"v_lshrrev_b32 {v(vX)}, 1, {v(vLane)}")
    a(f"v_and_b32 {v(vY)}, {SPH-1}, {v(vX)}"); a(f"v_lshrrev_b32 {v(vX)}, {lg(SPH)}, {v(vX)}")
    a(f"v_mul_u32_u24 {v(vX)}, {NG*32768}, {v(vX)}"); a(f"v_mul_u32_u24 {v(vY)}, {GW*32}, {v(vY)}"); a(f"v_add_u32 {v(vX)}, {v(vX)}, {v(vY)}")
    a(f"v_and_b32 {v(vY)}, 1, {v(vLane)}"); a(f"v_lshl_add_u32 {v(vSv)}, {v(vY)}, 4, {v(vX)}")
    for k in range(NQL):
        a(f"v_add_u32 {v(vX)}, {64*k}, {v(vLane)}")
        a(f"v_mul_u32_u24 {v(vZ)}, 2731, {v(vX)}"); a(f"v_lshrrev_b32 {v(vZ)}, 16, {v(vZ)}")
        a(f"v_mul_u32_u24 {v(vZ)}, {(NG-1)*384}, {v(vZ)}"); a(f"v_lshl_add_u32 {v(vQv+k)}, {v(vX)}, 4, {v(vZ)}")
    a(f"v_cmp_eq_u32 {sp(sMe)}, 0, {v(vY)}")
    a(f"s_lshl_b32 {s(sSo)}, {s(sG)}, 15"); a(f"s_lshl_b32 {s(sT0)}, {s(sI)}, 5"); a(f"s_add_u32 {s(sSo)}, {s(sSo)}, {s(sT0)}")
    a(f"s_mov_b32 m0, {L_QS}")
    a("s_waitcnt lgkmcnt(0)")
    mk(sA, pQC, 384); mk(sB, pQS, 384)
    a(f"buffer_load_dwordx2 {vp(qr+8)}, {v(vQo0)}, {srd(sA)}, 0 offen")
    a(f"buffer_load_dwordx2 {vp(qr+10)}, {v(vQo0)}, {srd(sB)}, 0 offen")
    mk(sA, pQ, 12288)
    a(f"s_mul_i32 {s(sT0)}, {s(sG)}, 384")
    for k in range(NQL):
        a(f"buffer_load_dwordx4 {v(vQv+k)}, {srd(sA)}, {s(sT0)} offen lds")
        a("s_add_u32 m0, m0, 1024")
    if scpre == 2:
        a("; this workgroup's share of the scale arrays is pulled on chip now; the own pieces are fetched later")
        a(f"s_lshl_b32 {s(sT0)}, s2, 12")
        n_ = 0
        for p in (pKS, pKZ, pVS, pVZ):
            mk(sB, p, 1 << 20)
            for k in range(4):
                if n_ >= spw: a(f"s_waitcnt vmcnt({spw-1})")
                a(f"buffer_load_dwordx4 {v4(64)}, {v(vL16)}, {srd(sB)}, {s(sT0)} offen offset:{1024*k} {scf}"); n_ += 1
    def sc_prefetch():
        a("; whole lines of the scale arrays (shared by 4 workgroups) are pulled on chip first")
        vPv = 62
        a(f"s_and_b32 {s(sT0)}, {s(sI)}, 3"); a(f"s_lshl_b32 {s(sT0)}, {s(sT0)}, 3")
        a(f"v_lshrrev_b32 {v(vX)}, 3, {v(vLane)}"); a(f"v_add_u32 {v(vX)}, {s(sT0)}, {v(vX)}")
        a(f"v_and_b32 {v(vY)}, {SPH-1}, {v(vX)}"); a(f"v_lshrrev_b32 {v(vX)}, {lg(SPH)}, {v(vX)}")
        a(f"v_mul_u32_u24 {v(vX)}, {NG*32768}, {v(vX)}"); a(f"v_mul_u32_u24 {v(vY)}, {GW*32}, {v(vY)}"); a(f"v_add_u32 {v(vX)}, {v(vX)}, {v(vY)}")
        a(f"v_and_b32 {v(vY)}, 7, {v(vLane)}"); a(f"v_lshl_add_u32 {v(vPv)}, {v(vY)}, 4, {v(vX)}")
        for p in (pKS, pKZ, pVS, pVZ):
            mk(sB, p, 1 << 20)
            a(f"s_andn2_b32 {s(sT0)}, {s(sSo)}, 127")
            for k in range(4):
                if spw < 16: a(f"s_waitcnt vmcnt({spw-1})")
                a(f"buffer_load_dwordx4 {v4(64)}, {v(vPv)}, {srd(sB)}, {s(sT0)} offen {spf}")
                a(f"s_add_u32 {s(sT0)}, {s(sT0)}, {hpi*NG*32768}")
    if scpre == 3 and splate is None: sc_prefetch()
    NPF = min(16, spw) if scpre >= 2 and splate is None else 0
    mk(sWS, pWS, WSB); mk(sDB, pDBG, 256); mk(sOUT, pOUT, 12288)
    a(f"v_mov_b32 {v(vMask)}, 0xff")
    def unpack(dst, src):
        a(f"v_lshlrev_b32 {v(dst)}, 16, {v(src)}"); a(f"v_and_b32 {v(dst+1)}, 0xffff0000, {v(src)}")
        a(f"v_lshlrev_b32 {v(dst+2)}, 16, {v(src+1)}"); a(f"v_and_b32 {v(dst+3)}, 0xffff0000, {v(src+1)}")
    cF, sF, aF, bF, rr = t_, t_+4, t_+8, t_+12, t_+16
    a(f"v_add_u32 {v(vA0)}, {L_QS}, {v(vQo0)}"); a(f"v_add_u32 {v(vA1)}, {L_QS}, {v(vQo1)}")
    a(f"v_lshlrev_b32 {v(vH0)}, 1, {v(vQo0)}"); a(f"v_lshlrev_b32 {v(vH1)}, 1, {v(vQo1)}")
    a(f"v_add_u32 {v(vH0)}, {L_QT}, {v(vH0)}"); a(f"v_add_u32 {v(vH1)}, {L_QT}, {v(vH1)}")
    a(f"v_mov_b32 {v(vZ)}, 0")
    a(f"s_mov_b32 {s(sN_)}, 0")
    a(f"s_waitcnt vmcnt({NQL+NPF})")
    a(f"v_xor_b32 {v(qr+10)}, {v(qr+10)}, {v(vSg)}"); a(f"v_xor_b32 {v(qr+11)}, {v(qr+11)}, {v(vSg)}")
    unpack(cF, qr+8); unpack(sF, qr+10)
    a(f"v_and_b32 {v(vSg)}, 0x80000000, {v(vSg)}")
    a(f"s_waitcnt vmcnt({NPF})")
    a("s_mov_b32 exec_hi, 0xffff")
    a("; rotated q (rounded like the reference), stored as (qr[d], +-qr[d+-96]) pairs"); a.label("L_hq")
    a(f"ds_read_b64 {vp(qr)}, {v(vA0)}"); a(f"ds_read_b64 {vp(qr+2)}, {v(vA1)}")
    a(f"v_add_u32 {v(vA0)}, 384, {v(vA0)}"); a(f"v_add_u32 {v(vA1)}, 384, {v(vA1)}")
    a(f"v_add_u32 {v(vZ)}, 1, {v(vZ)}")
    a("s_waitcnt lgkmcnt(0)")
    unpack(aF, qr); unpack(bF, qr+2)
    for e in range(0, 4, 2):
        a(f"v_pk_mul_f32 {vp(aF+e)}, {vp(aF+e)}, {vp(cF+e)}"); a(f"v_pk_mul_f32 {vp(bF+e)}, {vp(bF+e)}, {vp(sF+e)}")
    for e in range(4): a(f"v_cvt_pk_bf16_f32 {v(aF+e)}, {v(aF+e)}, {v(bF+e)}")
    for e in range(4):
        a(f"v_and_b32 {v(bF+e)}, 0xffff0000, {v(aF+e)}"); a(f"v_lshlrev_b32 {v(aF+e)}, 16, {v(aF+e)}")
    for e in range(0, 4, 2): a(f"v_pk_add_f32 {vp(aF+e)}, {vp(aF+e)}, {vp(bF+e)}")
    for e in range(4): a(f"v_cvt_pk_bf16_f32 {v(rr+e)}, {v(aF+e)}, {v(aF+e)}")
    for e in range(4): a(f"v_xor_b32 {v(rr+e)}, {v(rr+e)}, {v(vSg)}")
    for e in range(4):
        a(f"ds_write_b16 {v(vH0)}, {v(rr+e)} offset:{4*e}")
        a(f"ds_write_b16_d16_hi {v(vH1)}, {v(rr+e)} offset:{4*e+2}")
    a(f"ds_write_b32 {v(vCT)}, {v(vZ)} offset:{C_QRDY}")
    a(f"v_add_u32 {v(vH0)}, 768, {v(vH0)}"); a(f"v_add_u32 {v(vH1)}, 768, {v(vH1)}")
    a(f"s_add_u32 {s(sN_)}, {s(sN_)}, 1")
    a(f"s_cmp_lt_u32 {s(sN_)}, {HPG}")
    a("s_cbranch_scc1 L_hq")
    a("s_mov_b32 exec_hi, -1")
    ev(0); evw(0, 7)
    if scpre == 3 and splate is not None:
        lds_wait("L_spl", C_STEP, splate, sT0, 2)
        sc_prefetch()
    if wspre:
        a("; touch the slots of the partials that are handed over last, so that they are on chip by then (data unused)")
        nw = HPG if wspre < 3 else wspre - 2
        a(f"s_add_u32 {s(sT0)}, {s(sG)}, {0 if REV else (HPG-nw)*NG}")
        a(f"s_mul_i32 {s(sT0)}, {s(sT0)}, {GW}"); a(f"s_add_u32 {s(sT0)}, {s(sT0)}, {s(sI)}"); a(f"s_lshl_b32 {s(sT0)}, {s(sT0)}, 10")
        for k in range(nw):
            a(f"buffer_load_dwordx4 {v4(64)}, {v(vL16)}, {srd(sWS)}, {s(sT0)} offen {'sc0 sc1' if wspre == 2 else ''}")
            a(f"s_add_u32 {s(sT0)}, {s(sT0)}, {NG*GW*1024}")
    def epoch_code():
        a("; launch epoch, agreed through d_debug[0]: workgroup 0 proposes at once, the others look later")
        a(f"v_mov_b32 {v(vA0)}, 0")
        a(f"s_mov_b32 {s(sSpin)}, 0")
        a("s_cmp_eq_u32 s2, 0")
        a("s_cbranch_scc1 L_epc")
        lds_wait("L_epw", C_STEP, epk, sT0, 16)
        if eps_:
            a(f"s_load_dword {s(sE)}, {sp(pDBG)}, 0")
            a("s_waitcnt lgkmcnt(0)")
            a(f"s_cmp_lg_u32 {s(sE)}, 0")
            a("s_cbranch_scc1 L_epd")
        a.label("L_ep")
        a("s_mov_b64 exec, 1")
        a(f"buffer_load_dword {v(vY)}, {v(vA0)}, {srd(sDB)}, 0 offen sc0 sc1")
        a("s_waitcnt vmcnt(0)")
        a(f"v_readfirstlane_b32 {s(sE)}, {v(vY)}")
        a("s_mov_b64 exec, -1")
        a(f"s_cmp_lg_u32 {s(sE)}, 0")
        a("s_cbranch_scc1 L_epd")
        a("s_sleep 32")
        a(f"s_add_u32 {s(sSpin)}, {s(sSpin)}, 1")
        a(f"s_cmp_lt_u32 {s(sSpin)}, 8")
        a("s_cbranch_scc1 L_ep")
        a.label("L_epc")
        a(f"s_mul_i32 {s(sE)}, {s(sStart)}, 0x9e3779b1")
        a(f"s_lshr_b32 {s(sT1)}, {s(sE)}, 15"); a(f"s_xor_b32 {s(sE)}, {s(sE)}, {s(sT1)}")
        a(f"s_mul_i32 {s(sE)}, {s(sE)}, 0x85ebca6b")
        a(f"s_lshr_b32 {s(sT1)}, {s(sE)}, 13"); a(f"s_xor_b32 {s(sE)}, {s(sE)}, {s(sT1)}")
        a(f"s_max_u32 {s(sE)}, {s(sE)}, 1")
        a(f"v_mov_b32 {v(qr)}, {s(sE)}"); a(f"v_mov_b32 {v(qr+1)}, 0")
        a("s_mov_b64 exec, 1")
        a(f"buffer_atomic_cmpswap {vp(qr)}, {v(vA0)}, {srd(sDB)}, 0 offen sc0 sc1")
        a("s_waitcnt vmcnt(0)")
        a(f"v_readfirstlane_b32 {s(sT0)}, {v(qr)}")
        a("s_mov_b64 exec, -1")
        a(f"s_cmp_eq_u32 {s(sT0)}, 0"); a(f"s_cselect_b32 {s(sE)}, {s(sE)}, {s(sT0)}")
        a.label("L_epd")
        a(f"v_mov_b32 {v(vZ)}, {s(sE)}")
        a(f"ds_write_b32 {v(vCT)}, {v(vZ)} offset:{C_EPO}")
        a(f"s_lshr_b32 {s(sE+1)}, {s(sE)}, 8"); a(f"s_lshr_b32 {s(sE+2)}, {s(sE)}, 16"); a(f"s_lshr_b32 {s(sE+3)}, {s(sE)}, 24")
    def scale_code():
        a("; the own 32-byte pieces of the scale arrays trickle into LDS, in an order that differs between workgroups")
        assert sc0 + 16*sct + 4 < TX and scpre != 1
        a(f"s_add_u32 {s(sN_)}, {s(sG)}, {sc0}" if scph else f"s_mov_b32 {s(sN_)}, {sc0}")
        a(f"s_mov_b32 {s(sSpin)}, 0")
        mk(sB, pKS, 1 << 20)
        lds_wait("L_sc", C_STEP, s(sN_), sT0, 16 if sct > 1 else 1)
        if scrot:
            a(f"s_lshr_b32 {s(sT0)}, {s(sI)}, 2"); a(f"s_add_u32 {s(sT0)}, {s(sT0)}, {s(sSpin)}"); a(f"s_and_b32 {s(sT0)}, {s(sT0)}, 15")
        else:
            a(f"s_mov_b32 {s(sT0)}, {s(sSpin)}")
        if "samesc" in dbg: a(f"s_lshr_b32 {s(sT0)}, {s(sI)}, 2")
        a(f"s_lshl_b32 {s(sT1)}, {s(sT0)}, 10"); a(f"s_add_u32 m0, {s(sT1)}, {L_SC}")
        a(f"s_mov_b64 {sp(sB)}, {sp(pKS)}")
        for k, p in ((4, pKZ), (8, pVS), (12, pVZ)):
            a(f"s_cmp_ge_u32 {s(sT0)}, {k}"); a(f"s_cselect_b64 {sp(sB)}, {sp(p)}, {sp(sB)}")
        a(f"s_and_b32 {s(sT0)}, {s(sT0)}, 3"); a(f"s_mul_i32 {s(sT0)}, {s(sT0)}, {hpi*NG*32768}"); a(f"s_add_u32 {s(sT0)}, {s(sT0)}, {s(sSo)}")
        if "nosc" not in dbg: a(f"buffer_load_dwordx4 {v(vSv)}, {srd(sB)}, {s(sT0)} offen {scf} lds")
        a(f"s_add_u32 {s(sSpin)}, {s(sSpin)}, 1")
        a(f"s_add_u32 {s(sN_)}, {s(sN_)}, {sct}")
        a(f"s_cmp_lt_u32 {s(sSpin)}, 16")
        a("s_cbranch_scc1 L_sc")
        a("s_waitcnt vmcnt(0)")
    if sc0 < epk:
        scale_code(); epoch_code()
    else:
        epoch_code(); scale_code()
    vx, vks, vvs, vvz, vS4, vPg, vkz, vx2 = 20, 28, 36, 44, 52, 56, 64, 72
    CEXP = (192.0 ** -0.5) * math.log2(math.e)
    for e in list(range(vks, vS4)) + list(range(vkz, vkz+8)): a(f"v_mov_b32 {v(e)}, 0")
    a(f"v_lshlrev_b32 {v(vA0)}, 3, {v(vLane)}"); a(f"v_add_u32 {v(vA0)}, {L_X+REV*(HPG-1)*512*NG}, {v(vA0)}")
    a(f"v_lshlrev_b32 {v(vA1)}, 1, {v(vLane)}"); a(f"v_add_u32 {v(vA1)}, {L_SC+REV*(HPG-1)*128*NG}, {v(vA1)}")
    a(f"v_mov_b32 {v(vH0)}, {L_ST}"); a(f"v_mov_b32 {v(vH1)}, 0")
    a(f"s_mov_b32 {s(sN_)}, {TX+4}")
    def wait_cons(lbl, val, sleep):
        a.label(lbl)
        if sleep: a(f"s_sleep {sleep}")
        a(f"ds_read_b128 {v4(vPg)}, {v(vCT)}")
        a("s_waitcnt lgkmcnt(0)")
        a(f"v_min3_i32 {v(vPg)}, {v(vPg)}, {v(vPg+1)}, {v(vPg+2)}"); a(f"v_min_i32 {v(vPg)}, {v(vPg)}, {v(vPg+3)}")
        a(f"v_readfirstlane_b32 {s(sT0)}, {v(vPg)}")
        a(f"s_cmp_lt_i32 {s(sT0)}, {val}")
        a(f"s_cbranch_scc1 {lbl}")
    wait_cons("L_hp", s(sN_), hsleep)
    for k in range(NG):
        a(f"ds_read_b64 {vp(vx2+2*k)}, {v(vA0)} offset:{512*k}")
        a(f"ds_read_u16_d16_hi {v(vks+k)}, {v(vA1)} offset:{128*k}")
        a(f"ds_read_u16_d16_hi {v(vkz+k)}, {v(vA1)} offset:{4096+128*k}")
    a("s_waitcnt lgkmcnt(0)")
    for k in range(NG):
        a(f"ds_read_u16_d16_hi {v(vvs+k)}, {v(vA1)} offset:{8192+128*k}")
        a(f"ds_read_u16_d16_hi {v(vvz+k)}, {v(vA1)} offset:{12288+128*k}")
    for k in range(NG): a(f"v_fma_f32 {v(vx+k)}, -{v(vkz+k)}, {v(vx2+2*k+1)}, {v(vx2+2*k)}")
    for k in range(NG): a(f"v_mul_f32 {v(vx+k)}, {v(vx+k)}, {v(vks+k)}")
    for k in range(NG): a(f"v_mul_f32 {v(vx+k)}, {hex(f2u(CEXP))}, {v(vx+k)}")
    a(f"v_mov_b32 {v(vS4)}, {v(vx)}")
    for k in range(1, NG): a(f"v_max_f32 {v(vS4)}, {v(vS4)}, {v(vx+k)}")
    row_reduce("v_max_f32", vS4); xrows("v_max_f32", vS4, vU)
    for k in range(NG): a(f"v_sub_f32 {v(vx+k)}, {v(vx+k)}, {v(vS4)}")
    for k in range(NG): a(f"v_exp_f32 {v(vx+k)}, {v(vx+k)}")
    a(f"v_mov_b32 {v(vS4+2)}, {v(vx)}")
    for k in range(1, NG): a(f"v_add_f32 {v(vS4+2)}, {v(vS4+2)}, {v(vx+k)}")
    a("s_waitcnt lgkmcnt(0)")
    for k in range(NG): a(f"v_mul_f32 {v(vx+k)}, {v(vx+k)}, {v(vvs+k)}")
    a(f"v_mul_f32 {v(vS4+1)}, {v(vx)}, {v(vvz)}")
    for k in range(1, NG): a(f"v_fmac_f32 {v(vS4+1)}, {v(vx+k)}, {v(vvz+k)}")
    for k in range(NG): a(f"ds_write_b32 {v(vA0)}, {v(vx+k)} offset:{512*k}")
    row_reduce("v_add_f32", vS4+2); xrows("v_add_f32", vS4+2, vU)
    row_reduce("v_add_f32", vS4+1); xrows("v_add_f32", vS4+1, vU)
    a(f"v_bfi_b32 {v(vS4+2)}, {v(vMask)}, {s(sE+3)}, {v(vS4+2)}")
    a(f"v_mov_b32 {v(vS4+3)}, {v(vS4+1)}")
    a(f"v_add_u32 {v(vH1)}, 1, {v(vH1)}")
    a("s_mov_b64 exec, 1")
    a(f"ds_write_b128 {v(vH0)}, {v4(vS4)}")
    a(f"ds_write_b32 {v(vCT)}, {v(vH1)} offset:{C_PRDY}")
    a("s_mov_b64 exec, -1")
    a(f"v_add_u32 {v(vA0)}, {512*NG*(1-2*REV)}, {v(vA0)}"); a(f"v_add_u32 {v(vA1)}, {128*NG*(1-2*REV)}, {v(vA1)}"); a(f"v_add_u32 {v(vH0)}, 16, {v(vH0)}")
    a(f"s_add_u32 {s(sN_)}, {s(sN_)}, 4")
    a(f"s_cmp_le_u32 {s(sN_)}, 128")
    a("s_cbranch_scc1 L_hp")
    NLD = GW // 8
    vFo, vFl, vKk = 140, vA0, vA1
    vFd, vFt, vO2 = 44, 20, 40
    sPa, sOo, sDry, sPW_ = 36, 37, 38, 40
    assert vFd + 4*NLD*pp <= vFo and not dry and not xpoll and fm, "combine register budget"
    def comb_setup():
        a(f"s_lshr_b32 {s(sHc)}, s2, 3"); a(f"s_and_b32 {s(sBk)}, s2, 7")
        a(f"v_lshrrev_b32 {v(vX)}, 3, {v(vLane)}"); a(f"v_and_b32 {v(vKk)}, 7, {v(vLane)}")
        a(f"v_lshlrev_b32 {v(vX)}, 10, {v(vX)}"); a(f"v_lshl_add_u32 {v(vFl)}, {v(vKk)}, 4, {v(vX)}")
        if gm:
            a(f"v_lshrrev_b32 {v(vX)}, 2, {v(vKk)}"); a(f"v_and_b32 {v(vKk)}, 3, {v(vKk)}"); a(f"v_lshl_add_u32 {v(vKk)}, {v(vKk)}, 2, {v(vX)}")
        a(f"v_lshlrev_b32 {v(vKk)}, 1, {v(vKk)}")
        if fm:
            a(f"v_bfe_u32 {v(vX)}, {v(vLane)}, 4, 1"); a(f"v_lshl_add_u32 {v(vKk)}, {v(vX)}, 6, {v(vKk)}")
            a(f"v_lshrrev_b32 {v(vX)}, 5, {v(vLane)}"); a(f"v_lshl_add_u32 {v(vKk)}, {v(vX)}, 5, {v(vKk)}")
        a(f"s_mov_b32 {s(sSpin)}, 0"); a(f"s_mov_b32 {s(sDry)}, 0")
        a(f"s_mul_i32 {s(sPa)}, {s(sHc)}, {GW*1024}"); a(f"s_lshl_b32 {s(sT3)}, {s(sBk)}, 7"); a(f"s_add_u32 {s(sPa)}, {s(sPa)}, {s(sT3)}")
        a(f"s_mul_i32 {s(sOo)}, {s(sHc)}, 384")
        a(f"s_lshr_b32 {s(sT3)}, {s(sBk)}, 1"); a(f"s_mul_i32 {s(sT3)}, {s(sT3)}, 96"); a(f"s_add_u32 {s(sOo)}, {s(sOo)}, {s(sT3)}")
        a(f"s_and_b32 {s(sT3)}, {s(sBk)}, 1"); a(f"s_lshl_b32 {s(sT3)}, {s(sT3)}, {2 if gm else 4}"); a(f"s_add_u32 {s(sOo)}, {s(sOo)}, {s(sT3)}")
        mk(sPW_, pWS, WSB); mk(sOUT, pOUT, 12288)
    a(f"s_add_u32 {s(sPO)}, {s(sG)}, {(HPG-1)*NG*REV}"); a(f"s_mul_i32 {s(sPO)}, {s(sPO)}, {GW}"); a(f"s_add_u32 {s(sPO)}, {s(sPO)}, {s(sI)}"); a(f"s_lshl_b32 {s(sPO)}, {s(sPO)}, 10")
    comb_setup()
    if dry:
        a("; run the combine code once on an empty buffer, without storing, so that it is in the instruction cache later")
        a(f"s_mov_b32 {s(sDry)}, 1"); a(f"s_mov_b32 {s(sPW_+2)}, 0")
        a("s_branch L_try")
        a.label("L_dryret")
        a(f"s_mov_b32 {s(sDry)}, 0"); a(f"s_mov_b32 {s(sPW_+2)}, {WSB}")
    a(f"v_add_u32 {v(vU)}, {L_QS}, {v(vL16)}")
    wait_cons("L_hf", NST - SPH, 32)
    NFL = HPG - 1
    assert vFo + 4 * NFL <= NV
    for p_ in range(NFL): a(f"ds_read_b128 {v4(vFo+4*p_)}, {v(vU)} offset:{1024*p_}")
    lds_wait("L_hn", C_LAND, NST*12 - FL, sT0, 2)
    for p_ in range(NFL):
        a(f"buffer_store_dwordx4 {v4(vFo+4*p_)}, {v(vL16)}, {srd(sWS)}, {s(sPO)} offen {stf}")
        a(f"{'s_sub_u32' if REV else 's_add_u32'} {s(sPO)}, {s(sPO)}, {NG*GW*1024}")
    lds_wait("L_hl", C_LAND, NST*12, sT0, 1)
    def p_issue(B):
        a(f"s_mov_b32 {s(sT0)}, {s(sPa)}")
        for i in range(NLD):
            a(f"buffer_load_dwordx4 {v4(B+4*i)}, {v(vFl)}, {srd(sPW_)}, {s(sT0)} offen {ldf}")
            if i < NLD-1: a(f"s_add_u32 {s(sT0)}, {s(sT0)}, 8192")
    def p_check(B, younger, ok):
        for i in range(NLD):
            a(f"s_waitcnt vmcnt({younger+NLD-1-i})")
            for e in range(4):
                z = vU if e == 3 else vZ
                if i == 0 and e in (0, 3):
                    a(f"v_xor_b32 {v(z)}, {s(sE+e)}, {v(B+e)}")
                else:
                    a(f"v_bitop3_b32 {v(z)}, {v(z)}, {v(B+4*i+e)}, {s(sE+e)} bitop3:0xf6")
        a(f"v_cndmask_b32 {v(vU)}, {v(vU)}, 0, {sp(sMe)}")
        a(f"v_bitop3_b32 {v(vZ)}, {v(vZ)}, {v(vU)}, {v(vMask)} bitop3:0xa8")
        a(f"v_cmp_ne_u32 vcc, 0, {v(vZ)}")
        a(f"s_cbranch_vccz {ok}")
    def p_math(B):
        if stamp == 2: a("s_memrealtime s[88:89]")
        a(f"v_max_f32 {v(vY)}, {v(B+3)}, {v(B+7)}")
        for i in range(2, NLD, 2): a(f"v_max3_f32 {v(vY)}, {v(vY)}, {v(B+4*i+3)}, {v(B+4*i+7)}")
        a(f"v_max_f32_dpp {v(vY)}, {v(vY)}, {v(vY)} row_ror:8 {DPP}")
        xrows("v_max_f32", vY, vU)
        a(f"v_mov_b32_dpp {v(vY)}, {v(vY)} quad_perm:[0,0,2,2] {DPP}")
        for i in range(NLD): a(f"v_sub_f32_dpp {v(vFt+i)}, {v(B+4*i+3)}, {v(vY)} quad_perm:[0,0,2,2] {DPP}")
        for i in range(NLD): a(f"v_exp_f32 {v(vFt+i)}, {v(vFt+i)}")
        for i in range(NLD):
            sel = f"op_sel:[0,{i&1}" ; selh = f"op_sel_hi:[1,{i&1}"
            for h in range(2):
                if i == 0:
                    a(f"v_pk_mul_f32 {vp(vO2+2*h)}, {vp(B+2*h)}, {vp(vFt)} {sel}] {selh}]")
                else:
                    a(f"v_pk_fma_f32 {vp(vO2+2*h)}, {vp(B+4*i+2*h)}, {vp(vFt+(i&~1))}, {vp(vO2+2*h)} {sel},0] {selh},1]")
    SETS = [vFd + 4*NLD*k for k in range(pp)]
    if stamp == 2: a("s_memrealtime s[86:87]")
    if pp == 1:
        a.label("L_try")
        p_issue(SETS[0]); p_check(SETS[0], 0, "L_ok0")
        if psleep: a(f"s_sleep {psleep}")
    else:
        p_issue(SETS[0]); p_check(SETS[0], 0, "L_ok0")
        for k in range(pp-1):
            p_issue(SETS[k]); a(f"s_sleep {pstag}")
        a.label("L_try")
        for k in range(pp):
            p_issue(SETS[(k+pp-1) % pp]); p_check(SETS[k], NLD*(pp-1), f"L_ok{k}")
    a(f"s_add_u32 {s(sSpin)}, {s(sSpin)}, 1")
    a(f"s_cmp_lt_u32 {s(sSpin)}, 2000000")
    a("s_cbranch_scc1 L_try")
    for k in range(pp-1, -1, -1):
        a.label(f"L_ok{k}")
        p_math(SETS[k])
        if k: a("s_branch L_fin")
    a.label("L_fin")
    a(f"v_permlane32_swap_b32 {v(vO2)}, {v(vO2+1)}")
    a(f"v_permlane32_swap_b32 {v(vO2+2)}, {v(vO2+3)}")
    a(f"v_add_f32 {v(vO2)}, {v(vO2)}, {v(vO2+1)}")
    a(f"v_add_f32 {v(vO2+2)}, {v(vO2+2)}, {v(vO2+3)}")
    a(f"v_permlane16_swap_b32 {v(vO2)}, {v(vO2+2)}")
    a(f"v_add_f32 {v(vO2)}, {v(vO2)}, {v(vO2+2)}")
    a(f"v_add_f32_dpp {v(vO2)}, {v(vO2)}, {v(vO2)} row_ror:8 {DPP}")
    a(f"v_rcp_f32 {v(vX)}, {v(vO2)}")
    a(f"v_readlane_b32 {s(sT1)}, {v(vX)}, 49")
    a(f"v_mul_f32 {v(vO2)}, {s(sT1)}, {v(vO2)}")
    a(f"v_cvt_pk_bf16_f32 {v(vO2)}, {v(vO2)}, {v(vO2)}")
    a("s_mov_b32 exec_lo, 0x00ff00ff"); a("s_mov_b32 exec_hi, 0xff")
    a(f"buffer_store_short {v(vO2)}, {v(vKk)}, {srd(sOUT)}, {s(sOo)} offen {outf}")
    if stamp == 2: a("s_memrealtime s[90:91]")
    if xpoll: a.label("L_cend")
    if stamp:
        a("s_mov_b64 exec, -1")
        a("s_waitcnt vmcnt(0)")
        a(f"s_memrealtime {sp(sT2)}")
        if xpoll:
            a("s_waitcnt lgkmcnt(0)")
            a(f"v_mov_b32 {v(vX)}, {s(sT2)}"); a(f"v_mov_b32 {v(vY)}, 1"); a("s_mov_b64 exec, 1")
            a(f"ds_max_u32 {v(vCT)}, {v(vX)} offset:80"); a(f"ds_add_u32 {v(vCT)}, {v(vY)} offset:84"); a("s_mov_b64 exec, -1")
            a(f"s_cmp_eq_u32 {s(sWave)}, 5"); a("s_cbranch_scc0 L_end")
            a(f"s_cmp_lt_u32 s2, {NG*8}" if REV else f"s_cmp_ge_u32 s2, {256-NG*8}")
            a(f"s_cselect_b32 {s(sT1)}, {1+xpoll}, 1")
            lds_wait("L_sx", 84, s(sT1), sT0, 1)
            lds_wait("L_sy", 80, 0, sT2, 0, cmp="s_cmp_eq_u32")
        wait_cons("L_sw", NST, 1)
        a(f"v_add_u32 {v(vU)}, {L_TS}, {v(vL16)}")
        a(f"ds_read_b128 {v4(64)}, {v(vU)}"); a(f"ds_read_b128 {v4(68)}, {v(vU)} offset:1024")
        a(f"ds_read_b128 {v4(72)}, {v(vCT)} offset:64")
        a("s_waitcnt lgkmcnt(0)")
        a(f"v_max3_u32 {v(72)}, {v(72)}, {v(73)}, {v(74)}"); a(f"v_max_u32 {v(69)}, {v(72)}, {v(75)}")
        a(f"v_mov_b32 {v(70)}, {s(sT2)}")
        a(f"s_lshl_b32 {s(sT0)}, s2, 11"); a(f"s_add_u32 {s(sT0)}, {s(sT0)}, {STAMP_OFF+8192}")
        a(f"buffer_store_dwordx4 {v4(64)}, {v(vL16)}, {srd(sWS)}, {s(sT0)} offen")
        a("s_mov_b64 exec, 1")
        a(f"buffer_store_dwordx4 {v4(68)}, {v(vL16)}, {srd(sWS)}, {s(sT0)} offen offset:1024")
        if stamp == 3:
            a(f"ds_read_b128 {v4(80)}, {v(vCT)} offset:96"); a(f"ds_read_b128 {v4(84)}, {v(vCT)} offset:112"); a("s_waitcnt lgkmcnt(0)")
            a(f"buffer_store_dwordx4 {v4(80)}, {v(vL16)}, {srd(sWS)}, {s(sT0)} offen offset:1040")
            a(f"buffer_store_dwordx4 {v4(84)}, {v(vL16)}, {srd(sWS)}, {s(sT0)} offen offset:1056")
        if stamp == 2:
            a("v_mov_b32 v80, s86"); a("v_mov_b32 v81, s88"); a("v_mov_b32 v82, s90"); a(f"v_mov_b32 v83, {s(sSpin)}")
            a(f"buffer_store_dwordx4 {v4(80)}, {v(vL16)}, {srd(sWS)}, {s(sT0)} offen offset:1040")
        a(f"v_mov_b32 {v(76)}, {s(sStart)}"); a(f"v_mov_b32 {v(77)}, {s(sStart+1)}"); a(f"v_mov_b32 {v(78)}, {s(sT2)}"); a(f"v_mov_b32 {v(79)}, {s(sT3)}")
        if stampe is not None:
            a(f"v_mov_b32 v78, {L_TS+4*stampe}"); a("ds_read_b32 v78, v78"); a("s_waitcnt lgkmcnt(0)")
        a(f"s_lshl_b32 {s(sT0)}, s2, 4"); a(f"s_add_u32 {s(sT0)}, {s(sT0)}, {STAMP_OFF}")
        a(f"buffer_store_dwordx4 {v4(76)}, {v(vL16)}, {srd(sWS)}, {s(sT0)} offen")
    a("s_endpgm")

    sCp, sXo, sKc, sPrev, sOk, sPub, sTn = 16, 17, 18, 19, 20, 21, 22
    sPW, sTau = 24, 25
    vLs, vOwn, vPb, vA, vB, vCc = 5, 6, 7, 8, 9, 10
    PG = 256 // npub
    TQ = int(round(tau0 * 100 * 4096 / 16 / 32))
    a("; ==== pacer ===="); a.label("L_pacer")
    a(f"s_cmp_eq_u32 {s(sWave)}, 6")
    a("s_cbranch_scc0 L_exch")
    sKk, sThr, sW, sDith, sN, sLm, sNow = 4, 5, 6, 7, 8, 9, 10
    sL0, sLn, sW0, sWn, sSl, sIx, sLf, sIf, sN0, sRk, sAk, sAdj, sTl = 12, 13, 14, 15, 16, 17, 18, 19, 20, 21, 22, 23, 24
    vPr, vRef, vTs, vT, vOl, vVs, vSlp, vNr = 8, 12, 14, 15, 16, 17, 18, 19
    if warp == 0: SEG = [(128,)*4, (128,)*4]
    if warp == 1: SEG = [(24,20,20,20), (16,24,24,24), (48,40,40,40), (16,20,24,24), (24,24,20,20), (32,44,48,48), (96,84,80,80)]
    if warp == 2: SEG = [(128,)*4, (32,44,48,48), (96,84,80,80)]
    if warp == 3: SEG = [(24,20,20,20), (16,24,24,24), (48,40,40,40), (16,20,24,24), (24,24,20,20), (32,44,48,48), (48,36,40,48), (48,48,40,32)]
    assert all(sum(x[g] for x in SEG) == NST for g in range(4)) and NG == 4 and (warp == 0 or (rotK == 4 and rotV == 4 and serp))
    a(f"v_mov_b32 {v(vOl)}, -1")
    for k, x in enumerate(SEG):
        a(f"s_mov_b32 {s(sT0)}, {hex(sum(x[g] << (8*g) for g in range(4)))}"); a(f"v_writelane_b32 {v(vOl)}, {s(sT0)}, {k}")
    a(f"s_lshl_b32 {s(sT0)}, {s(sG)}, 3")
    a(f"v_sad_u8 {v(vVs)}, {v(vOl)}, 0, 0")
    a(f"v_bfe_u32 {v(vOl)}, {v(vOl)}, {s(sT0)}, 8")
    a(f"v_cvt_f32_u32 {v(vT)}, {v(vVs)}"); a(f"v_cvt_f32_u32 {v(vF)}, {v(vOl)}")
    a(f"v_rcp_f32 {v(vSlp)}, {v(vF)}"); a(f"v_rcp_f32 {v(vNr)}, {v(vT)}")
    a(f"v_mul_f32 {v(vT)}, {hex(f2u(65536*8/12))}, {v(vT)}"); a(f"v_mul_f32 {v(vF)}, {hex(f2u(n0*256*4))}, {v(vF)}")
    a(f"v_mul_f32 {v(vSlp)}, {v(vSlp)}, {v(vT)}"); a(f"v_mul_f32 {v(vNr)}, {v(vNr)}, {v(vF)}")
    a(f"v_cvt_u32_f32 {v(vSlp)}, {v(vSlp)}"); a(f"v_cvt_u32_f32 {v(vNr)}, {v(vNr)}")
    a(f"v_mul_u32_u24 {v(vOl)}, 12, {v(vOl)}"); a(f"v_lshlrev_b32 {v(vVs)}, 3, {v(vVs)}")
    for r in (sKk, sLm, sLn, sWn, sIx, sLf, sIf, sAk, sAdj, sTl): a(f"s_mov_b32 {s(r)}, 0")
    a(f"s_mov_b32 {s(sThr)}, 32"); a(f"s_mov_b32 {s(sDith)}, 128")
    a(f"v_mov_b32 {v(vTs)}, {L_TS}")
    a(f"s_lshl_b32 {s(sT0)}, {s(sStart)}, 12")
    a(f"s_add_u32 {s(sT0)}, {s(sT0)}, {int(round(t1*100*4096))}")
    a(f"v_mov_b32 {v(vRef)}, {s(sT0)}"); a(f"v_mov_b32 {v(vRef+1)}, {TQ}")
    a(f"ds_write_b64 {v(vCT)}, {vp(vRef)} offset:{C_REF}")
    a(f"v_mov_b32 {v(vT)}, {s(sStart)}"); a(f"ds_write_b32 {v(vTs)}, {v(vT)}")
    a.label("L_g")
    if gsleep: a(f"s_sleep {gsleep}")
    a(f"ds_read_b32 {v(vF)}, {v(vCT)} offset:{C_LAND}")
    a(f"s_memrealtime {sp(sNow)}")
    a(f"ds_read_b128 {v4(vPr)}, {v(vCT)}")
    a(f"ds_read_b64 {vp(vRef)}, {v(vCT)} offset:{C_REF}")
    a("s_waitcnt lgkmcnt(0)")
    a(f"v_readfirstlane_b32 {s(sT3)}, {v(vF)}")
    a(f"v_min3_i32 {v(vT)}, {v(vPr)}, {v(vPr+1)}, {v(vPr+2)}"); a(f"v_min_i32 {v(vPr)}, {v(vT)}, {v(vPr+3)}")
    a(f"v_readfirstlane_b32 {s(sT0)}, {v(vRef)}"); a(f"v_readfirstlane_b32 {s(sT1)}, {v(vRef+1)}")
    a(f"s_lshr_b32 {s(sRk)}, {s(sT1)}, 16"); a(f"s_and_b32 {s(sT1)}, {s(sT1)}, 0xffff")
    if gap:
        a("; a long stall hits the whole chip: until the next reference arrives, do not count it as own lag")
        a(f"s_cmp_lt_u32 {s(sRk)}, {s(sAk)}"); a(f"s_cselect_b32 {s(sAdj)}, {s(sAdj)}, 0")
        a(f"s_cmp_lt_u32 {s(sKk)}, 6"); a(f"s_cselect_b32 {s(sTl)}, {s(sNow)}, {s(sTl)}")
        a(f"s_sub_u32 {s(sT2)}, {s(sNow)}, {s(sTl)}")
        a(f"s_cmp_gt_u32 {s(sT2)}, {int(gap*100)}"); a(f"s_cselect_b32 {s(sT2)}, {s(sT2)}, {int(gap0*100)}")
        a(f"s_sub_u32 {s(sT2)}, {s(sT2)}, {int(gap0*100)}"); a(f"s_lshl_b32 {s(sT2)}, {s(sT2)}, 12")
        a(f"s_add_u32 {s(sT2)}, {s(sT2)}, {s(sAdj)}")
        a(f"s_add_u32 {s(sT0)}, {s(sT0)}, {s(sT2)}")
        a(f"s_cmp_gt_i32 {s(sT3)}, {s(sLm)}")
        a("s_cbranch_scc0 L_gq")
        a(f"s_mov_b32 {s(sTl)}, {s(sNow)}")
        a(f"s_cmp_eq_u32 {s(sT2)}, {s(sAdj)}")
        a("s_cbranch_scc1 L_gq")
        a(f"s_mov_b32 {s(sAdj)}, {s(sT2)}"); a(f"s_add_u32 {s(sAk)}, {s(sKk)}, 1")
        a.label("L_gq")
    a(f"s_max_i32 {s(sLm)}, {s(sLm)}, {s(sT3)}")
    a(f"s_cmp_ge_u32 {s(sLm)}, {s(sLn)}")
    a("s_cbranch_scc0 L_gs")
    a(f"s_mov_b32 {s(sL0)}, {s(sLn)}"); a(f"s_mov_b32 {s(sW0)}, {s(sWn)}")
    a(f"v_readlane_b32 {s(sT2)}, {v(vOl)}, {s(sIx)}"); a(f"v_readlane_b32 {s(sT3)}, {v(vVs)}, {s(sIx)}"); a(f"v_readlane_b32 {s(sSl)}, {v(vSlp)}, {s(sIx)}")
    a(f"s_add_u32 {s(sIx)}, {s(sIx)}, 1")
    a(f"s_add_u32 {s(sLn)}, {s(sLn)}, {s(sT2)}"); a(f"s_add_u32 {s(sWn)}, {s(sWn)}, {s(sT3)}")
    a.label("L_gs")
    a(f"s_add_u32 {s(sT2)}, {s(sLm)}, {lead}")
    a(f"s_cmp_ge_u32 {s(sT2)}, {s(sLf)}")
    a("s_cbranch_scc0 L_gf")
    a(f"v_readlane_b32 {s(sT2)}, {v(vOl)}, {s(sIf)}"); a(f"v_readlane_b32 {s(sN0)}, {v(vNr)}, {s(sIf)}")
    a(f"s_add_u32 {s(sIf)}, {s(sIf)}, 1")
    a(f"s_add_u32 {s(sLf)}, {s(sLf)}, {s(sT2)}")
    a.label("L_gf")
    a(f"s_sub_u32 {s(sW)}, {s(sLm)}, {s(sL0)}"); a(f"s_mul_i32 {s(sW)}, {s(sW)}, {s(sSl)}"); a(f"s_lshr_b32 {s(sW)}, {s(sW)}, 16"); a(f"s_add_u32 {s(sW)}, {s(sW)}, {s(sW0)}")
    a(f"s_cmp_ge_u32 {s(sW)}, {s(sThr)}")
    a("s_cbranch_scc0 L_gn")
    a(f"s_add_u32 {s(sKk)}, {s(sKk)}, 1"); a(f"s_add_u32 {s(sThr)}, {s(sThr)}, 32")
    a(f"v_add_u32 {v(vTs)}, 4, {v(vTs)}"); a(f"v_mov_b32 {v(vT)}, {s(sNow)}"); a(f"ds_write_b32 {v(vTs)}, {v(vT)}")
    a(f"v_mov_b32 {v(vT)}, {s(sKk)}"); a(f"ds_write_b32 {v(vCT)}, {v(vT)} offset:{C_STEP}")
    a("; window = n0 * share + kp * (now - reference time for the loads that have landed)"); a.label("L_gn")
    a(f"s_mul_i32 {s(sT1)}, {s(sT1)}, {s(sW)}"); a(f"s_add_u32 {s(sT0)}, {s(sT0)}, {s(sT1)}")
    a(f"s_lshl_b32 {s(sT1)}, {s(sNow)}, 12"); a(f"s_sub_u32 {s(sT0)}, {s(sT1)}, {s(sT0)}")
    a(f"s_ashr_i32 {s(sT0)}, {s(sT0)}, 6")
    a(f"s_min_i32 {s(sT0)}, {s(sT0)}, 0x40000"); a(f"s_max_i32 {s(sT0)}, {s(sT0)}, {hex((-0x40000) & 0xffffffff)}")
    a(f"s_mul_i32 {s(sT0)}, {s(sT0)}, {int(round(kp*163.84)) if ctl else 0}"); a(f"s_ashr_i32 {s(sT0)}, {s(sT0)}, 12")
    a(f"s_and_b32 {s(sDith)}, {s(sDith)}, 255"); a(f"s_add_u32 {s(sDith)}, {s(sDith)}, {s(sT0)}"); a(f"s_add_u32 {s(sDith)}, {s(sDith)}, {s(sN0)}")
    a(f"s_ashr_i32 {s(sN)}, {s(sDith)}, 8")
    a(f"s_min_i32 {s(sN)}, {s(sN)}, {nmax}"); a(f"s_max_i32 {s(sN)}, {s(sN)}, {nmin}")
    a(f"s_cmp_lt_u32 {s(sKk)}, {kstart}"); a(f"s_cselect_b32 {s(sN)}, {nstart}, {s(sN)}")
    a(f"s_add_u32 {s(sT0)}, {s(sN)}, {RS << 8}")
    a(f"v_lshl_add_u32 {v(vT)}, {v(vPr)}, 8, {s(sT0)}")
    a(f"ds_write_b32 {v(vCT)}, {v(vT)} offset:{C_G}")
    a(f"s_cmp_lt_u32 {s(sKk)}, {NST}")
    a("s_cbranch_scc1 L_g")
    if xpoll:
        a("; idle waves of the workgroups that combine the heads finished last poll as well"); a.label("L_xpoll")
        a(f"s_cmp_lt_u32 s2, {NG*8}" if REV else f"s_cmp_ge_u32 s2, {256-NG*8}")
        a("s_cbranch_scc0 L_end")
        comb_setup()
        a(f"v_and_b32 {v(vY)}, 1, {v(vLane)}"); a(f"v_cmp_eq_u32 {sp(sMe)}, 0, {v(vY)}")
        lds_wait("L_xe", C_EPO, 0, sE, 0, cmp="s_cmp_eq_u32")
        a(f"s_lshr_b32 {s(sE+1)}, {s(sE)}, 8"); a(f"s_lshr_b32 {s(sE+2)}, {s(sE)}, 16"); a(f"s_lshr_b32 {s(sE+3)}, {s(sE)}, 24")
        lds_wait("L_xl", C_LAND, NST*12, sT0, 3)
        a("s_branch L_try")
    a("s_endpgm")
    a("; ==== exchange of progress stamps ===="); a.label("L_exch")
    if not ctl:
        a("s_endpgm")
    mk(sWS, pWS, WSB)
    a(f"s_mov_b32 {s(sT0)}, {LSTR}"); a(f"v_mul_lo_u32 {v(vLs)}, {v(vLane)}, {s(sT0)}")
    a(f"s_lshr_b32 {s(sT0)}, s2, 3"); a(f"s_mul_i32 {s(sPub)}, {s(sX)}, 5"); a(f"s_add_u32 {s(sPub)}, {s(sPub)}, {s(sT0)}")
    a(f"s_and_b32 {s(sPub)}, {s(sPub)}, {PG-1}"); a(f"s_lshr_b32 {s(sT0)}, {s(sT0)}, {lg(PG)}")
    a(f"s_lshl_b32 {s(sT0)}, {s(sT0)}, 3"); a(f"s_add_u32 {s(sT0)}, {s(sT0)}, {s(sX)}"); a(f"s_mul_i32 {s(sT0)}, {s(sT0)}, {LSTR}")
    a("s_waitcnt vmcnt(0)")
    a(f"v_mov_b32 {v(vPb)}, {s(sT0)}")
    a(f"s_mov_b32 {s(sCp)}, 0"); a(f"s_mov_b32 {s(sXo)}, {X_OFF}"); a(f"s_mov_b32 {s(sKc)}, {k0}"); a(f"s_mov_b32 {s(sOk)}, 0")
    a(f"s_mov_b32 {s(sPrev)}, 0"); a(f"s_mov_b32 {s(sPW)}, 0"); a(f"s_mov_b32 {s(sTau)}, {TQ}")
    a.label("L_pc0")
    lds_wait("L_pw1", C_STEP, s(sKc), sT0, hsleep)
    a(f"s_lshl_b32 {s(sT0)}, {s(sKc)}, 2"); a(f"s_add_u32 {s(sT0)}, {s(sT0)}, {L_TS}"); a(f"v_mov_b32 {v(vA)}, {s(sT0)}")
    a(f"ds_read_b32 {v(vOwn)}, {v(vA)}"); a("s_waitcnt lgkmcnt(0)")
    a(f"s_and_b32 {s(sT0)}, {s(sCp)}, {PG-1}"); a(f"s_cmp_eq_u32 {s(sT0)}, {s(sPub)}"); a("s_cbranch_scc0 L_np")
    a("s_mov_b64 exec, 1")
    a(f"buffer_store_dword {v(vOwn)}, {v(vPb)}, {srd(sWS)}, {s(sXo)} offen sc0 sc1")
    a("s_mov_b64 exec, -1")
    a.label("L_np")
    if xm == 1:
        sJ, sOwn, sSum, sCnt, sMx, sBp = 32, 26, 27, 28, 29, 30
        a(f"s_add_u32 {s(sT1)}, {s(sKc)}, {D1}")
        lds_wait("L_pw2", C_STEP, s(sT1), sT0, hsleep)
        a(f"s_add_u32 {s(sBp)}, {s(pWS)}, {s(sXo)}"); a(f"s_addc_u32 {s(sBp+1)}, {s(pWS+1)}, 0")
        for j in range(npub): a(f"s_load_dword {s(sJ+j)}, {sp(sBp)}, {j*LSTR}")
        a(f"s_memrealtime {sp(sTn)}")
        a(f"v_readfirstlane_b32 {s(sOwn)}, {v(vOwn)}")
        a(f"s_mov_b32 {s(sSum)}, 0"); a(f"s_mov_b32 {s(sCnt)}, 0"); a(f"s_mov_b32 {s(sMx)}, -4096")
        a("s_waitcnt lgkmcnt(0)")
        a(f"s_sub_u32 {s(sT3)}, {s(sTn)}, {s(sOwn)}")
        for j in range(npub):
            a(f"s_sub_u32 {s(sT0)}, {s(sJ+j)}, {s(sOwn)}"); a(f"s_add_u32 {s(sT1)}, {s(sT0)}, 4096"); a(f"s_cmp_lt_u32 {s(sT1)}, 0x2000")
            a(f"s_cselect_b32 {s(sT0)}, {s(sT0)}, {s(sT3)}"); a(f"s_addc_u32 {s(sCnt)}, {s(sCnt)}, 0"); a(f"s_add_u32 {s(sSum)}, {s(sSum)}, {s(sT0)}")
            if alpha: a(f"s_max_i32 {s(sMx)}, {s(sMx)}, {s(sT0)}")
        a(f"s_cmp_lt_u32 {s(sCnt)}, {npub//2}"); a("s_cbranch_scc1 L_pskip")
        a(f"s_mul_i32 {s(sSum)}, {s(sSum)}, {int(round((1-alpha)*4096/npub))}")
        a(f"s_lshl_b32 {s(sT0)}, {s(sOwn)}, 12"); a(f"s_add_u32 {s(sT0)}, {s(sT0)}, {s(sSum)}")
        if alpha:
            a(f"s_mul_i32 {s(sMx)}, {s(sMx)}, {int(round(alpha*4096))}"); a(f"s_add_u32 {s(sT0)}, {s(sT0)}, {s(sMx)}")
    else:
        a(f"s_mul_i32 {s(sT0)}, {s(sCp)}, 37"); a(f"s_add_u32 {s(sT0)}, {s(sT0)}, 5"); a(f"s_and_b32 {s(sT0)}, {s(sT0)}, 255")
        a(f"s_cmp_eq_u32 {s(sT0)}, s2"); a("s_cbranch_scc0 L_nagg")
        a(f"s_add_u32 {s(sT1)}, {s(sKc)}, {D1}")
        lds_wait("L_pw2", C_STEP, s(sT1), sT0, hsleep)
        if npub < 64: a(f"s_mov_b64 exec, {hex((1 << npub) - 1)}")
        a(f"buffer_load_dword {v(vA)}, {v(vLs)}, {srd(sWS)}, {s(sXo)} offen sc0 sc1")
        a(f"s_memrealtime {sp(sTn)}")
        a("s_waitcnt vmcnt(0) lgkmcnt(0)")
        a(f"v_sub_u32 {v(vA)}, {v(vA)}, {v(vOwn)}")
        a(f"v_sub_u32 {v(vB)}, {s(sTn)}, {v(vOwn)}")
        a(f"v_add_u32 {v(vCc)}, 4096, {v(vA)}")
        a(f"v_cmp_gt_u32 vcc, 0x2000, {v(vCc)}")
        a(f"v_cndmask_b32 {v(vA)}, {v(vB)}, {v(vA)}, vcc")
        a(f"s_bcnt1_i32_b64 {s(sT2)}, vcc")
        row_reduce("v_add_u32", vA)
        a("s_mov_b64 exec, -1")
        a(f"v_readlane_b32 {s(sT0)}, {v(vA)}, 0")
        for r in range(1, npub // 16):
            a(f"v_readlane_b32 {s(sT1)}, {v(vA)}, {16*r}"); a(f"s_add_u32 {s(sT0)}, {s(sT0)}, {s(sT1)}")
        a(f"s_cmp_lt_u32 {s(sT2)}, {npub//2}"); a("s_cbranch_scc1 L_nagg")
        a(f"s_mul_i32 {s(sT0)}, {s(sT0)}, {4096//npub}")
        a(f"v_lshl_add_u32 {v(vA)}, {v(vOwn)}, 12, {s(sT0)}"); a(f"v_not_b32 {v(vB)}, {v(vA)}")
        a(f"s_add_u32 {s(sT0)}, {s(sXo)}, {R_OFF-X_OFF}")
        a("s_mov_b64 exec, 0xff")
        a(f"buffer_store_dwordx2 {vp(vA)}, {v(vLs)}, {srd(sWS)}, {s(sT0)} offen sc0 sc1")
        a("s_mov_b64 exec, -1")
        a.label("L_nagg")
        a(f"s_add_u32 {s(sT1)}, {s(sKc)}, {D2}")
        lds_wait("L_pw3", C_STEP, s(sT1), sT0, hsleep)
        a(f"s_mul_i32 {s(sT0)}, {s(sX)}, {LSTR}"); a(f"s_add_u32 {s(sT0)}, {s(sT0)}, {s(sXo)}"); a(f"s_add_u32 {s(sT0)}, {s(sT0)}, {R_OFF-X_OFF}")
        a("s_mov_b64 exec, 1")
        a(f"buffer_load_dwordx2 {vp(vA)}, {v(vLs)}, {srd(sWS)}, {s(sT0)} offen sc0 sc1")
        a("s_waitcnt vmcnt(0)")
        a(f"v_readfirstlane_b32 {s(sT0)}, {v(vA)}"); a(f"v_readfirstlane_b32 {s(sT1)}, {v(vB)}"); a(f"v_readfirstlane_b32 {s(sT2)}, {v(vOwn)}")
        a("s_mov_b64 exec, -1")
        a(f"s_xor_b32 {s(sT1)}, {s(sT1)}, {s(sT0)}"); a(f"s_cmp_eq_u32 {s(sT1)}, -1"); a("s_cbranch_scc0 L_pskip")
        a(f"s_lshl_b32 {s(sT2)}, {s(sT2)}, 12"); a(f"s_sub_u32 {s(sT2)}, {s(sT2)}, {s(sT0)}"); a(f"s_add_u32 {s(sT2)}, {s(sT2)}, 0x1000000")
        a(f"s_cmp_lt_u32 {s(sT2)}, 0x2000000"); a("s_cbranch_scc0 L_pskip")
    a(f"s_min_u32 {s(sT2)}, {s(sKc)}, {TX if wext else 0}"); a(f"s_lshl_b32 {s(sT3)}, {s(sKc)}, 5"); a(f"s_add_u32 {s(sT2)}, {s(sT2)}, {s(sT3)}")
    a(f"s_sub_u32 {s(sT1)}, {s(sT0)}, {s(sPrev)}"); a(f"s_sub_u32 {s(sT3)}, {s(sT2)}, {s(sPW)}")
    a(f"v_cvt_f32_u32 {v(vA)}, {s(sT1)}"); a(f"v_cvt_f32_u32 {v(vB)}, {s(sT3)}")
    a(f"v_rcp_f32 {v(vB)}, {v(vB)}")
    a(f"v_mul_f32 {v(vA)}, {hex(f2u(1.0-eps))}, {v(vA)}")
    a(f"v_mul_f32 {v(vA)}, {v(vA)}, {v(vB)}")
    if tlo:
        a(f"v_mul_f32 {v(vB)}, {hex(f2u(1.0-tlo))}, {v(vA)}"); a(f"v_mov_b32 {v(vCc)}, {hex(f2u(float(TQ)))}")
        a(f"v_mul_f32 {v(vA)}, {hex(f2u(1.0+thi))}, {v(vA)}")
        a(f"v_med3_f32 {v(vA)}, {v(vA)}, {v(vB)}, {v(vCc)}")
    a(f"v_cvt_u32_f32 {v(vA)}, {v(vA)}")
    a(f"v_readfirstlane_b32 {s(sT1)}, {v(vA)}")
    a(f"s_mov_b32 {s(sPrev)}, {s(sT0)}"); a(f"s_mov_b32 {s(sPW)}, {s(sT2)}")
    a(f"s_cmp_eq_u32 {s(sOk)}, 0"); a(f"s_cselect_b32 {s(sT1)}, {TQ}, {s(sT1)}"); a(f"s_mov_b32 {s(sOk)}, 1")
    if slew is not None:
        d_ = int(round(slew*TQ))
        a(f"s_add_u32 {s(sT3)}, {s(sTau)}, {d_}"); a(f"s_min_u32 {s(sT1)}, {s(sT1)}, {s(sT3)}")
        a(f"s_sub_u32 {s(sT3)}, {s(sTau)}, {d_}"); a(f"s_max_u32 {s(sT1)}, {s(sT1)}, {s(sT3)}")
        a(f"s_mov_b32 {s(sTau)}, {s(sT1)}")
    else:
        a(f"s_min_u32 {s(sT1)}, {s(sT1)}, 0xffff")
    a(f"s_mul_i32 {s(sT2)}, {s(sT2)}, {s(sT1)}"); a(f"s_sub_u32 {s(sT0)}, {s(sT0)}, {s(sT2)}")
    a(f"s_pack_ll_b32_b16 {s(sT1)}, {s(sT1)}, {s(sKc)}")
    a(f"v_mov_b32 {v(vA)}, {s(sT0)}"); a(f"v_mov_b32 {v(vB)}, {s(sT1)}")
    a(f"ds_write_b64 {v(vCT)}, {vp(vA)} offset:{C_REF}")
    a.label("L_pskip")
    a(f"s_add_u32 {s(sCp)}, {s(sCp)}, 1"); a(f"s_add_u32 {s(sXo)}, {s(sXo)}, {npub*LSTR}"); a(f"s_add_u32 {s(sKc)}, {s(sKc)}, {C}")
    a(f"s_cmp_lt_u32 {s(sKc)}, {NST-(D1 if xm else D2)-2}"); a("s_cbranch_scc1 L_pc0")
    if xpoll >= 2: a("s_branch L_xpoll")
    a.label("L_end")
    a("s_endpgm")
    a.raw('.section .rodata,"a"')
    a.raw(".p2align 6"); a.raw(f".amdhsa_kernel {KN}")
    a.raw(f"  .amdhsa_next_free_vgpr {NV}"); a.raw("  .amdhsa_next_free_sgpr 96"); a.raw(f"  .amdhsa_accum_offset {NV}")
    a.raw("  .amdhsa_group_segment_fixed_size 0"); a.raw("  .amdhsa_kernarg_size 112"); a.raw("  .amdhsa_user_sgpr_count 2")
    a.raw("  .amdhsa_user_sgpr_kernarg_segment_ptr 1"); a.raw("  .amdhsa_system_sgpr_workgroup_id_x 1"); a.raw(".end_amdhsa_kernel")
    return a.text()

if __name__ == "__main__":
    import argparse
    ap = argparse.ArgumentParser()
    ap.add_argument("-o", default="standalone__kv_cache_quant_pre_rope_vs_post_rope__decode.s")
    args = ap.parse_args()
    open(args.o, "w").write(gen())
```

```python
import sys, math, struct
from asmb import Asm

KN = "standalone__kv_cache_quant_pre_rope_vs_post_rope__decode_kernel"
HS = 16384 * 768
KVB = 32 * HS
CSB = 16384 * 384
WSB = 1610612736
X_OFF = 32 << 20
R_OFF = 40 << 20
STAMP_OFF = 1 << 30
SB = 12288

def f2u(f): return struct.unpack("<I", struct.pack("<f", f))[0]
HEADER = open("standalone__kv_cache_quant_pre_rope_vs_post_rope__decode.s.ref").read().split("; Override launch")[0]

def gen(NG=4, RS=9, nmin=12, nmax=36, n0=22.0, kp=6.0, tau0=6.38, t1=3.3, k0=8, C=16, D1=4, D2=10, npub=8, LSTR=4352, eps=0.0,
        rotV=4, rotK=4, F=3, stamp=0, csleep=1, hsleep=8, psleep=1, ipre=2, ctl=1, stf="sc0 sc1", ldf="sc0 sc1", csf="", scf="",
        wext=0, dbg="", epk=16, kstart=4, nstart=24, csw=4, sct=4, sc0=16, roles=(4,0,1,2,7,3,5,6), tlo=0.03, gsleep=1, scpre=3, spw=16, xm=1, serp=1, alpha=0.2, thi=0.02, boost=None, dry=0, xpoll=0, kend=None, outf="sc0 sc1", gm=1, fm=1, pre=3, fine=1, gfresh=2, wspre=3, pp=2, pstag=6, csmode=2, scph=1, scrot=1, splate=None, eps_=1, tlbp=0, tlbf="", stampe=None, spf="", cs0f=None, warp=1, lead=22, FL=30, slew=0.01, gap=1.0, gap0=0.15, bprio=0, hold=0, blk=0, direct=0, opre=0):
    GW = 256 // NG; SPH = 4 * NG; HPG = 32 // NG; NQ = NG; PD = max(1, HPG // 4)
    A = min(4, HPG)
    lg = lambda x: x.bit_length() - 1
    NST = 256
    REV = 1 if (serp and NQ > 1) else 0
    TX = 128 - 4 * HPG
    L_RING = 0
    L_SC = RS * SB
    L_X = L_SC + 16384
    L_QS = L_X + 16384
    L_QT = L_QS + HPG * 1024
    L_ST = L_QT + HPG * 768
    L_TS = L_ST + HPG * 16
    L_CT = L_TS + 1088
    C_LAND, C_STEP, C_REF, C_QRDY, C_PRDY, C_EPO, C_G, C_DONE = 16, 20, 24, 32, 36, 40, 44, 48
    lds = L_CT + 256
    assert lds <= 163840, lds
    a = Asm()
    a.raw(HEADER.rstrip("\n"))
    a.raw(f"; @launch grid=(256,1,1) block=(512,1,1) lds={lds}")
    a.raw('.amdgcn_target "amdgcn-amd-amdhsa--gfx950"')
    for l in f"""Overview (256 workgroups, HBM-bandwidth bound; a workgroup owns {64*NG} rows x {HPG} heads, a step is 16 rows of one head):
 * loader wave: streams all K steps, then all V steps, into an LDS ring with LDS-DMA loads.
 * balancer wave: picks how many loads the loader keeps in flight ({nmin}..{nmax}) from how far this workgroup is behind or
   ahead of the others (flow control against the unfair memory arbitration between dies).  That keeps the chip's reads in a
   few narrow address windows (better DRAM efficiency) and lets all workgroups finish together.  No wave ever waits for a
   point in time: the clock is only read to compare progress, s_sleep appears only in loops that poll for data.
 * exchange wave: a few workgroups publish progress time stamps through d_ws, everybody averages them (speed only).
 * 4 consumer waves, K steps: logit = ks * sum_d (k[d]-kz) * (qr[d]*cos[d] +- qr[d+-96]*sin[d+-96])  (RoPE moved onto q).
 * helper wave: rotated q table, scales, softmax weights relative to the true max of the workgroup's rows.
 * consumers, V steps: 48 columns each; per head one partial (max, sum, 192 values) tagged with a per-launch epoch
   (agreed through d_debug[0]) so that stale contents of d_ws are never accepted.
 * The helper of workgroup i finally combines 24 output columns (i&7) of head (i>>3) from all partials.""".split("\n"):
        a.raw("; " + l)
    a.raw(".text"); a.raw(f".globl {KN}"); a.raw(".p2align 8"); a.raw(f".type {KN},@function"); a.raw(f"{KN}:")
    srd = lambda b: f"s[{b}:{b+3}]"
    sp = lambda i: f"s[{i}:{i+1}]"
    v = lambda i: f"v{i}"
    vp = lambda i: f"v[{i}:{i+1}]"
    v4 = lambda i: f"v[{i}:{i+3}]"
    s = lambda i: f"s{i}"
    DPP = "row_mask:0xf bank_mask:0xf"
    pQ, pK, pKS, pKZ, pV, pVS, pVZ, pQC, pQS, pKC, pKSN, pOUT, pDBG, pWS = range(48, 76, 2)
    sWave, sG, sI, sX = 76, 77, 78, 79
    sT0, sT1, sT2, sT3 = 80, 81, 82, 83
    sStart = 84
    def mk(b, p, n):
        a(f"s_mov_b32 {s(b)}, {s(p)}"); a(f"s_mov_b32 {s(b+1)}, {s(p+1)}"); a(f"s_mov_b32 {s(b+2)}, {n}"); a(f"s_mov_b32 {s(b+3)}, 0x20000")
    vLane, vL16, vCT, vF = 1, 2, 3, 4
    def lds_wait(lbl, off, val, dst, sleep, cmp="s_cmp_lt_i32"):
        a.label(lbl)
        if sleep: a(f"s_sleep {sleep}")
        a(f"ds_read_b32 {v(vF)}, {v(vCT)} offset:{off}")
        a("s_waitcnt lgkmcnt(0)")
        a(f"v_readfirstlane_b32 {s(dst)}, {v(vF)}")
        a(f"{cmp} {s(dst)}, {val}")
        a(f"s_cbranch_scc1 {lbl}")
    def row_reduce(op, x):
        a(f"{op}_dpp {v(x)}, {v(x)}, {v(x)} quad_perm:[1,0,3,2] {DPP}")
        a(f"{op}_dpp {v(x)}, {v(x)}, {v(x)} quad_perm:[2,3,0,1] {DPP}")
        a(f"{op}_dpp {v(x)}, {v(x)}, {v(x)} row_half_mirror {DPP}")
        a(f"{op}_dpp {v(x)}, {v(x)}, {v(x)} row_mirror {DPP}")
    def xrows(op, x, t1_):
        a(f"v_mov_b32 {v(t1_)}, {v(x)}")
        a(f"v_permlane32_swap_b32 {v(x)}, {v(t1_)}")
        a(f"{op} {v(x)}, {v(x)}, {v(t1_)}")
        a(f"v_mov_b32 {v(t1_)}, {v(x)}")
        a(f"v_permlane16_swap_b32 {v(x)}, {v(t1_)}")
        a(f"{op} {v(x)}, {v(x)}, {v(t1_)}")

    def ev(k):
        if stamp == 3: a(f"s_memrealtime s[{86+2*k}:{87+2*k}]")
    def evw(k, slot, base=None):
        if stamp == 3:
            a("s_waitcnt lgkmcnt(0)"); a(f"v_mov_b32 {v(vF)}, s{86+2*k if base is None else base}"); a(f"ds_write_b32 {v(vCT)}, {v(vF)} offset:{96+4*slot}")
    bJ, bS, bM, bB = 40, 41, 42, 43
    def blk_init():
        a(f"s_mov_b32 {s(bJ)}, 0"); a(f"s_mov_b32 {s(bS)}, 0"); a(f"s_mov_b32 {s(bB)}, 0")
        a(f"s_cmp_eq_u32 {s(sG)}, 0"); a(f"s_cselect_b32 {s(bM)}, 6, 5")
    def blk_slot(u):
        a(f"s_mov_b32 {s(bJ)}, 0"); a(f"s_add_u32 {s(bS)}, {s(bS)}, 1")
        a(f"s_sub_u32 {s(sT0)}, {HPG}, {s(bM)}")
        a(f"s_cmp_eq_u32 {s(bS)}, 4")
        a(f"s_cselect_b32 {s(bB)}, {s(bM)}, {s(bB)}"); a(f"s_cselect_b32 {s(bM)}, {s(sT0)}, {s(bM)}"); a(f"s_cselect_b32 {s(sT0)}, 0, 4")
        a(f"s_add_u32 {s(u)}, {s(u)}, {s(sT0)}"); a(f"s_and_b32 {s(u)}, {s(u)}, {SPH-1}")
    def blk_head(dst):
        a(f"s_sub_u32 {s(sT0)}, {s(bM)}, {s(bJ)}"); a(f"s_sub_u32 {s(sT0)}, {s(sT0)}, 1")
        a(f"s_bitcmp1_b32 {s(bS)}, 0"); a(f"s_cselect_b32 {s(sT0)}, {s(sT0)}, {s(bJ)}"); a(f"s_add_u32 {s(dst)}, {s(sT0)}, {s(bB)}")
    sK = 4
    sBase, sOff, sT, sGw, sEnd, sN, sRotK, sRotV = 8, 9, 10, 11, 12, 15, 16, 17
    vI, vT, vG = 5, 6, 7
    G0 = ((RS if hold is None else pre) << 8) | nstart
    assert rotK % 4 == 0 and rotV % 4 == 0 and roles[0] == 4 and (NG-1)*rotK < SPH and nstart >= 24
    a("s_cmp_ge_u32 s2, 256")
    a("s_cbranch_scc1 L_end")
    a(f"s_load_dwordx2 {sp(sK)}, s[0:1], 8")
    if stamp: a(f"s_memrealtime {sp(sStart)}")
    a(f"v_readfirstlane_b32 {s(sWave)}, v0")
    a(f"s_and_b32 {s(sX)}, s2, 7")
    a(f"s_lshr_b32 {s(sI)}, s2, {3+lg(NG)+lg(A)}")
    a(f"s_lshl3_add_u32 {s(sI)}, {s(sI)}, {s(sX)}")
    a(f"s_lshr_b32 {s(sG)}, s2, 3")
    a(f"s_lshr_b32 {s(sT0)}, {s(sG)}, {lg(NG)}")
    a(f"s_and_b32 {s(sG)}, {s(sG)}, {NG-1}")
    a(f"s_and_b32 {s(sT0)}, {s(sT0)}, {A-1}")
    assert A == 4
    a(f"s_lshl2_add_u32 {s(sI)}, {s(sI)}, {s(sT0)}")
    a(f"s_cmp_lt_u32 {s(sWave)}, 64")
    a.lines.append("    s_cbranch_scc0 L_init")
    if ipre == 2:
        a(f"s_getpc_b64 {sp(26)}")
        a.label("L_pc", flush=False)
        a(f"s_lshl_b32 {s(sT1)}, s2, 6"); a(f"s_and_b32 {s(sT1)}, {s(sT1)}, 0x3e00")
        a(f"v_lshl_add_u32 v5, v0, 3, {s(sT1)}")
        a(f"v_min_u32 v5, L_end-L_pc, v5")
        a(f"global_load_dword v7, v5, {sp(26)}")
    a(f"v_lshlrev_b32 {v(vL16)}, 4, v0")
    a(f"s_mul_i32 {s(sOff)}, {s(sG)}, {HS + rotK*GW*SB}")
    a(f"s_mul_i32 {s(sT0)}, {s(sI)}, {SB}")
    a("s_mov_b32 m0, 0")
    a(f"s_add_u32 {s(sOff)}, {s(sOff)}, {s(sT0)}")
    a(f"s_mov_b32 {s(sK+2)}, {KVB}"); a(f"s_mov_b32 {s(sK+3)}, 0x20000")
    a(f"s_movk_i32 {s(sEnd)}, {SB}")
    a("s_waitcnt lgkmcnt(0)")
    ev(0)
    a.label("L_first", flush=False)
    for k in range(4):
        if pre > 2 and k % 2 == 0: a(f"s_waitcnt vmcnt({nstart-2})")
        a(f"buffer_load_dwordx4 {v(vL16)}, {srd(sK)}, {s(sOff)} offen offset:{k*1024} nt lds")
    a("s_addk_i32 m0, 4096"); a(f"s_addk_i32 {s(sOff)}, 4096")
    a(f"s_cmp_lg_u32 m0, {s(sEnd)}")
    a.lines.append("    s_cbranch_scc1 L_first")
    a(f"s_addk_i32 {s(sEnd)}, {SB}"); a(f"s_add_u32 {s(sOff)}, {s(sOff)}, {GW*SB-SB}")
    a(f"s_cmp_lt_u32 m0, {pre*SB}")
    a.lines.append("    s_cbranch_scc1 L_first")
    a(f"s_sub_u32 {s(sOff)}, {s(sOff)}, {GW*SB-SB}")
    ev(1)
    a("s_barrier")
    a(f"s_load_dwordx2 {sp(pV)}, s[0:1], 32")
    a("s_setprio 3")
    a(f"s_mul_i32 {s(sBase)}, {s(sG)}, {HS}")
    a(f"s_add_u32 {s(sBase)}, {s(sBase)}, {s(sT0)}")
    a(f"s_mul_i32 {s(sRotK)}, {s(sG)}, {rotK}")
    a(f"s_mul_i32 {s(sRotV)}, {s(sG)}, {rotV}")
    if blk: blk_init()
    a(f"v_mov_b32 {v(vCT)}, {L_CT}")
    if stamp == 3:
        a("s_waitcnt vmcnt(23)"); ev(2); evw(0, 0, sStart); evw(0, 1); evw(1, 2); evw(2, 3)
    if ipre == 2: a(f"s_waitcnt vmcnt({nstart})")
    a(f"s_mov_b32 {s(sT)}, {pre-1}")
    a(f"v_mov_b32 {v(vI)}, {12*pre}"); a(f"v_mov_b32 {v(vG)}, {G0}")
    a("s_waitcnt lgkmcnt(0)")
    a("s_branch L_next")
    a("; ==== all other waves ===="); a.label("L_init")
    a("s_load_dwordx16 s[48:63], s[0:1], 0")
    a("s_load_dwordx8 s[64:71], s[0:1], 64")
    a("s_load_dwordx4 s[72:75], s[0:1], 96")
    if not stamp: a(f"s_memrealtime {sp(sStart)}")
    a(f"v_and_b32 {v(vLane)}, 63, v0")
    a(f"s_lshr_b32 {s(sWave)}, {s(sWave)}, 4")
    a(f"s_lshr_b32 {s(sWave)}, {hex(sum(r << (4*k) for k, r in enumerate(roles)))}, {s(sWave)}")
    a(f"s_and_b32 {s(sWave)}, {s(sWave)}, 7")
    if ipre == 1:
        a(f"s_cmp_eq_u32 {s(sWave)}, 7")
        a("s_cbranch_scc0 L_nopf")
        a(f"s_getpc_b64 {sp(26)}")
        a.label("L_pc", flush=False)
        a(f"s_sub_u32 s26, s26, L_pc-{KN}"); a("s_subb_u32 s27, s27, 0")
        a(f"s_lshr_b32 {s(sT0)}, s2, 3"); a(f"s_lshl_b32 {s(sT0)}, {s(sT0)}, 9")
        a(f"v_lshl_add_u32 v5, {v(vLane)}, 3, {s(sT0)}")
        a(f"v_min_u32 v5, L_end-{KN}, v5")
        a(f"global_load_dword v7, v5, {sp(26)}")
        a.label("L_nopf")
    a(f"v_lshlrev_b32 {v(vL16)}, 4, {v(vLane)}")
    a(f"v_mov_b32 {v(vCT)}, {L_CT}")
    a(f"v_cmp_eq_u32 vcc, {C_G//4}, {v(vLane)}")
    a(f"v_mov_b32 v5, {G0}")
    a(f"v_lshl_add_u32 v6, {v(vLane)}, 2, {v(vCT)}")
    a(f"v_cndmask_b32 v5, 0, v5, vcc")
    if hold is not None:
        a(f"v_cmp_gt_u32 vcc, 4, {v(vLane)}"); a(f"v_cndmask_b32 v5, v5, {pre-RS}, vcc")
    a("ds_write_b32 v6, v5")
    a("s_waitcnt lgkmcnt(0)")
    a("s_barrier")
    a("s_branch L_notld")
    a.label("L_next")
    a(f"s_add_u32 {s(sT)}, {s(sT)}, 1")
    a(f"s_cmp_eq_u32 m0, {RS*SB}"); a("s_cselect_b32 m0, 0, m0")
    a(f"s_waitcnt lgkmcnt({1 if gfresh else 4})")
    a(f"v_readfirstlane_b32 {s(sGw)}, {v(vG)}")
    a(f"s_add_u32 {s(sEnd)}, m0, {SB}")
    a(f"s_add_u32 {s(sOff)}, {s(sOff)}, {GW*SB-SB}")
    a(f"s_and_b32 {s(sT0)}, {s(sT)}, 3")
    a.lines.append("    s_cbranch_scc0 L_addr")
    a.label("L_aj", flush=False)
    a(f"s_lshr_b32 {s(sT0)}, {s(sGw)}, 8")
    if not gfresh: a(f"ds_read_b32 {v(vG)}, {v(vCT)} offset:{C_G}")
    a(f"s_cmp_gt_u32 {s(sT0)}, {s(sT)}")
    a.lines.append("    s_cbranch_scc0 L_full")
    a(f"s_and_b32 {s(sN)}, {s(sGw)}, 255")
    a.hist = []
    def tree(lo, hi):
        if lo == hi:
            a(f"s_branch L_v{lo}"); return
        mid = (lo + hi + 1) // 2
        a(f"s_cmp_ge_i32 {s(sN)}, {mid}"); a(f"s_cbranch_scc1 L_t_{mid}_{hi}" if mid < hi else f"s_cbranch_scc1 L_v{hi}")
        tree(lo, mid - 1)
        if mid < hi:
            a.label(f"L_t_{mid}_{hi}")
            tree(mid, hi)
    tree(nmin, nmax)
    for n in range(nmin, nmax + 1):
        a.label(f"L_v{n}")
        for q in range(3):
            a(f"s_waitcnt vmcnt({n-1})")
            a(f"buffer_load_dwordx4 {v(vL16)}, {srd(sK)}, {s(sOff)} offen offset:{q*1024} nt lds")
            if gfresh and q == gfresh - 1: a(f"ds_read_b32 {v(vG)}, {v(vCT)} offset:{C_G}")
        a(f"v_subrev_u32 {v(vT)}, {n-3}, {v(vI)}")
        a("s_add_u32 m0, m0, 3072")
        a(f"ds_write_b32 {v(vCT)}, {v(vT)} offset:{C_LAND}")
        a(f"v_add_u32 {v(vI)}, 3, {v(vI)}")
        a(f"s_add_u32 {s(sOff)}, {s(sOff)}, 3072")
        a(f"s_cmp_lg_u32 m0, {s(sEnd)}")
        a.lines.append(f"    s_cbranch_scc1 L_v{n}")
        a.lines.append("    s_branch L_next")
    a.label("L_full")
    if gfresh: a(f"ds_read_b32 {v(vG)}, {v(vCT)} offset:{C_G}")
    a("s_waitcnt lgkmcnt(0)")
    a(f"v_readfirstlane_b32 {s(sGw)}, {v(vG)}")
    a("s_branch L_aj")
    a("; every 4th step: new head and/or new row range"); a.label("L_addr")
    a(f"s_cmp_lt_u32 {s(sT)}, 128")
    a("s_cbranch_scc0 L_av")
    if blk:
        a(f"s_add_u32 {s(bJ)}, {s(bJ)}, 1")
        a(f"s_cmp_lt_u32 {s(bJ)}, {s(bM)}")
        a("s_cbranch_scc1 L_ab")
        blk_slot(sRotK)
        a.label("L_ab")
        blk_head(sT1)
        a(f"s_mov_b32 {s(sT0)}, {s(sRotK)}")
    else:
        a(f"s_lshr_b32 {s(sT0)}, {s(sT)}, {2+lg(HPG)}"); a(f"s_lshl_b32 {s(sT0)}, {s(sT0)}, 2")
        a(f"s_add_u32 {s(sT0)}, {s(sT0)}, {s(sRotK)}")
        a(f"s_bfe_u32 {s(sT1)}, {s(sT)}, {hex((lg(HPG) << 16) | 2)}")
        if serp:
            a(f"s_bitcmp1_b32 {s(sT)}, {2+lg(HPG)}"); a(f"s_cselect_b32 {s(sT2)}, {HPG-1}, 0"); a(f"s_xor_b32 {s(sT1)}, {s(sT1)}, {s(sT2)}")
    a("s_branch L_ak")
    a.label("L_av")
    a(f"s_cmp_eq_u32 {s(sT)}, {NST}")
    a("s_cbranch_scc1 L_drain")
    a(f"s_mov_b32 {s(sK)}, {s(pV)}"); a(f"s_mov_b32 {s(sK+1)}, {s(pV+1)}")
    a(f"s_add_u32 {s(sT0)}, {s(sT)}, {s(sRotV)}")
    a(f"s_bfe_u32 {s(sT1)}, {s(sT)}, {hex((lg(HPG) << 16) | lg(SPH))}")
    if REV: a(f"s_xor_b32 {s(sT1)}, {s(sT1)}, {HPG-1}")
    a.label("L_ak")
    a(f"s_and_b32 {s(sT0)}, {s(sT0)}, {SPH-1}")
    a(f"s_mul_i32 {s(sT0)}, {s(sT0)}, {GW*SB}"); a(f"s_mul_i32 {s(sT1)}, {s(sT1)}, {NG*HS}")
    a(f"s_add_u32 {s(sOff)}, {s(sT0)}, {s(sT1)}"); a(f"s_add_u32 {s(sOff)}, {s(sOff)}, {s(sBase)}")
    a("s_branch L_aj")
    a.label("L_drain")
    for k in ((36, 24, 12, 0) if nmax > 36 else (24, 12, 0)):
        a(f"v_mov_b32 {v(vT)}, {NST*12-k}")
        a(f"s_waitcnt vmcnt({k})")
        a(f"ds_write_b32 {v(vCT)}, {v(vT)} offset:{C_LAND}")
    a("s_endpgm")

    a.label("L_notld")
    a(f"s_cmp_gt_u32 {s(sWave)}, 4")
    a("s_cbranch_scc1 L_aux")
    sC, sS, sWS = 4, 8, 12
    sCo, sNeed, sLand, sSl, sN_, sQ_, sSel0, sSel1, sU, sPO, sE = 16, 17, 18, 19, 20, 21, 22, 23, 24, 25, 28
    sMsk = 32
    vRow, vRa, vScA, vXa, vKz, vPrg, vPa, vC, vS1, vQa, vX0, vSc0 = 5, 6, 7, 8, 9, 10, 11, 16, 17, 18, 19, 20
    vAc, vSW = 12, 14
    vY, vZ, vMask = 21, 22, 23
    vW, vD, vQ, vTm, vCur, vNxt = 24, 36, 48, 60, 72, 120
    NV = 168
    a("; ==== consumers ====")
    a(f"v_lshrrev_b32 {v(vY)}, 4, {v(vLane)}")
    a(f"v_and_b32 {v(vZ)}, 15, {v(vLane)}")
    a(f"v_mul_u32_u24 {v(vC)}, 384, {v(vY)}")
    a(f"v_lshl_add_u32 {v(vC)}, {v(vZ)}, 3, {v(vC)}")
    a(f"v_cmp_gt_u32 vcc, 8, {v(vZ)}")
    a(f"v_xor_b32 {v(vS1)}, 64, {v(vC)}")
    a(f"s_mul_i32 {s(sU)}, {s(sG)}, {rotK}"); a(f"s_and_b32 {s(sU)}, {s(sU)}, {SPH-1}")
    a(f"s_lshl_b32 {s(sT0)}, {s(sI)}, 2"); a(f"s_add_u32 {s(sT0)}, {s(sT0)}, {s(sWave)}"); a(f"s_mul_i32 {s(sT3)}, {s(sT0)}, 1536")
    a(f"s_mul_i32 {s(sCo)}, {s(sU)}, {GW*6144}"); a(f"s_add_u32 {s(sCo)}, {s(sCo)}, {s(sT3)}")
    a("s_waitcnt lgkmcnt(0)")
    mk(sC, pKC, CSB); mk(sS, pKSN, CSB)
    def issue_cs(dst):
        for i in range(3):
            a(f"buffer_load_dwordx2 {vp(dst+2*i)}, {v(vC)}, {srd(sC)}, {s(sCo)} offen offset:{128*i} {csf}")
            a(f"buffer_load_dwordx2 {vp(dst+6+2*i)}, {v(vS1)}, {srd(sS)}, {s(sCo)} offen offset:{128*i} {csf}")
        a(f"s_add_u32 {s(sCo)}, {s(sCo)}, {GW*6144}")
    def pack_cs(dst, src):
        for i in range(3):
            for e in range(2):
                a(f"v_cndmask_b32 {v(vW+2*i+e)}, {v(src+6+2*((i+2)%3)+e)}, {v(src+6+2*((i+1)%3)+e)}, vcc")
        for i in range(3):
            c0, s0 = src+2*i, vW+2*i
            a(f"v_perm_b32 {v(dst+4*i+0)}, {v(s0)}, {v(c0)}, {s(sSel0)}")
            a(f"v_perm_b32 {v(dst+4*i+1)}, {v(s0)}, {v(c0)}, {s(sSel1)}")
            a(f"v_perm_b32 {v(dst+4*i+2)}, {v(s0+1)}, {v(c0+1)}, {s(sSel0)}")
            a(f"v_perm_b32 {v(dst+4*i+3)}, {v(s0+1)}, {v(c0+1)}, {s(sSel1)}")
    ev(0)
    a(f"s_lshl_b32 {s(sT0)}, {s(sWave)}, 2"); a(f"v_add_u32 {v(vPa)}, {s(sT0)}, {v(vCT)}"); a(f"v_mov_b32 {v(vPrg)}, 0")
    for k in range(csw):
        issue_cs(vNxt + 12*k)
        if hold == -1-k: a(f"ds_write_b32 {v(vPa)}, {v(vPrg)}")
    ev(1)
    mk(sWS, pWS, WSB)
    a(f"s_mov_b32 {s(sSel0)}, 0x05040100"); a(f"s_mov_b32 {s(sSel1)}, 0x07060302")
    a(f"s_lshl_b32 {s(sT0)}, {s(sWave)}, 2")
    a(f"v_add_u32 {v(vY)}, {s(sT0)}, {v(vY)}")
    a(f"v_mul_u32_u24 {v(vRow)}, 768, {v(vY)}"); a(f"v_lshl_add_u32 {v(vRow)}, {v(vZ)}, 4, {v(vRow)}")
    a(f"v_lshlrev_b32 {v(vX0)}, 3, {v(vY)}"); a(f"v_add_u32 {v(vX0)}, {L_X}, {v(vX0)}")
    a(f"v_lshlrev_b32 {v(vQa)}, 4, {v(vZ)}"); a(f"v_add_u32 {v(vQa)}, {L_QT}, {v(vQa)}")
    a(f"v_mov_b32 {v(vMask)}, 0xff")
    a(f"s_mul_i32 {s(sNeed)}, {s(sWave)}, 3"); a(f"s_add_u32 {s(sNeed)}, {s(sNeed)}, 3")
    a(f"s_mov_b32 {s(sLand)}, 0"); a(f"s_mov_b32 {s(sSl)}, 0"); a(f"s_mov_b32 {s(sN_)}, 0"); a(f"s_mov_b32 {s(sQ_)}, 0")
    for k in range(4):
        a(f"s_waitcnt vmcnt({6*(min(4, k+csw)-k-1)})")
        if k + csw < 4: issue_cs(vNxt + 12*(k+csw))
        if hold == k: a(f"ds_write_b32 {v(vPa)}, {v(vPrg)}")
        pack_cs(vCur + 12*k, vNxt + 12*k)
    ev(2); evw(0, 4); evw(1, 5); evw(2, 6)
    def wait_data(lbl):
        a(f"s_cmp_ge_i32 {s(sLand)}, {s(sNeed)}")
        a(f"s_cbranch_scc1 {lbl}g")
        a.label(lbl)
        a(f"ds_read_b32 {v(vF)}, {v(vCT)} offset:{C_LAND}")
        a("s_waitcnt lgkmcnt(0)")
        a(f"v_readfirstlane_b32 {s(sLand)}, {v(vF)}")
        a(f"s_cmp_ge_i32 {s(sLand)}, {s(sNeed)}")
        a(f"s_cbranch_scc1 {lbl}g")
        if csleep: a(f"s_sleep {csleep}")
        a(f"s_branch {lbl}")
        a.label(lbl + "g")
    def next_slot():
        a(f"s_add_u32 {s(sSl)}, {s(sSl)}, {SB}"); a(f"s_cmp_eq_u32 {s(sSl)}, {RS*SB}"); a(f"s_cselect_b32 {s(sSl)}, 0, {s(sSl)}")
        a(f"s_add_u32 {s(sNeed)}, {s(sNeed)}, 12")
    cPh, cP1, cP2, cOn = 44, 45, 46, 47
    def blk_phases():
        a(f"s_cmp_ge_u32 {s(bM)}, 5"); a(f"s_cselect_b32 {s(cP1)}, 1, 0")
        a(f"s_lshr_b32 {s(cP2)}, {s(bM)}, 1"); a(f"s_cmp_eq_u32 {s(bM)}, 2"); a(f"s_cselect_b32 {s(cP2)}, 0, {s(cP2)}")
        a(f"s_bitcmp1_b32 0x6f, {s(bS)}"); a(f"s_cselect_b32 {s(cPh)}, 0, 64")
    if blk:
        blk_init(); blk_phases()
        a(f"s_cmp_ge_u32 {s(sCo)}, {CSB}"); a(f"s_cselect_b32 {s(sT0)}, {CSB}, 0"); a(f"s_sub_u32 {s(sCo)}, {s(sCo)}, {s(sT0)}")
    a.label("L_kvisit")
    sCs = 26
    def cs_one(dst, k):
        i = k // 2
        if "nocs" in dbg: return
        if k % 2 == 0: a(f"buffer_load_dwordx2 {vp(dst+2*i)}, {v(vC)}, {srd(sC)}, {s(sCo)} offen offset:{128*i} {csf}")
        else: a(f"buffer_load_dwordx2 {vp(dst+6+2*i)}, {v(vS1)}, {srd(sS)}, {s(sCo)} offen offset:{128*i} {csf}")
    if NQ > 1 and csmode == 0 and not blk:
        a(f"s_and_b32 {s(sT0)}, {s(sN_)}, {PD-1}")
        a(f"s_cselect_b32 {s(sT0)}, {NQ}, {s(sQ_)}")
        a(f"s_cmp_lt_u32 {s(sT0)}, {NQ-1}")
        a("s_cbranch_scc0 L_nocs")
        if rotK:
            a(f"s_cmp_ge_u32 {s(sCo)}, {CSB}"); a(f"s_cselect_b32 {s(sT0)}, {CSB}, 0"); a(f"s_sub_u32 {s(sCo)}, {s(sCo)}, {s(sT0)}")
        issue_cs(vTm)
        a.label("L_nocs")
    if NQ > 1 and csmode and not blk:
        assert PD == 2
        a(f"s_cmp_ge_u32 {s(sCo)}, {CSB}"); a(f"s_cselect_b32 {s(sT0)}, {CSB}, 0"); a(f"s_sub_u32 {s(sCo)}, {s(sCo)}, {s(sT0)}")
        if csmode == 1:
            a(f"s_and_b32 {s(sT0)}, {s(sN_)}, 1"); a(f"s_cselect_b32 {s(sCs)}, 9, {s(sWave)}")
        else:
            a(f"s_and_b32 {s(sCs)}, {s(sN_)}, 1")
        a(f"s_cmp_lt_u32 {s(sQ_)}, {NQ-1}"); a(f"s_cselect_b32 {s(sCs)}, {s(sCs)}, 9")
    if blk:
        blk_head(sT2)
    elif serp:
        a(f"s_bitcmp1_b32 {s(sQ_)}, 0"); a(f"s_cselect_b32 {s(sT2)}, {HPG-1}, 0"); a(f"s_xor_b32 {s(sT2)}, {s(sT2)}, {s(sN_)}")
    else:
        a(f"s_mov_b32 {s(sT2)}, {s(sN_)}")
    a(f"s_mul_i32 {s(sT0)}, {s(sT2)}, 768")
    a(f"v_add_u32 {v(vRa)}, {s(sT0)}, {v(vQa)}")
    a(f"s_lshl_b32 {s(sT0)}, {s(sT2)}, {lg(SPH)}"); a(f"s_add_u32 {s(sT0)}, {s(sT0)}, {s(sU)}")
    a(f"s_lshl_b32 {s(sT1)}, {s(sT0)}, 7"); a(f"v_add_u32 {v(vXa)}, {s(sT1)}, {v(vX0)}")
    a.label("L_qw")
    a(f"ds_read_b32 {v(vF)}, {v(vCT)} offset:{C_QRDY}")
    for i in range(3): a(f"ds_read_b128 {v4(vQ+4*i)}, {v(vRa)} offset:{256*i}")
    a("s_waitcnt lgkmcnt(0)")
    a(f"v_readfirstlane_b32 {s(sT0)}, {v(vF)}")
    a(f"s_cmp_gt_u32 {s(sT0)}, {s(sT2)}")
    a("s_cbranch_scc1 L_qwg")
    a("s_sleep 2")
    a("s_branch L_qw")
    a.label("L_qwg")
    for st in range(4):
        if blk:
            for c_, ph in enumerate((0, s(cP1), s(cP2))):
                a(f"s_cmp_eq_u32 {s(cPh)}, {ph}"); a(f"s_cbranch_scc0 L_nb{st}{c_}")
                cs_one(vTm, 2*c_); cs_one(vTm, 2*c_+1)
                a.label(f"L_nb{st}{c_}")
        if NQ > 1 and csmode == 1 and not blk:
            a(f"s_cmp_eq_u32 {s(sCs)}, {st}"); a(f"s_cbranch_scc0 L_nc{st}")
            issue_cs(vTm)
            a.label(f"L_nc{st}")
        if NQ > 1 and csmode == 2 and not blk:
            a(f"s_cmp_eq_u32 {s(sCs)}, 0"); a(f"s_cbranch_scc0 L_nc{st}")
            cs_one(vTm, st)
            a.label(f"L_nc{st}")
            if st < 2:
                a(f"s_cmp_eq_u32 {s(sCs)}, 1"); a(f"s_cbranch_scc0 L_nd{st}")
                cs_one(vTm, 4+st)
                if st == 1: a(f"s_add_u32 {s(sCo)}, {s(sCo)}, {GW*6144}")
                a.label(f"L_nd{st}")
        for e in range(12):
            a(f"v_dot2_f32_bf16 {v(vW+e)}, {v(vCur+12*st+e)}, {v(vQ+e)}, 0")
        a(f"v_add_u32 {v(vRa)}, {s(sSl)}, {v(vRow)}")
        a(f"v_pk_add_f32 {vp(vSW)}, {vp(vW)}, {vp(vW+2)}")
        for e in range(4, 12, 2): a(f"v_pk_add_f32 {vp(vSW)}, {vp(vSW)}, {vp(vW+e)}")
        wait_data(f"L_kw{st}")
        for i in range(3): a(f"ds_read_b128 {v4(vD+4*i)}, {v(vRa)} offset:{256*i}")
        a(f"v_add_u32 {v(vPrg)}, 1, {v(vPrg)}")
        next_slot()
        for i in range(3):
            a(f"s_waitcnt lgkmcnt({2-i})")
            for e in range(4): a(f"v_cvt_f32_i32 {v(vD+4*i+e)}, {v(vD+4*i+e)}")
            if i == 0:
                a(f"v_pk_mul_f32 {vp(vAc)}, {vp(vD)}, {vp(vW)}")
            else:
                a(f"v_pk_fma_f32 {vp(vAc)}, {vp(vD+4*i)}, {vp(vW+4*i)}, {vp(vAc)}")
            a(f"v_pk_fma_f32 {vp(vAc)}, {vp(vD+4*i+2)}, {vp(vW+4*i+2)}, {vp(vAc)}")
        a(f"v_add_f32 {v(vAc)}, {v(vAc)}, {v(vAc+1)}")
        a(f"v_add_f32 {v(vAc+1)}, {v(vSW)}, {v(vSW+1)}")
        for m_ in ("quad_perm:[1,0,3,2]", "quad_perm:[2,3,0,1]", "row_half_mirror", "row_mirror"):
            for e in range(2): a(f"v_add_f32_dpp {v(vAc+e)}, {v(vAc+e)}, {v(vAc+e)} {m_} {DPP}")
        a(f"ds_write_b64 {v(vXa)}, {vp(vAc)} offset:{128*st}")
        a(f"ds_write_b32 {v(vPa)}, {v(vPrg)}")
        if blk:
            a(f"s_add_u32 {s(cPh)}, {s(cPh)}, 1")
            a(f"s_cmp_eq_u32 {s(cPh)}, {s(bM)}")
            a(f"s_cbranch_scc0 L_np{st}")
            for e in range(0, 36, 2): a(f"v_mov_b64 {vp(vNxt+e)}, {vp(vNxt+12+e)}")
            a(f"s_mov_b32 {s(cPh)}, 0")
            a(f"s_add_u32 {s(sCo)}, {s(sCo)}, {GW*6144}")
            a(f"s_cmp_ge_u32 {s(sCo)}, {CSB}"); a(f"s_cselect_b32 {s(sT0)}, {CSB}, 0"); a(f"s_sub_u32 {s(sCo)}, {s(sCo)}, {s(sT0)}")
            a("s_waitcnt vmcnt(0)")
            pack_cs(vNxt + 36, vTm)
            a.label(f"L_np{st}")
    if blk:
        a(f"s_add_u32 {s(bJ)}, {s(bJ)}, 1")
        a(f"s_cmp_lt_u32 {s(bJ)}, {s(bM)}")
        a("s_cbranch_scc1 L_kvisit")
        blk_slot(sU); blk_phases()
        a(f"s_cmp_eq_u32 {s(bS)}, 4")
        a("s_cbranch_scc1 L_kvisit")
        for e in range(0, 48, 2): a(f"v_mov_b64 {vp(vCur+e)}, {vp(vNxt+e)}")
        a(f"s_cmp_lt_u32 {s(bS)}, 8")
        a("s_cbranch_scc1 L_kvisit")
    else:
        a(f"s_add_u32 {s(sN_)}, {s(sN_)}, 1")
        if NQ > 1:
            a(f"s_and_b32 {s(sT0)}, {s(sN_)}, {PD-1}")
            a("s_cbranch_scc1 L_kvisit")
            for e in range(0, 36, 2): a(f"v_mov_b64 {vp(vNxt+e)}, {vp(vNxt+12+e)}")
            a("s_waitcnt vmcnt(0)")
            pack_cs(vNxt + 36, vTm)
        a(f"s_cmp_lt_u32 {s(sN_)}, {HPG}")
        a("s_cbranch_scc1 L_kvisit")
        if NQ > 1:
            for e in range(0, 48, 2): a(f"v_mov_b64 {vp(vCur+e)}, {vp(vNxt+e)}")
            a(f"s_mov_b32 {s(sN_)}, 0")
            a(f"s_add_u32 {s(sU)}, {s(sU)}, 4"); a(f"s_and_b32 {s(sU)}, {s(sU)}, {SPH-1}")
            a(f"s_add_u32 {s(sQ_)}, {s(sQ_)}, 1")
            a(f"s_cmp_lt_u32 {s(sQ_)}, {NQ}")
            a("s_cbranch_scc1 L_kvisit")
    vAcc, vP, vSt, vRo = vW, vAc, vSW, vScA
    a(f"v_lshrrev_b32 {v(vY)}, 2, {v(vLane)}"); a(f"v_and_b32 {v(vZ)}, 3, {v(vLane)}")
    a(f"v_mul_u32_u24 {v(vRow)}, 768, {v(vY)}"); a(f"v_lshl_add_u32 {v(vRow)}, {v(vZ)}, 4, {v(vRow)}")
    a(f"s_mul_i32 {s(sT0)}, {s(sWave)}, 192"); a(f"v_add_u32 {v(vRow)}, {s(sT0)}, {v(vRow)}")
    a(f"v_lshlrev_b32 {v(vX0)}, 3, {v(vY)}"); a(f"v_add_u32 {v(vX0)}, {L_X}, {v(vX0)}")
    a(f"v_lshrrev_b32 {v(vY)}, 4, {v(vLane)}")
    if gm:
        a(f"v_lshl_add_u32 {v(vRo)}, {v(vY)}, 2, {v(vZ)}")
    else:
        a(f"v_lshl_add_u32 {v(vRo)}, {v(vZ)}, 2, {v(vY)}")
    a(f"v_and_b32 {v(vY)}, 1, {v(vRo)}"); a(f"v_lshlrev_b32 {v(vRo)}, 4, {v(vRo)}")
    a(f"s_lshl_b32 {s(sT0)}, {s(sWave)}, 8"); a(f"v_add_u32 {v(vRo)}, {s(sT0)}, {v(vRo)}")
    a(f"v_lshlrev_b32 {v(vQa)}, 3, {v(vY)}"); a(f"v_add_u32 {v(vQa)}, {L_ST}, {v(vQa)}")
    a(f"v_add_u32 {v(vC)}, {L_QS}, {v(vRo)}")
    a(f"s_mov_b32 {s(sMsk)}, 0x000f000f"); a(f"s_mov_b32 {s(sMsk+1)}, 0x000f000f")
    a(f"s_mov_b32 {s(sNeed)}, {129*12}")
    a(f"s_mul_i32 {s(sU)}, {s(sG)}, {rotV}"); a(f"s_and_b32 {s(sU)}, {s(sU)}, {SPH-1}")
    a(f"s_mov_b32 {s(sN_)}, 0")
    a(f"s_add_u32 {s(sPO)}, {s(sG)}, {(HPG-1)*NG*(1-REV)}"); a(f"s_mul_i32 {s(sPO)}, {s(sPO)}, {GW}"); a(f"s_add_u32 {s(sPO)}, {s(sPO)}, {s(sI)}")
    a(f"s_lshl_b32 {s(sPO)}, {s(sPO)}, 10")
    a.label("L_vhead")
    for e in range(0, 12, 2): a(f"v_mov_b64 {vp(vAcc+e)}, 0")
    a(f"s_mov_b32 {s(sQ_)}, 0")
    a.label("L_pw")
    a(f"ds_read_b64 {vp(vD)}, {v(vCT)} offset:{C_PRDY-4}")
    a(f"ds_read_b32 {v(vF)}, {v(vCT)} offset:{C_EPO}")
    a(f"ds_read_b64 {vp(vSt)}, {v(vQa)}")
    a("s_waitcnt lgkmcnt(0)")
    a(f"v_readfirstlane_b32 {s(sT0)}, {v(vD+1)}")
    a(f"v_readfirstlane_b32 {s(sE)}, {v(vF)}")
    a(f"s_cmp_gt_u32 {s(sT0)}, {s(sN_)}")
    a("s_cbranch_scc1 L_pwg")
    a("s_sleep 2")
    a("s_branch L_pw")
    a.label("L_pwg")
    a(f"s_lshr_b32 {s(sE+1)}, {s(sE)}, 8"); a(f"s_lshr_b32 {s(sE+2)}, {s(sE)}, 16")
    a.label("L_vstep")
    a(f"s_xor_b32 {s(sT0)}, {s(sN_)}, {(HPG-1)*REV}")
    a(f"s_lshl_b32 {s(sT0)}, {s(sT0)}, {lg(SPH)}"); a(f"s_add_u32 {s(sT0)}, {s(sT0)}, {s(sU)}"); a(f"s_lshl_b32 {s(sT0)}, {s(sT0)}, 7")
    a(f"v_add_u32 {v(vXa)}, {s(sT0)}, {v(vX0)}")
    a(f"v_add_u32 {v(vRa)}, {s(sSl)}, {v(vRow)}")
    a(f"ds_read_b32 {v(vP)}, {v(vXa)}")
    wait_data("L_vw")
    for i in range(3): a(f"ds_read_b128 {v4(vD+4*i)}, {v(vRa)} offset:{64*i}")
    a(f"v_add_u32 {v(vPrg)}, 1, {v(vPrg)}")
    next_slot()
    a(f"s_add_u32 {s(sU)}, {s(sU)}, 1"); a(f"s_and_b32 {s(sU)}, {s(sU)}, {SPH-1}")
    a(f"s_add_u32 {s(sQ_)}, {s(sQ_)}, 1")
    a(f"s_cmp_lt_u32 {s(sQ_)}, {SPH}")
    for i in range(3):
        a(f"s_waitcnt lgkmcnt({2-i})")
        for e in range(4): a(f"v_cvt_f32_i32 {v(vD+4*i+e)}, {v(vD+4*i+e)}")
        for e in (0, 2):
            a(f"v_pk_fma_f32 {vp(vAcc+4*i+e)}, {vp(vD+4*i+e)}, {vp(vP)}, {vp(vAcc+4*i+e)} op_sel_hi:[1,0,1]")
    a("s_cbranch_scc0 L_vend")
    a(f"ds_write_b32 {v(vPa)}, {v(vPrg)}")
    a("s_branch L_vstep")
    a("; head finished: reduce over the 16 rows, remove the zero-point term, tag"); a.label("L_vend")
    O = vD
    for i in range(3):
        r_ = vAcc + 4*i
        a(f"v_permlane32_swap_b32 {v(r_)}, {v(r_+2)}")
        a(f"v_permlane32_swap_b32 {v(r_+1)}, {v(r_+3)}")
    for i in range(3):
        r_ = vAcc + 4*i
        a(f"v_pk_add_f32 {vp(r_)}, {vp(r_)}, {vp(r_+2)}")
    for i in range(3):
        r_ = vAcc + 4*i
        a(f"v_permlane16_swap_b32 {v(r_)}, {v(r_+1)}")
    for i in range(3):
        r_ = vAcc + 4*i
        a(f"v_add_f32 {v(O+i)}, {v(r_)}, {v(r_+1)}")
    a(f"v_mov_b32 {v(O+3)}, {v(vSt)}")
    for rr in (4, 8):
        for i in range(3): a(f"v_add_f32_dpp {v(O+i)}, {v(O+i)}, {v(O+i)} row_ror:{rr} {DPP}")
    for i in range(3): a(f"v_sub_f32 {v(O+i)}, {v(O+i)}, {v(vSt+1)}")
    for i in range(3): a(f"v_bfi_b32 {v(O+i)}, {v(vMask)}, {s(sE+i)}, {v(O+i)}")
    a(f"s_add_u32 {s(sN_)}, {s(sN_)}, 1")
    a(f"s_cmp_eq_u32 {s(sN_)}, {HPG}")
    a(f"s_mov_b64 exec, {sp(sMsk)}")
    a("s_cbranch_scc1 L_vlast")
    if direct:
        a(f"s_sub_u32 {s(sT0)}, {HPG}, {s(sN_)}"); a(f"s_mul_i32 {s(sT0)}, {s(sT0)}, {NG*GW*1024}")
        a(f"{'s_add_u32' if REV else 's_sub_u32'} {s(sT0)}, {s(sPO)}, {s(sT0)}")
        a(f"buffer_store_dwordx4 {v4(O)}, {v(vRo)}, {srd(sWS)}, {s(sT0)} offen {stf}")
        a("s_nop 1")
    else:
        a(f"ds_write_b128 {v(vC)}, {v4(O)}")
    a("s_mov_b64 exec, -1")
    a(f"ds_write_b32 {v(vPa)}, {v(vPrg)}")
    a(f"v_add_u32 {v(vC)}, 1024, {v(vC)}"); a(f"v_add_u32 {v(vQa)}, 16, {v(vQa)}")
    a("s_branch L_vhead")
    a.label("L_vlast")
    a(f"buffer_store_dwordx4 {v4(O)}, {v(vRo)}, {srd(sWS)}, {s(sPO)} offen {stf}")
    if stamp:
        a("s_mov_b64 exec, -1")
        a(f"s_memrealtime {sp(sT0)}"); a("s_waitcnt lgkmcnt(0)")
        a(f"v_mov_b32 {v(vF)}, {s(sT0)}"); a(f"ds_write_b32 {v(vPa)}, {v(vF)} offset:64")
        a(f"ds_write_b32 {v(vPa)}, {v(vPrg)}")
    a("s_endpgm")

    a.label("L_aux")
    a(f"s_cmp_eq_u32 {s(sWave)}, 5")
    a("s_cbranch_scc0 L_bal")
    sA, sDB, sOUT, sB = 4, 8, 16, 20
    sE = 28
    sN_, sSpin, sPO, sMe, sHc, sBk = 24, 25, 26, 32, 34, 35
    vQo0, vQo1, vSg, vH0, vH1, vX, vY, vZ, vU, vMask, vA0, vA1 = 5, 6, 7, 8, 9, 10, 11, 12, 13, 14, 15, 16
    qr, t_ = 20, 32
    vSv, vQv, sSo = 17, 56, 27
    NQL = (HPG * 24 + 63) // 64
    a("; ==== helper ====")
    a(f"v_lshlrev_b32 {v(vQo0)}, 3, {v(vLane)}")
    a(f"v_cmp_gt_u32 vcc, 24, {v(vLane)}")
    a(f"v_mov_b32 {v(vU)}, 0xffffff40"); a(f"v_mov_b32 {v(vX)}, 192")
    a(f"v_cndmask_b32 {v(vU)}, {v(vU)}, {v(vX)}, vcc")
    a(f"v_add_u32 {v(vQo1)}, {v(vQo0)}, {v(vU)}")
    a(f"v_mov_b32 {v(vX)}, 0x80008000")
    a(f"v_cndmask_b32 {v(vSg)}, 0, {v(vX)}, vcc")
    hpi = 32 // SPH
    a(f"v_lshrrev_b32 {v(vX)}, 1, {v(vLane)}")
    a(f"v_and_b32 {v(vY)}, {SPH-1}, {v(vX)}"); a(f"v_lshrrev_b32 {v(vX)}, {lg(SPH)}, {v(vX)}")
    a(f"v_mul_u32_u24 {v(vX)}, {NG*32768}, {v(vX)}"); a(f"v_mul_u32_u24 {v(vY)}, {GW*32}, {v(vY)}"); a(f"v_add_u32 {v(vX)}, {v(vX)}, {v(vY)}")
    a(f"v_and_b32 {v(vY)}, 1, {v(vLane)}"); a(f"v_lshl_add_u32 {v(vSv)}, {v(vY)}, 4, {v(vX)}")
    for k in range(NQL):
        a(f"v_add_u32 {v(vX)}, {64*k}, {v(vLane)}")
        a(f"v_mul_u32_u24 {v(vZ)}, 2731, {v(vX)}"); a(f"v_lshrrev_b32 {v(vZ)}, 16, {v(vZ)}")
        a(f"v_mul_u32_u24 {v(vZ)}, {(NG-1)*384}, {v(vZ)}"); a(f"v_lshl_add_u32 {v(vQv+k)}, {v(vX)}, 4, {v(vZ)}")
    a(f"v_cmp_eq_u32 {sp(sMe)}, 0, {v(vY)}")
    a(f"s_lshl_b32 {s(sSo)}, {s(sG)}, 15"); a(f"s_lshl_b32 {s(sT0)}, {s(sI)}, 5"); a(f"s_add_u32 {s(sSo)}, {s(sSo)}, {s(sT0)}")
    a(f"s_mov_b32 m0, {L_QS}")
    a("s_waitcnt lgkmcnt(0)")
    mk(sA, pQC, 384); mk(sB, pQS, 384)
    a(f"buffer_load_dwordx2 {vp(qr+8)}, {v(vQo0)}, {srd(sA)}, 0 offen")
    a(f"buffer_load_dwordx2 {vp(qr+10)}, {v(vQo0)}, {srd(sB)}, 0 offen")
    mk(sA, pQ, 12288)
    a(f"s_mul_i32 {s(sT0)}, {s(sG)}, 384")
    for k in range(NQL):
        a(f"buffer_load_dwordx4 {v(vQv+k)}, {srd(sA)}, {s(sT0)} offen lds")
        a("s_add_u32 m0, m0, 1024")
    if scpre == 2:
        a("; this workgroup's share of the scale arrays is pulled on chip now; the own pieces are fetched later")
        a(f"s_lshl_b32 {s(sT0)}, s2, 12")
        n_ = 0
        for p in (pKS, pKZ, pVS, pVZ):
            mk(sB, p, 1 << 20)
            for k in range(4):
                if n_ >= spw: a(f"s_waitcnt vmcnt({spw-1})")
                a(f"buffer_load_dwordx4 {v4(64)}, {v(vL16)}, {srd(sB)}, {s(sT0)} offen offset:{1024*k} {scf}"); n_ += 1
    def sc_prefetch():
        a("; whole lines of the scale arrays (shared by 4 workgroups) are pulled on chip first")
        vPv = 62
        a(f"s_and_b32 {s(sT0)}, {s(sI)}, 3"); a(f"s_lshl_b32 {s(sT0)}, {s(sT0)}, 3")
        a(f"v_lshrrev_b32 {v(vX)}, 3, {v(vLane)}"); a(f"v_add_u32 {v(vX)}, {s(sT0)}, {v(vX)}")
        a(f"v_and_b32 {v(vY)}, {SPH-1}, {v(vX)}"); a(f"v_lshrrev_b32 {v(vX)}, {lg(SPH)}, {v(vX)}")
        a(f"v_mul_u32_u24 {v(vX)}, {NG*32768}, {v(vX)}"); a(f"v_mul_u32_u24 {v(vY)}, {GW*32}, {v(vY)}"); a(f"v_add_u32 {v(vX)}, {v(vX)}, {v(vY)}")
        a(f"v_and_b32 {v(vY)}, 7, {v(vLane)}"); a(f"v_lshl_add_u32 {v(vPv)}, {v(vY)}, 4, {v(vX)}")
        for p in (pKS, pKZ, pVS, pVZ):
            mk(sB, p, 1 << 20)
            a(f"s_andn2_b32 {s(sT0)}, {s(sSo)}, 127")
            for k in range(4):
                if spw < 16: a(f"s_waitcnt vmcnt({spw-1})")
                a(f"buffer_load_dwordx4 {v4(64)}, {v(vPv)}, {srd(sB)}, {s(sT0)} offen {spf}")
                a(f"s_add_u32 {s(sT0)}, {s(sT0)}, {hpi*NG*32768}")
    if scpre == 3 and splate is None: sc_prefetch()
    NPF = min(16, spw) if scpre >= 2 and splate is None else 0
    mk(sWS, pWS, WSB); mk(sDB, pDBG, 256); mk(sOUT, pOUT, 12288)
    a(f"v_mov_b32 {v(vMask)}, 0xff")
    def unpack(dst, src):
        a(f"v_lshlrev_b32 {v(dst)}, 16, {v(src)}"); a(f"v_and_b32 {v(dst+1)}, 0xffff0000, {v(src)}")
        a(f"v_lshlrev_b32 {v(dst+2)}, 16, {v(src+1)}"); a(f"v_and_b32 {v(dst+3)}, 0xffff0000, {v(src+1)}")
    cF, sF, aF, bF, rr = t_, t_+4, t_+8, t_+12, t_+16
    a(f"v_add_u32 {v(vA0)}, {L_QS}, {v(vQo0)}"); a(f"v_add_u32 {v(vA1)}, {L_QS}, {v(vQo1)}")
    a(f"v_lshlrev_b32 {v(vH0)}, 1, {v(vQo0)}"); a(f"v_lshlrev_b32 {v(vH1)}, 1, {v(vQo1)}")
    a(f"v_add_u32 {v(vH0)}, {L_QT}, {v(vH0)}"); a(f"v_add_u32 {v(vH1)}, {L_QT}, {v(vH1)}")
    a(f"v_mov_b32 {v(vZ)}, 0")
    a(f"s_mov_b32 {s(sN_)}, 0")
    a(f"s_waitcnt vmcnt({NQL+NPF})")
    a(f"v_xor_b32 {v(qr+10)}, {v(qr+10)}, {v(vSg)}"); a(f"v_xor_b32 {v(qr+11)}, {v(qr+11)}, {v(vSg)}")
    unpack(cF, qr+8); unpack(sF, qr+10)
    a(f"v_and_b32 {v(vSg)}, 0x80000000, {v(vSg)}")
    a(f"s_waitcnt vmcnt({NPF})")
    a("s_mov_b32 exec_hi, 0xffff")
    a("; rotated q (rounded like the reference), stored as (qr[d], +-qr[d+-96]) pairs"); a.label("L_hq")
    a(f"ds_read_b64 {vp(qr)}, {v(vA0)}"); a(f"ds_read_b64 {vp(qr+2)}, {v(vA1)}")
    a(f"v_add_u32 {v(vA0)}, 384, {v(vA0)}"); a(f"v_add_u32 {v(vA1)}, 384, {v(vA1)}")
    a(f"v_add_u32 {v(vZ)}, 1, {v(vZ)}")
    a("s_waitcnt lgkmcnt(0)")
    unpack(aF, qr); unpack(bF, qr+2)
    for e in range(0, 4, 2):
        a(f"v_pk_mul_f32 {vp(aF+e)}, {vp(aF+e)}, {vp(cF+e)}"); a(f"v_pk_mul_f32 {vp(bF+e)}, {vp(bF+e)}, {vp(sF+e)}")
    for e in range(4): a(f"v_cvt_pk_bf16_f32 {v(aF+e)}, {v(aF+e)}, {v(bF+e)}")
    for e in range(4):
        a(f"v_and_b32 {v(bF+e)}, 0xffff0000, {v(aF+e)}"); a(f"v_lshlrev_b32 {v(aF+e)}, 16, {v(aF+e)}")
    for e in range(0, 4, 2): a(f"v_pk_add_f32 {vp(aF+e)}, {vp(aF+e)}, {vp(bF+e)}")
    for e in range(4): a(f"v_cvt_pk_bf16_f32 {v(rr+e)}, {v(aF+e)}, {v(aF+e)}")
    for e in range(4): a(f"v_xor_b32 {v(rr+e)}, {v(rr+e)}, {v(vSg)}")
    for e in range(4):
        a(f"ds_write_b16 {v(vH0)}, {v(rr+e)} offset:{4*e}")
        a(f"ds_write_b16_d16_hi {v(vH1)}, {v(rr+e)} offset:{4*e+2}")
    a(f"ds_write_b32 {v(vCT)}, {v(vZ)} offset:{C_QRDY}")
    a(f"v_add_u32 {v(vH0)}, 768, {v(vH0)}"); a(f"v_add_u32 {v(vH1)}, 768, {v(vH1)}")
    a(f"s_add_u32 {s(sN_)}, {s(sN_)}, 1")
    a(f"s_cmp_lt_u32 {s(sN_)}, {HPG}")
    a("s_cbranch_scc1 L_hq")
    a("s_mov_b32 exec_hi, -1")
    ev(0); evw(0, 7)
    if scpre == 3 and splate is not None:
        lds_wait("L_spl", C_STEP, splate, sT0, 2)
        sc_prefetch()
    if wspre:
        a("; touch the slots of the partials that are handed over last, so that they are on chip by then (data unused)")
        nw = HPG if wspre < 3 else wspre - 2
        a(f"s_add_u32 {s(sT0)}, {s(sG)}, {0 if REV else (HPG-nw)*NG}")
        a(f"s_mul_i32 {s(sT0)}, {s(sT0)}, {GW}"); a(f"s_add_u32 {s(sT0)}, {s(sT0)}, {s(sI)}"); a(f"s_lshl_b32 {s(sT0)}, {s(sT0)}, 10")
        for k in range(nw):
            a(f"buffer_load_dwordx4 {v4(64)}, {v(vL16)}, {srd(sWS)}, {s(sT0)} offen {'sc0 sc1' if wspre == 2 else ''}")
            a(f"s_add_u32 {s(sT0)}, {s(sT0)}, {NG*GW*1024}")
    def epoch_code():
        a("; launch epoch, agreed through d_debug[0]: workgroup 0 proposes at once, the others look later")
        a(f"v_mov_b32 {v(vA0)}, 0")
        a(f"s_mov_b32 {s(sSpin)}, 0")
        a("s_cmp_eq_u32 s2, 0")
        a("s_cbranch_scc1 L_epc")
        lds_wait("L_epw", C_STEP, epk, sT0, 16)
        if eps_:
            a(f"s_load_dword {s(sE)}, {sp(pDBG)}, 0")
            a("s_waitcnt lgkmcnt(0)")
            a(f"s_cmp_lg_u32 {s(sE)}, 0")
            a("s_cbranch_scc1 L_epd")
        a.label("L_ep")
        a("s_mov_b64 exec, 1")
        a(f"buffer_load_dword {v(vY)}, {v(vA0)}, {srd(sDB)}, 0 offen sc0 sc1")
        a("s_waitcnt vmcnt(0)")
        a(f"v_readfirstlane_b32 {s(sE)}, {v(vY)}")
        a("s_mov_b64 exec, -1")
        a(f"s_cmp_lg_u32 {s(sE)}, 0")
        a("s_cbranch_scc1 L_epd")
        a("s_sleep 32")
        a(f"s_add_u32 {s(sSpin)}, {s(sSpin)}, 1")
        a(f"s_cmp_lt_u32 {s(sSpin)}, 8")
        a("s_cbranch_scc1 L_ep")
        a.label("L_epc")
        a(f"s_mul_i32 {s(sE)}, {s(sStart)}, 0x9e3779b1")
        a(f"s_lshr_b32 {s(sT1)}, {s(sE)}, 15"); a(f"s_xor_b32 {s(sE)}, {s(sE)}, {s(sT1)}")
        a(f"s_mul_i32 {s(sE)}, {s(sE)}, 0x85ebca6b")
        a(f"s_lshr_b32 {s(sT1)}, {s(sE)}, 13"); a(f"s_xor_b32 {s(sE)}, {s(sE)}, {s(sT1)}")
        a(f"s_max_u32 {s(sE)}, {s(sE)}, 1")
        a(f"v_mov_b32 {v(qr)}, {s(sE)}"); a(f"v_mov_b32 {v(qr+1)}, 0")
        a("s_mov_b64 exec, 1")
        a(f"buffer_atomic_cmpswap {vp(qr)}, {v(vA0)}, {srd(sDB)}, 0 offen sc0 sc1")
        a("s_waitcnt vmcnt(0)")
        a(f"v_readfirstlane_b32 {s(sT0)}, {v(qr)}")
        a("s_mov_b64 exec, -1")
        a(f"s_cmp_eq_u32 {s(sT0)}, 0"); a(f"s_cselect_b32 {s(sE)}, {s(sE)}, {s(sT0)}")
        a.label("L_epd")
        a(f"v_mov_b32 {v(vZ)}, {s(sE)}")
        a(f"ds_write_b32 {v(vCT)}, {v(vZ)} offset:{C_EPO}")
        a(f"s_lshr_b32 {s(sE+1)}, {s(sE)}, 8"); a(f"s_lshr_b32 {s(sE+2)}, {s(sE)}, 16"); a(f"s_lshr_b32 {s(sE+3)}, {s(sE)}, 24")
    def scale_code():
        a("; the own 32-byte pieces of the scale arrays trickle into LDS, in an order that differs between workgroups")
        assert sc0 + 16*sct + 4 < TX and scpre != 1
        a(f"s_add_u32 {s(sN_)}, {s(sG)}, {sc0}" if scph else f"s_mov_b32 {s(sN_)}, {sc0}")
        a(f"s_mov_b32 {s(sSpin)}, 0")
        mk(sB, pKS, 1 << 20)
        lds_wait("L_sc", C_STEP, s(sN_), sT0, 16 if sct > 1 else 1)
        if scrot:
            a(f"s_lshr_b32 {s(sT0)}, {s(sI)}, 2"); a(f"s_add_u32 {s(sT0)}, {s(sT0)}, {s(sSpin)}"); a(f"s_and_b32 {s(sT0)}, {s(sT0)}, 15")
        else:
            a(f"s_mov_b32 {s(sT0)}, {s(sSpin)}")
        if "samesc" in dbg: a(f"s_lshr_b32 {s(sT0)}, {s(sI)}, 2")
        a(f"s_lshl_b32 {s(sT1)}, {s(sT0)}, 10"); a(f"s_add_u32 m0, {s(sT1)}, {L_SC}")
        a(f"s_mov_b64 {sp(sB)}, {sp(pKS)}")
        for k, p in ((4, pKZ), (8, pVS), (12, pVZ)):
            a(f"s_cmp_ge_u32 {s(sT0)}, {k}"); a(f"s_cselect_b64 {sp(sB)}, {sp(p)}, {sp(sB)}")
        a(f"s_and_b32 {s(sT0)}, {s(sT0)}, 3"); a(f"s_mul_i32 {s(sT0)}, {s(sT0)}, {hpi*NG*32768}"); a(f"s_add_u32 {s(sT0)}, {s(sT0)}, {s(sSo)}")
        if "nosc" not in dbg: a(f"buffer_load_dwordx4 {v(vSv)}, {srd(sB)}, {s(sT0)} offen {scf} lds")
        a(f"s_add_u32 {s(sSpin)}, {s(sSpin)}, 1")
        a(f"s_add_u32 {s(sN_)}, {s(sN_)}, {sct}")
        a(f"s_cmp_lt_u32 {s(sSpin)}, 16")
        a("s_cbranch_scc1 L_sc")
        a("s_waitcnt vmcnt(0)")
    if sc0 < epk:
        scale_code(); epoch_code()
    else:
        epoch_code(); scale_code()
    vx, vks, vvs, vvz, vS4, vPg, vkz, vx2 = 20, 28, 36, 44, 52, 56, 64, 72
    CEXP = (192.0 ** -0.5) * math.log2(math.e)
    for e in list(range(vks, vS4)) + list(range(vkz, vkz+8)): a(f"v_mov_b32 {v(e)}, 0")
    a(f"v_lshlrev_b32 {v(vA0)}, 3, {v(vLane)}"); a(f"v_add_u32 {v(vA0)}, {L_X+REV*(HPG-1)*512*NG}, {v(vA0)}")
    a(f"v_lshlrev_b32 {v(vA1)}, 1, {v(vLane)}"); a(f"v_add_u32 {v(vA1)}, {L_SC+REV*(HPG-1)*128*NG}, {v(vA1)}")
    a(f"v_mov_b32 {v(vH0)}, {L_ST}"); a(f"v_mov_b32 {v(vH1)}, 0")
    if blk:
        a(f"s_cmp_eq_u32 {s(sG)}, 0"); a(f"s_cselect_b32 {s(sN_)}, 4, 0"); a(f"s_add_u32 {s(sN_)}, {s(sN_)}, 120"); a(f"s_mov_b32 {s(sSpin)}, 0")
    else:
        a(f"s_mov_b32 {s(sN_)}, {TX+4}")
    def wait_cons(lbl, val, sleep):
        a.label(lbl)
        if sleep: a(f"s_sleep {sleep}")
        a(f"ds_read_b128 {v4(vPg)}, {v(vCT)}")
        a("s_waitcnt lgkmcnt(0)")
        a(f"v_min3_i32 {v(vPg)}, {v(vPg)}, {v(vPg+1)}, {v(vPg+2)}"); a(f"v_min_i32 {v(vPg)}, {v(vPg)}, {v(vPg+3)}")
        a(f"v_readfirstlane_b32 {s(sT0)}, {v(vPg)}")
        a(f"s_cmp_lt_i32 {s(sT0)}, {val}")
        a(f"s_cbranch_scc1 {lbl}")
    wait_cons("L_hp", s(sN_), hsleep)
    for k in range(NG):
        a(f"ds_read_b64 {vp(vx2+2*k)}, {v(vA0)} offset:{512*k}")
        a(f"ds_read_u16_d16_hi {v(vks+k)}, {v(vA1)} offset:{128*k}")
        a(f"ds_read_u16_d16_hi {v(vkz+k)}, {v(vA1)} offset:{4096+128*k}")
    a("s_waitcnt lgkmcnt(0)")
    for k in range(NG):
        a(f"ds_read_u16_d16_hi {v(vvs+k)}, {v(vA1)} offset:{8192+128*k}")
        a(f"ds_read_u16_d16_hi {v(vvz+k)}, {v(vA1)} offset:{12288+128*k}")
    for k in range(NG): a(f"v_fma_f32 {v(vx+k)}, -{v(vkz+k)}, {v(vx2+2*k+1)}, {v(vx2+2*k)}")
    for k in range(NG): a(f"v_mul_f32 {v(vx+k)}, {v(vx+k)}, {v(vks+k)}")
    for k in range(NG): a(f"v_mul_f32 {v(vx+k)}, {hex(f2u(CEXP))}, {v(vx+k)}")
    a(f"v_mov_b32 {v(vS4)}, {v(vx)}")
    for k in range(1, NG): a(f"v_max_f32 {v(vS4)}, {v(vS4)}, {v(vx+k)}")
    row_reduce("v_max_f32", vS4); xrows("v_max_f32", vS4, vU)
    for k in range(NG): a(f"v_sub_f32 {v(vx+k)}, {v(vx+k)}, {v(vS4)}")
    for k in range(NG): a(f"v_exp_f32 {v(vx+k)}, {v(vx+k)}")
    a(f"v_mov_b32 {v(vS4+2)}, {v(vx)}")
    for k in range(1, NG): a(f"v_add_f32 {v(vS4+2)}, {v(vS4+2)}, {v(vx+k)}")
    a("s_waitcnt lgkmcnt(0)")
    for k in range(NG): a(f"v_mul_f32 {v(vx+k)}, {v(vx+k)}, {v(vvs+k)}")
    a(f"v_mul_f32 {v(vS4+1)}, {v(vx)}, {v(vvz)}")
    for k in range(1, NG): a(f"v_fmac_f32 {v(vS4+1)}, {v(vx+k)}, {v(vvz+k)}")
    for k in range(NG): a(f"ds_write_b32 {v(vA0)}, {v(vx+k)} offset:{512*k}")
    row_reduce("v_add_f32", vS4+2); xrows("v_add_f32", vS4+2, vU)
    row_reduce("v_add_f32", vS4+1); xrows("v_add_f32", vS4+1, vU)
    a(f"v_bfi_b32 {v(vS4+2)}, {v(vMask)}, {s(sE+3)}, {v(vS4+2)}")
    a(f"v_mov_b32 {v(vS4+3)}, {v(vS4+1)}")
    a(f"v_add_u32 {v(vH1)}, 1, {v(vH1)}")
    a("s_mov_b64 exec, 1")
    a(f"ds_write_b128 {v(vH0)}, {v4(vS4)}")
    a(f"ds_write_b32 {v(vCT)}, {v(vH1)} offset:{C_PRDY}")
    a("s_mov_b64 exec, -1")
    a(f"v_add_u32 {v(vA0)}, {512*NG*(1-2*REV)}, {v(vA0)}"); a(f"v_add_u32 {v(vA1)}, {128*NG*(1-2*REV)}, {v(vA1)}"); a(f"v_add_u32 {v(vH0)}, 16, {v(vH0)}")
    a(f"s_add_u32 {s(sN_)}, {s(sN_)}, 4")
    if blk:
        a(f"s_min_u32 {s(sN_)}, {s(sN_)}, 128"); a(f"s_add_u32 {s(sSpin)}, {s(sSpin)}, 1"); a(f"s_cmp_lt_u32 {s(sSpin)}, {HPG}")
    else:
        a(f"s_cmp_le_u32 {s(sN_)}, 128")
    a("s_cbranch_scc1 L_hp")
    NLD = GW // 8
    vFo, vFl, vKk = 140, vA0, vA1
    vFd, vFt, vO2 = 44, 20, 40
    sPa, sOo, sDry, sPW_ = 36, 37, 38, 40
    assert vFd + 4*NLD*pp <= vFo and not dry and not xpoll and fm, "combine register budget"
    def comb_setup():
        a(f"s_lshr_b32 {s(sHc)}, s2, 3"); a(f"s_and_b32 {s(sBk)}, s2, 7")
        a(f"v_lshrrev_b32 {v(vX)}, 3, {v(vLane)}"); a(f"v_and_b32 {v(vKk)}, 7, {v(vLane)}")
        a(f"v_lshlrev_b32 {v(vX)}, 10, {v(vX)}"); a(f"v_lshl_add_u32 {v(vFl)}, {v(vKk)}, 4, {v(vX)}")
        if gm:
            a(f"v_lshrrev_b32 {v(vX)}, 2, {v(vKk)}"); a(f"v_and_b32 {v(vKk)}, 3, {v(vKk)}"); a(f"v_lshl_add_u32 {v(vKk)}, {v(vKk)}, 2, {v(vX)}")
        a(f"v_lshlrev_b32 {v(vKk)}, 1, {v(vKk)}")
        if fm:
            a(f"v_bfe_u32 {v(vX)}, {v(vLane)}, 4, 1"); a(f"v_lshl_add_u32 {v(vKk)}, {v(vX)}, 6, {v(vKk)}")
            a(f"v_lshrrev_b32 {v(vX)}, 5, {v(vLane)}"); a(f"v_lshl_add_u32 {v(vKk)}, {v(vX)}, 5, {v(vKk)}")
        a(f"s_mov_b32 {s(sSpin)}, 0"); a(f"s_mov_b32 {s(sDry)}, 0")
        a(f"s_mul_i32 {s(sPa)}, {s(sHc)}, {GW*1024}"); a(f"s_lshl_b32 {s(sT3)}, {s(sBk)}, 7"); a(f"s_add_u32 {s(sPa)}, {s(sPa)}, {s(sT3)}")
        a(f"s_mul_i32 {s(sOo)}, {s(sHc)}, 384")
        a(f"s_lshr_b32 {s(sT3)}, {s(sBk)}, 1"); a(f"s_mul_i32 {s(sT3)}, {s(sT3)}, 96"); a(f"s_add_u32 {s(sOo)}, {s(sOo)}, {s(sT3)}")
        a(f"s_and_b32 {s(sT3)}, {s(sBk)}, 1"); a(f"s_lshl_b32 {s(sT3)}, {s(sT3)}, {2 if gm else 4}"); a(f"s_add_u32 {s(sOo)}, {s(sOo)}, {s(sT3)}")
        mk(sPW_, pWS, WSB); mk(sOUT, pOUT, 12288)
    a(f"s_add_u32 {s(sPO)}, {s(sG)}, {(HPG-1)*NG*REV}"); a(f"s_mul_i32 {s(sPO)}, {s(sPO)}, {GW}"); a(f"s_add_u32 {s(sPO)}, {s(sPO)}, {s(sI)}"); a(f"s_lshl_b32 {s(sPO)}, {s(sPO)}, 10")
    comb_setup()
    if opre:
        a("s_mov_b32 exec_lo, 0x00ff00ff"); a("s_mov_b32 exec_hi, 0xff")
        a(f"buffer_load_ushort {v(vO2)}, {v(vKk)}, {srd(sOUT)}, {s(sOo)} offen {'sc0 sc1' if opre == 2 else ''}")
        a("s_mov_b64 exec, -1")
        a("s_waitcnt vmcnt(0)")
    if dry:
        a("; run the combine code once on an empty buffer, without storing, so that it is in the instruction cache later")
        a(f"s_mov_b32 {s(sDry)}, 1"); a(f"s_mov_b32 {s(sPW_+2)}, 0")
        a("s_branch L_try")
        a.label("L_dryret")
        a(f"s_mov_b32 {s(sDry)}, 0"); a(f"s_mov_b32 {s(sPW_+2)}, {WSB}")
    if not direct:
        a(f"v_add_u32 {v(vU)}, {L_QS}, {v(vL16)}")
        wait_cons("L_hf", NST - SPH, 32)
        NFL = HPG - 1
        assert vFo + 4 * NFL <= NV
        for p_ in range(NFL): a(f"ds_read_b128 {v4(vFo+4*p_)}, {v(vU)} offset:{1024*p_}")
        lds_wait("L_hn", C_LAND, NST*12 - FL, sT0, 2)
        for p_ in range(NFL):
            a(f"buffer_store_dwordx4 {v4(vFo+4*p_)}, {v(vL16)}, {srd(sWS)}, {s(sPO)} offen {stf}")
            a(f"{'s_sub_u32' if REV else 's_add_u32'} {s(sPO)}, {s(sPO)}, {NG*GW*1024}")
    else:
        lds_wait("L_hn", C_LAND, NST*12 - 48, sT0, 32)
    lds_wait("L_hl", C_LAND, NST*12, sT0, 1)
    def p_issue(B):
        a(f"s_mov_b32 {s(sT0)}, {s(sPa)}")
        for i in range(NLD):
            a(f"buffer_load_dwordx4 {v4(B+4*i)}, {v(vFl)}, {srd(sPW_)}, {s(sT0)} offen {ldf}")
            if i < NLD-1: a(f"s_add_u32 {s(sT0)}, {s(sT0)}, 8192")
    def p_check(B, younger, ok):
        for i in range(NLD):
            a(f"s_waitcnt vmcnt({younger+NLD-1-i})")
            for e in range(4):
                z = vU if e == 3 else vZ
                if i == 0 and e in (0, 3):
                    a(f"v_xor_b32 {v(z)}, {s(sE+e)}, {v(B+e)}")
                else:
                    a(f"v_bitop3_b32 {v(z)}, {v(z)}, {v(B+4*i+e)}, {s(sE+e)} bitop3:0xf6")
        a(f"v_cndmask_b32 {v(vU)}, {v(vU)}, 0, {sp(sMe)}")
        a(f"v_bitop3_b32 {v(vZ)}, {v(vZ)}, {v(vU)}, {v(vMask)} bitop3:0xa8")
        a(f"v_cmp_ne_u32 vcc, 0, {v(vZ)}")
        a(f"s_cbranch_vccz {ok}")
    def p_math(B):
        if stamp == 2: a("s_memrealtime s[88:89]")
        a(f"v_max_f32 {v(vY)}, {v(B+3)}, {v(B+7)}")
        for i in range(2, NLD, 2): a(f"v_max3_f32 {v(vY)}, {v(vY)}, {v(B+4*i+3)}, {v(B+4*i+7)}")
        a(f"v_max_f32_dpp {v(vY)}, {v(vY)}, {v(vY)} row_ror:8 {DPP}")
        xrows("v_max_f32", vY, vU)
        a(f"v_mov_b32_dpp {v(vY)}, {v(vY)} quad_perm:[0,0,2,2] {DPP}")
        for i in range(NLD): a(f"v_sub_f32_dpp {v(vFt+i)}, {v(B+4*i+3)}, {v(vY)} quad_perm:[0,0,2,2] {DPP}")
        for i in range(NLD): a(f"v_exp_f32 {v(vFt+i)}, {v(vFt+i)}")
        for i in range(NLD):
            sel = f"op_sel:[0,{i&1}" ; selh = f"op_sel_hi:[1,{i&1}"
            for h in range(2):
                if i == 0:
                    a(f"v_pk_mul_f32 {vp(vO2+2*h)}, {vp(B+2*h)}, {vp(vFt)} {sel}] {selh}]")
                else:
                    a(f"v_pk_fma_f32 {vp(vO2+2*h)}, {vp(B+4*i+2*h)}, {vp(vFt+(i&~1))}, {vp(vO2+2*h)} {sel},0] {selh},1]")
    SETS = [vFd + 4*NLD*k for k in range(pp)]
    if stamp == 2: a("s_memrealtime s[86:87]")
    if pp == 1:
        a.label("L_try")
        p_issue(SETS[0]); p_check(SETS[0], 0, "L_ok0")
        if psleep: a(f"s_sleep {psleep}")
    else:
        p_issue(SETS[0]); p_check(SETS[0], 0, "L_ok0")
        for k in range(pp-1):
            p_issue(SETS[k]); a(f"s_sleep {pstag}")
        a.label("L_try")
        for k in range(pp):
            p_issue(SETS[(k+pp-1) % pp]); p_check(SETS[k], NLD*(pp-1), f"L_ok{k}")
    a(f"s_add_u32 {s(sSpin)}, {s(sSpin)}, 1")
    a(f"s_cmp_lt_u32 {s(sSpin)}, 2000000")
    a("s_cbranch_scc1 L_try")
    for k in range(pp-1, -1, -1):
        a.label(f"L_ok{k}")
        p_math(SETS[k])
        if k: a("s_branch L_fin")
    a.label("L_fin")
    a(f"v_permlane32_swap_b32 {v(vO2)}, {v(vO2+1)}")
    a(f"v_permlane32_swap_b32 {v(vO2+2)}, {v(vO2+3)}")
    a(f"v_add_f32 {v(vO2)}, {v(vO2)}, {v(vO2+1)}")
    a(f"v_add_f32 {v(vO2+2)}, {v(vO2+2)}, {v(vO2+3)}")
    a(f"v_permlane16_swap_b32 {v(vO2)}, {v(vO2+2)}")
    a(f"v_add_f32 {v(vO2)}, {v(vO2)}, {v(vO2+2)}")
    a(f"v_add_f32_dpp {v(vO2)}, {v(vO2)}, {v(vO2)} row_ror:8 {DPP}")
    a(f"v_rcp_f32 {v(vX)}, {v(vO2)}")
    a(f"v_readlane_b32 {s(sT1)}, {v(vX)}, 49")
    a(f"v_mul_f32 {v(vO2)}, {s(sT1)}, {v(vO2)}")
    a(f"v_cvt_pk_bf16_f32 {v(vO2)}, {v(vO2)}, {v(vO2)}")
    a("s_mov_b32 exec_lo, 0x00ff00ff"); a("s_mov_b32 exec_hi, 0xff")
    if "noout" in dbg:
        pass
    elif "out1" in dbg:
        a("s_mov_b64 exec, 7"); a(f"s_mul_i32 {s(sOo)}, s2, 48")
        a(f"buffer_store_dwordx4 {v4(vO2)}, {v(vL16)}, {srd(sOUT)}, {s(sOo)} offen {outf}")
    else:
        a(f"buffer_store_short {v(vO2)}, {v(vKk)}, {srd(sOUT)}, {s(sOo)} offen {outf}")
    if stamp == 2: a("s_memrealtime s[90:91]")
    if xpoll: a.label("L_cend")
    if stamp:
        a("s_mov_b64 exec, -1")
        a("s_waitcnt vmcnt(0)")
        a(f"s_memrealtime {sp(sT2)}")
        if xpoll:
            a("s_waitcnt lgkmcnt(0)")
            a(f"v_mov_b32 {v(vX)}, {s(sT2)}"); a(f"v_mov_b32 {v(vY)}, 1"); a("s_mov_b64 exec, 1")
            a(f"ds_max_u32 {v(vCT)}, {v(vX)} offset:80"); a(f"ds_add_u32 {v(vCT)}, {v(vY)} offset:84"); a("s_mov_b64 exec, -1")
            a(f"s_cmp_eq_u32 {s(sWave)}, 5"); a("s_cbranch_scc0 L_end")
            a(f"s_cmp_lt_u32 s2, {NG*8}" if REV else f"s_cmp_ge_u32 s2, {256-NG*8}")
            a(f"s_cselect_b32 {s(sT1)}, {1+xpoll}, 1")
            lds_wait("L_sx", 84, s(sT1), sT0, 1)
            lds_wait("L_sy", 80, 0, sT2, 0, cmp="s_cmp_eq_u32")
        wait_cons("L_sw", NST, 1)
        a(f"v_add_u32 {v(vU)}, {L_TS}, {v(vL16)}")
        a(f"ds_read_b128 {v4(64)}, {v(vU)}"); a(f"ds_read_b128 {v4(68)}, {v(vU)} offset:1024")
        a(f"ds_read_b128 {v4(72)}, {v(vCT)} offset:64")
        a("s_waitcnt lgkmcnt(0)")
        a(f"v_max3_u32 {v(72)}, {v(72)}, {v(73)}, {v(74)}"); a(f"v_max_u32 {v(69)}, {v(72)}, {v(75)}")
        a(f"v_mov_b32 {v(70)}, {s(sT2)}")
        a(f"s_lshl_b32 {s(sT0)}, s2, 11"); a(f"s_add_u32 {s(sT0)}, {s(sT0)}, {STAMP_OFF+8192}")
        a(f"buffer_store_dwordx4 {v4(64)}, {v(vL16)}, {srd(sWS)}, {s(sT0)} offen")
        a("s_mov_b64 exec, 1")
        a(f"buffer_store_dwordx4 {v4(68)}, {v(vL16)}, {srd(sWS)}, {s(sT0)} offen offset:1024")
        if stamp == 3:
            a(f"ds_read_b128 {v4(80)}, {v(vCT)} offset:96"); a(f"ds_read_b128 {v4(84)}, {v(vCT)} offset:112"); a("s_waitcnt lgkmcnt(0)")
            a(f"buffer_store_dwordx4 {v4(80)}, {v(vL16)}, {srd(sWS)}, {s(sT0)} offen offset:1040")
            a(f"buffer_store_dwordx4 {v4(84)}, {v(vL16)}, {srd(sWS)}, {s(sT0)} offen offset:1056")
        if stamp == 2:
            a("v_mov_b32 v80, s86"); a("v_mov_b32 v81, s88"); a("v_mov_b32 v82, s90"); a(f"v_mov_b32 v83, {s(sSpin)}")
            a(f"buffer_store_dwordx4 {v4(80)}, {v(vL16)}, {srd(sWS)}, {s(sT0)} offen offset:1040")
        a(f"v_mov_b32 {v(76)}, {s(sStart)}"); a(f"v_mov_b32 {v(77)}, {s(sStart+1)}"); a(f"v_mov_b32 {v(78)}, {s(sT2)}"); a(f"v_mov_b32 {v(79)}, {s(sT3)}")
        if stampe is not None:
            a(f"v_mov_b32 v78, {L_TS+4*stampe}"); a("ds_read_b32 v78, v78"); a("s_waitcnt lgkmcnt(0)")
        a(f"s_lshl_b32 {s(sT0)}, s2, 4"); a(f"s_add_u32 {s(sT0)}, {s(sT0)}, {STAMP_OFF}")
        a(f"buffer_store_dwordx4 {v4(76)}, {v(vL16)}, {srd(sWS)}, {s(sT0)} offen")
    a("s_endpgm")

    sCp, sXo, sKc, sPrev, sOk, sPub, sTn = 16, 17, 18, 19, 20, 21, 22
    sPW, sTau = 24, 25
    vLs, vOwn, vPb, vA, vB, vCc = 5, 6, 7, 8, 9, 10
    PG = 256 // npub
    TQ = int(round(tau0 * 100 * 4096 / 16 / 32))
    a("; ==== balancer ===="); a.label("L_bal")
    a(f"s_cmp_eq_u32 {s(sWave)}, 6")
    a("s_cbranch_scc0 L_exch")
    sKk, sThr, sW, sDith, sN, sLm, sNow = 4, 5, 6, 7, 8, 9, 10
    sL0, sLn, sW0, sWn, sSl, sIx, sLf, sIf, sN0, sRk, sAk, sAdj, sTl = 12, 13, 14, 15, 16, 17, 18, 19, 20, 21, 22, 23, 24
    vPr, vRef, vTs, vT, vOl, vVs, vSlp, vNr = 8, 12, 14, 15, 16, 17, 18, 19
    if warp == 0: SEG = [(128,)*4, (128,)*4]
    if warp == 1: SEG = [(24,20,20,20), (16,24,24,24), (48,40,40,40), (16,20,24,24), (24,24,20,20), (32,44,48,48), (96,84,80,80)]
    if warp == 2: SEG = [(128,)*4, (32,44,48,48), (96,84,80,80)]
    if warp == 3: SEG = [(24,20,20,20), (16,24,24,24), (48,40,40,40), (16,20,24,24), (24,24,20,20), (32,44,48,48), (48,36,40,48), (48,48,40,32)]
    if blk and warp: SEG = [(96,84,80,80), (32,44,48,48), (32,44,48,48), (96,84,80,80)]
    assert all(sum(x[g] for x in SEG) == NST for g in range(4)) and NG == 4 and (warp == 0 or (rotK == 4 and rotV == 4 and serp))
    if bprio: a(f"s_setprio {bprio}")
    a(f"v_mov_b32 {v(vOl)}, -1")
    for k, x in enumerate(SEG):
        a(f"s_mov_b32 {s(sT0)}, {hex(sum(x[g] << (8*g) for g in range(4)))}"); a(f"v_writelane_b32 {v(vOl)}, {s(sT0)}, {k}")
    a(f"s_lshl_b32 {s(sT0)}, {s(sG)}, 3")
    a(f"v_sad_u8 {v(vVs)}, {v(vOl)}, 0, 0")
    a(f"v_bfe_u32 {v(vOl)}, {v(vOl)}, {s(sT0)}, 8")
    a(f"v_cvt_f32_u32 {v(vT)}, {v(vVs)}"); a(f"v_cvt_f32_u32 {v(vF)}, {v(vOl)}")
    a(f"v_rcp_f32 {v(vSlp)}, {v(vF)}"); a(f"v_rcp_f32 {v(vNr)}, {v(vT)}")
    a(f"v_mul_f32 {v(vT)}, {hex(f2u(65536*8/12))}, {v(vT)}"); a(f"v_mul_f32 {v(vF)}, {hex(f2u(n0*256*4))}, {v(vF)}")
    a(f"v_mul_f32 {v(vSlp)}, {v(vSlp)}, {v(vT)}"); a(f"v_mul_f32 {v(vNr)}, {v(vNr)}, {v(vF)}")
    a(f"v_cvt_u32_f32 {v(vSlp)}, {v(vSlp)}"); a(f"v_cvt_u32_f32 {v(vNr)}, {v(vNr)}")
    a(f"v_mul_u32_u24 {v(vOl)}, 12, {v(vOl)}"); a(f"v_lshlrev_b32 {v(vVs)}, 3, {v(vVs)}")
    for r in (sKk, sLm, sLn, sWn, sIx, sLf, sIf, sAk, sAdj, sTl): a(f"s_mov_b32 {s(r)}, 0")
    a(f"s_mov_b32 {s(sThr)}, 32"); a(f"s_mov_b32 {s(sDith)}, 128")
    a(f"v_mov_b32 {v(vTs)}, {L_TS}")
    a(f"s_lshl_b32 {s(sT0)}, {s(sStart)}, 12")
    a(f"s_add_u32 {s(sT0)}, {s(sT0)}, {int(round(t1*100*4096))}")
    a(f"v_mov_b32 {v(vRef)}, {s(sT0)}"); a(f"v_mov_b32 {v(vRef+1)}, {TQ}")
    a(f"ds_write_b64 {v(vCT)}, {vp(vRef)} offset:{C_REF}")
    a(f"v_mov_b32 {v(vT)}, {s(sStart)}"); a(f"ds_write_b32 {v(vTs)}, {v(vT)}")
    a.label("L_g")
    if gsleep: a(f"s_sleep {gsleep}")
    a(f"ds_read_b32 {v(vF)}, {v(vCT)} offset:{C_LAND}")
    a(f"s_memrealtime {sp(sNow)}")
    a(f"ds_read_b128 {v4(vPr)}, {v(vCT)}")
    a(f"ds_read_b64 {vp(vRef)}, {v(vCT)} offset:{C_REF}")
    a("s_waitcnt lgkmcnt(0)")
    a(f"v_readfirstlane_b32 {s(sT3)}, {v(vF)}")
    a(f"v_min3_i32 {v(vT)}, {v(vPr)}, {v(vPr+1)}, {v(vPr+2)}"); a(f"v_min_i32 {v(vPr)}, {v(vT)}, {v(vPr+3)}")
    a(f"v_readfirstlane_b32 {s(sT0)}, {v(vRef)}"); a(f"v_readfirstlane_b32 {s(sT1)}, {v(vRef+1)}")
    a(f"s_lshr_b32 {s(sRk)}, {s(sT1)}, 16"); a(f"s_and_b32 {s(sT1)}, {s(sT1)}, 0xffff")
    if gap:
        a("; a long stall hits the whole chip: until the next reference arrives, do not count it as own lag")
        a(f"s_cmp_lt_u32 {s(sRk)}, {s(sAk)}"); a(f"s_cselect_b32 {s(sAdj)}, {s(sAdj)}, 0")
        a(f"s_cmp_lt_u32 {s(sKk)}, 6"); a(f"s_cselect_b32 {s(sTl)}, {s(sNow)}, {s(sTl)}")
        a(f"s_sub_u32 {s(sT2)}, {s(sNow)}, {s(sTl)}")
        a(f"s_cmp_gt_u32 {s(sT2)}, {int(gap*100)}"); a(f"s_cselect_b32 {s(sT2)}, {s(sT2)}, {int(gap0*100)}")
        a(f"s_sub_u32 {s(sT2)}, {s(sT2)}, {int(gap0*100)}"); a(f"s_lshl_b32 {s(sT2)}, {s(sT2)}, 12")
        a(f"s_add_u32 {s(sT2)}, {s(sT2)}, {s(sAdj)}")
        a(f"s_add_u32 {s(sT0)}, {s(sT0)}, {s(sT2)}")
        a(f"s_cmp_gt_i32 {s(sT3)}, {s(sLm)}")
        a("s_cbranch_scc0 L_gq")
        a(f"s_mov_b32 {s(sTl)}, {s(sNow)}")
        a(f"s_cmp_eq_u32 {s(sT2)}, {s(sAdj)}")
        a("s_cbranch_scc1 L_gq")
        a(f"s_mov_b32 {s(sAdj)}, {s(sT2)}"); a(f"s_add_u32 {s(sAk)}, {s(sKk)}, 1")
        a.label("L_gq")
    a(f"s_max_i32 {s(sLm)}, {s(sLm)}, {s(sT3)}")
    a(f"s_cmp_ge_u32 {s(sLm)}, {s(sLn)}")
    a("s_cbranch_scc0 L_gs")
    a(f"s_mov_b32 {s(sL0)}, {s(sLn)}"); a(f"s_mov_b32 {s(sW0)}, {s(sWn)}")
    a(f"v_readlane_b32 {s(sT2)}, {v(vOl)}, {s(sIx)}"); a(f"v_readlane_b32 {s(sT3)}, {v(vVs)}, {s(sIx)}"); a(f"v_readlane_b32 {s(sSl)}, {v(vSlp)}, {s(sIx)}")
    a(f"s_add_u32 {s(sIx)}, {s(sIx)}, 1")
    a(f"s_add_u32 {s(sLn)}, {s(sLn)}, {s(sT2)}"); a(f"s_add_u32 {s(sWn)}, {s(sWn)}, {s(sT3)}")
    a.label("L_gs")
    a(f"s_add_u32 {s(sT2)}, {s(sLm)}, {lead}")
    a(f"s_cmp_ge_u32 {s(sT2)}, {s(sLf)}")
    a("s_cbranch_scc0 L_gf")
    a(f"v_readlane_b32 {s(sT2)}, {v(vOl)}, {s(sIf)}"); a(f"v_readlane_b32 {s(sN0)}, {v(vNr)}, {s(sIf)}")
    a(f"s_add_u32 {s(sIf)}, {s(sIf)}, 1")
    a(f"s_add_u32 {s(sLf)}, {s(sLf)}, {s(sT2)}")
    a.label("L_gf")
    a(f"s_sub_u32 {s(sW)}, {s(sLm)}, {s(sL0)}"); a(f"s_mul_i32 {s(sW)}, {s(sW)}, {s(sSl)}"); a(f"s_lshr_b32 {s(sW)}, {s(sW)}, 16"); a(f"s_add_u32 {s(sW)}, {s(sW)}, {s(sW0)}")
    a(f"s_cmp_ge_u32 {s(sW)}, {s(sThr)}")
    a("s_cbranch_scc0 L_gn")
    a(f"s_add_u32 {s(sKk)}, {s(sKk)}, 1"); a(f"s_add_u32 {s(sThr)}, {s(sThr)}, 32")
    a(f"v_add_u32 {v(vTs)}, 4, {v(vTs)}"); a(f"v_mov_b32 {v(vT)}, {s(sNow)}"); a(f"ds_write_b32 {v(vTs)}, {v(vT)}")
    a(f"v_mov_b32 {v(vT)}, {s(sKk)}"); a(f"ds_write_b32 {v(vCT)}, {v(vT)} offset:{C_STEP}")
    a("; window = n0 * share + kp * (now - reference time for the loads that have landed)"); a.label("L_gn")
    a(f"s_mul_i32 {s(sT1)}, {s(sT1)}, {s(sW)}"); a(f"s_add_u32 {s(sT0)}, {s(sT0)}, {s(sT1)}")
    a(f"s_lshl_b32 {s(sT1)}, {s(sNow)}, 12"); a(f"s_sub_u32 {s(sT0)}, {s(sT1)}, {s(sT0)}")
    a(f"s_ashr_i32 {s(sT0)}, {s(sT0)}, 6")
    a(f"s_min_i32 {s(sT0)}, {s(sT0)}, 0x40000"); a(f"s_max_i32 {s(sT0)}, {s(sT0)}, {hex((-0x40000) & 0xffffffff)}")
    a(f"s_mul_i32 {s(sT0)}, {s(sT0)}, {int(round(kp*163.84)) if ctl else 0}"); a(f"s_ashr_i32 {s(sT0)}, {s(sT0)}, 12")
    a(f"s_and_b32 {s(sDith)}, {s(sDith)}, 255"); a(f"s_add_u32 {s(sDith)}, {s(sDith)}, {s(sT0)}"); a(f"s_add_u32 {s(sDith)}, {s(sDith)}, {s(sN0)}")
    a(f"s_ashr_i32 {s(sN)}, {s(sDith)}, 8")
    a(f"s_min_i32 {s(sN)}, {s(sN)}, {nmax}"); a(f"s_max_i32 {s(sN)}, {s(sN)}, {nmin}")
    a(f"s_cmp_lt_u32 {s(sKk)}, {kstart}"); a(f"s_cselect_b32 {s(sN)}, {nstart}, {s(sN)}")
    a(f"s_add_u32 {s(sT0)}, {s(sN)}, {RS << 8}")
    a(f"v_lshl_add_u32 {v(vT)}, {v(vPr)}, 8, {s(sT0)}")
    a(f"ds_write_b32 {v(vCT)}, {v(vT)} offset:{C_G}")
    a(f"s_cmp_lt_u32 {s(sKk)}, {NST}")
    a("s_cbranch_scc1 L_g")
    if xpoll:
        a("; idle waves of the workgroups that combine the heads finished last poll as well"); a.label("L_xpoll")
        a(f"s_cmp_lt_u32 s2, {NG*8}" if REV else f"s_cmp_ge_u32 s2, {256-NG*8}")
        a("s_cbranch_scc0 L_end")
        comb_setup()
        a(f"v_and_b32 {v(vY)}, 1, {v(vLane)}"); a(f"v_cmp_eq_u32 {sp(sMe)}, 0, {v(vY)}")
        lds_wait("L_xe", C_EPO, 0, sE, 0, cmp="s_cmp_eq_u32")
        a(f"s_lshr_b32 {s(sE+1)}, {s(sE)}, 8"); a(f"s_lshr_b32 {s(sE+2)}, {s(sE)}, 16"); a(f"s_lshr_b32 {s(sE+3)}, {s(sE)}, 24")
        lds_wait("L_xl", C_LAND, NST*12, sT0, 3)
        a("s_branch L_try")
    a("s_endpgm")
    a("; ==== exchange of progress stamps ===="); a.label("L_exch")
    if not ctl:
        a("s_endpgm")
    mk(sWS, pWS, WSB)
    a(f"s_mov_b32 {s(sT0)}, {LSTR}"); a(f"v_mul_lo_u32 {v(vLs)}, {v(vLane)}, {s(sT0)}")
    a(f"s_lshr_b32 {s(sT0)}, s2, 3"); a(f"s_mul_i32 {s(sPub)}, {s(sX)}, 5"); a(f"s_add_u32 {s(sPub)}, {s(sPub)}, {s(sT0)}")
    a(f"s_and_b32 {s(sPub)}, {s(sPub)}, {PG-1}"); a(f"s_lshr_b32 {s(sT0)}, {s(sT0)}, {lg(PG)}")
    a(f"s_lshl_b32 {s(sT0)}, {s(sT0)}, 3"); a(f"s_add_u32 {s(sT0)}, {s(sT0)}, {s(sX)}"); a(f"s_mul_i32 {s(sT0)}, {s(sT0)}, {LSTR}")
    a("s_waitcnt vmcnt(0)")
    a(f"v_mov_b32 {v(vPb)}, {s(sT0)}")
    a(f"s_mov_b32 {s(sCp)}, 0"); a(f"s_mov_b32 {s(sXo)}, {X_OFF}"); a(f"s_mov_b32 {s(sKc)}, {k0}"); a(f"s_mov_b32 {s(sOk)}, 0")
    a(f"s_mov_b32 {s(sPrev)}, 0"); a(f"s_mov_b32 {s(sPW)}, 0"); a(f"s_mov_b32 {s(sTau)}, {TQ}")
    a.label("L_pc0")
    lds_wait("L_pw1", C_STEP, s(sKc), sT0, hsleep)
    a(f"s_lshl_b32 {s(sT0)}, {s(sKc)}, 2"); a(f"s_add_u32 {s(sT0)}, {s(sT0)}, {L_TS}"); a(f"v_mov_b32 {v(vA)}, {s(sT0)}")
    a(f"ds_read_b32 {v(vOwn)}, {v(vA)}"); a("s_waitcnt lgkmcnt(0)")
    a(f"s_and_b32 {s(sT0)}, {s(sCp)}, {PG-1}"); a(f"s_cmp_eq_u32 {s(sT0)}, {s(sPub)}"); a("s_cbranch_scc0 L_np")
    a("s_mov_b64 exec, 1")
    a(f"buffer_store_dword {v(vOwn)}, {v(vPb)}, {srd(sWS)}, {s(sXo)} offen sc0 sc1")
    a("s_mov_b64 exec, -1")
    a.label("L_np")
    if xm == 1:
        sJ, sOwn, sSum, sCnt, sMx, sBp = 32, 26, 27, 28, 29, 30
        a(f"s_add_u32 {s(sT1)}, {s(sKc)}, {D1}")
        lds_wait("L_pw2", C_STEP, s(sT1), sT0, hsleep)
        a(f"s_add_u32 {s(sBp)}, {s(pWS)}, {s(sXo)}"); a(f"s_addc_u32 {s(sBp+1)}, {s(pWS+1)}, 0")
        for j in range(npub): a(f"s_load_dword {s(sJ+j)}, {sp(sBp)}, {j*LSTR}")
        a(f"s_memrealtime {sp(sTn)}")
        a(f"v_readfirstlane_b32 {s(sOwn)}, {v(vOwn)}")
        a(f"s_mov_b32 {s(sSum)}, 0"); a(f"s_mov_b32 {s(sCnt)}, 0"); a(f"s_mov_b32 {s(sMx)}, -4096")
        a("s_waitcnt lgkmcnt(0)")
        a(f"s_sub_u32 {s(sT3)}, {s(sTn)}, {s(sOwn)}")
        for j in range(npub):
            a(f"s_sub_u32 {s(sT0)}, {s(sJ+j)}, {s(sOwn)}"); a(f"s_add_u32 {s(sT1)}, {s(sT0)}, 4096"); a(f"s_cmp_lt_u32 {s(sT1)}, 0x2000")
            a(f"s_cselect_b32 {s(sT0)}, {s(sT0)}, {s(sT3)}"); a(f"s_addc_u32 {s(sCnt)}, {s(sCnt)}, 0"); a(f"s_add_u32 {s(sSum)}, {s(sSum)}, {s(sT0)}")
            if alpha: a(f"s_max_i32 {s(sMx)}, {s(sMx)}, {s(sT0)}")
        a(f"s_cmp_lt_u32 {s(sCnt)}, {npub//2}"); a("s_cbranch_scc1 L_pskip")
        a(f"s_mul_i32 {s(sSum)}, {s(sSum)}, {int(round((1-alpha)*4096/npub))}")
        a(f"s_lshl_b32 {s(sT0)}, {s(sOwn)}, 12"); a(f"s_add_u32 {s(sT0)}, {s(sT0)}, {s(sSum)}")
        if alpha:
            a(f"s_mul_i32 {s(sMx)}, {s(sMx)}, {int(round(alpha*4096))}"); a(f"s_add_u32 {s(sT0)}, {s(sT0)}, {s(sMx)}")
    else:
        a(f"s_mul_i32 {s(sT0)}, {s(sCp)}, 37"); a(f"s_add_u32 {s(sT0)}, {s(sT0)}, 5"); a(f"s_and_b32 {s(sT0)}, {s(sT0)}, 255")
        a(f"s_cmp_eq_u32 {s(sT0)}, s2"); a("s_cbranch_scc0 L_nagg")
        a(f"s_add_u32 {s(sT1)}, {s(sKc)}, {D1}")
        lds_wait("L_pw2", C_STEP, s(sT1), sT0, hsleep)
        if npub < 64: a(f"s_mov_b64 exec, {hex((1 << npub) - 1)}")
        a(f"buffer_load_dword {v(vA)}, {v(vLs)}, {srd(sWS)}, {s(sXo)} offen sc0 sc1")
        a(f"s_memrealtime {sp(sTn)}")
        a("s_waitcnt vmcnt(0) lgkmcnt(0)")
        a(f"v_sub_u32 {v(vA)}, {v(vA)}, {v(vOwn)}")
        a(f"v_sub_u32 {v(vB)}, {s(sTn)}, {v(vOwn)}")
        a(f"v_add_u32 {v(vCc)}, 4096, {v(vA)}")
        a(f"v_cmp_gt_u32 vcc, 0x2000, {v(vCc)}")
        a(f"v_cndmask_b32 {v(vA)}, {v(vB)}, {v(vA)}, vcc")
        a(f"s_bcnt1_i32_b64 {s(sT2)}, vcc")
        row_reduce("v_add_u32", vA)
        a("s_mov_b64 exec, -1")
        a(f"v_readlane_b32 {s(sT0)}, {v(vA)}, 0")
        for r in range(1, npub // 16):
            a(f"v_readlane_b32 {s(sT1)}, {v(vA)}, {16*r}"); a(f"s_add_u32 {s(sT0)}, {s(sT0)}, {s(sT1)}")
        a(f"s_cmp_lt_u32 {s(sT2)}, {npub//2}"); a("s_cbranch_scc1 L_nagg")
        a(f"s_mul_i32 {s(sT0)}, {s(sT0)}, {4096//npub}")
        a(f"v_lshl_add_u32 {v(vA)}, {v(vOwn)}, 12, {s(sT0)}"); a(f"v_not_b32 {v(vB)}, {v(vA)}")
        a(f"s_add_u32 {s(sT0)}, {s(sXo)}, {R_OFF-X_OFF}")
        a("s_mov_b64 exec, 0xff")
        a(f"buffer_store_dwordx2 {vp(vA)}, {v(vLs)}, {srd(sWS)}, {s(sT0)} offen sc0 sc1")
        a("s_mov_b64 exec, -1")
        a.label("L_nagg")
        a(f"s_add_u32 {s(sT1)}, {s(sKc)}, {D2}")
        lds_wait("L_pw3", C_STEP, s(sT1), sT0, hsleep)
        a(f"s_mul_i32 {s(sT0)}, {s(sX)}, {LSTR}"); a(f"s_add_u32 {s(sT0)}, {s(sT0)}, {s(sXo)}"); a(f"s_add_u32 {s(sT0)}, {s(sT0)}, {R_OFF-X_OFF}")
        a("s_mov_b64 exec, 1")
        a(f"buffer_load_dwordx2 {vp(vA)}, {v(vLs)}, {srd(sWS)}, {s(sT0)} offen sc0 sc1")
        a("s_waitcnt vmcnt(0)")
        a(f"v_readfirstlane_b32 {s(sT0)}, {v(vA)}"); a(f"v_readfirstlane_b32 {s(sT1)}, {v(vB)}"); a(f"v_readfirstlane_b32 {s(sT2)}, {v(vOwn)}")
        a("s_mov_b64 exec, -1")
        a(f"s_xor_b32 {s(sT1)}, {s(sT1)}, {s(sT0)}"); a(f"s_cmp_eq_u32 {s(sT1)}, -1"); a("s_cbranch_scc0 L_pskip")
        a(f"s_lshl_b32 {s(sT2)}, {s(sT2)}, 12"); a(f"s_sub_u32 {s(sT2)}, {s(sT2)}, {s(sT0)}"); a(f"s_add_u32 {s(sT2)}, {s(sT2)}, 0x1000000")
        a(f"s_cmp_lt_u32 {s(sT2)}, 0x2000000"); a("s_cbranch_scc0 L_pskip")
    a(f"s_min_u32 {s(sT2)}, {s(sKc)}, {TX if wext else 0}"); a(f"s_lshl_b32 {s(sT3)}, {s(sKc)}, 5"); a(f"s_add_u32 {s(sT2)}, {s(sT2)}, {s(sT3)}")
    a(f"s_sub_u32 {s(sT1)}, {s(sT0)}, {s(sPrev)}"); a(f"s_sub_u32 {s(sT3)}, {s(sT2)}, {s(sPW)}")
    a(f"v_cvt_f32_u32 {v(vA)}, {s(sT1)}"); a(f"v_cvt_f32_u32 {v(vB)}, {s(sT3)}")
    a(f"v_rcp_f32 {v(vB)}, {v(vB)}")
    a(f"v_mul_f32 {v(vA)}, {hex(f2u(1.0-eps))}, {v(vA)}")
    a(f"v_mul_f32 {v(vA)}, {v(vA)}, {v(vB)}")
    if tlo:
        a(f"v_mul_f32 {v(vB)}, {hex(f2u(1.0-tlo))}, {v(vA)}"); a(f"v_mov_b32 {v(vCc)}, {hex(f2u(float(TQ)))}")
        a(f"v_mul_f32 {v(vA)}, {hex(f2u(1.0+thi))}, {v(vA)}")
        a(f"v_med3_f32 {v(vA)}, {v(vA)}, {v(vB)}, {v(vCc)}")
    a(f"v_cvt_u32_f32 {v(vA)}, {v(vA)}")
    a(f"v_readfirstlane_b32 {s(sT1)}, {v(vA)}")
    a(f"s_mov_b32 {s(sPrev)}, {s(sT0)}"); a(f"s_mov_b32 {s(sPW)}, {s(sT2)}")
    a(f"s_cmp_eq_u32 {s(sOk)}, 0"); a(f"s_cselect_b32 {s(sT1)}, {TQ}, {s(sT1)}"); a(f"s_mov_b32 {s(sOk)}, 1")
    if slew is not None:
        d_ = int(round(slew*TQ))
        a(f"s_add_u32 {s(sT3)}, {s(sTau)}, {d_}"); a(f"s_min_u32 {s(sT1)}, {s(sT1)}, {s(sT3)}")
        a(f"s_sub_u32 {s(sT3)}, {s(sTau)}, {d_}"); a(f"s_max_u32 {s(sT1)}, {s(sT1)}, {s(sT3)}")
        a(f"s_mov_b32 {s(sTau)}, {s(sT1)}")
    else:
        a(f"s_min_u32 {s(sT1)}, {s(sT1)}, 0xffff")
    a(f"s_mul_i32 {s(sT2)}, {s(sT2)}, {s(sT1)}"); a(f"s_sub_u32 {s(sT0)}, {s(sT0)}, {s(sT2)}")
    a(f"s_pack_ll_b32_b16 {s(sT1)}, {s(sT1)}, {s(sKc)}")
    a(f"v_mov_b32 {v(vA)}, {s(sT0)}"); a(f"v_mov_b32 {v(vB)}, {s(sT1)}")
    a(f"ds_write_b64 {v(vCT)}, {vp(vA)} offset:{C_REF}")
    a.label("L_pskip")
    a(f"s_add_u32 {s(sCp)}, {s(sCp)}, 1"); a(f"s_add_u32 {s(sXo)}, {s(sXo)}, {npub*LSTR}"); a(f"s_add_u32 {s(sKc)}, {s(sKc)}, {C}")
    a(f"s_cmp_lt_u32 {s(sKc)}, {NST-(D1 if xm else D2)-2}"); a("s_cbranch_scc1 L_pc0")
    if xpoll >= 2: a("s_branch L_xpoll")
    a.label("L_end")
    a("s_endpgm")
    a.raw('.section .rodata,"a"')
    a.raw(".p2align 6"); a.raw(f".amdhsa_kernel {KN}")
    a.raw(f"  .amdhsa_next_free_vgpr {NV}"); a.raw("  .amdhsa_next_free_sgpr 96"); a.raw(f"  .amdhsa_accum_offset {NV}")
    a.raw("  .amdhsa_group_segment_fixed_size 0"); a.raw("  .amdhsa_kernarg_size 112"); a.raw("  .amdhsa_user_sgpr_count 2")
    a.raw("  .amdhsa_user_sgpr_kernarg_segment_ptr 1"); a.raw("  .amdhsa_system_sgpr_workgroup_id_x 1"); a.raw(".end_amdhsa_kernel")
    return a.text()

if __name__ == "__main__":
    import argparse
    ap = argparse.ArgumentParser()
    ap.add_argument("-o", default="standalone__kv_cache_quant_pre_rope_vs_post_rope__decode.s")
    args = ap.parse_args()
    open(args.o, "w").write(gen())
```

```python
import sys, math, struct
from asmb import Asm

KN = "standalone__kv_cache_quant_pre_rope_vs_post_rope__decode_kernel"
HS = 16384 * 768
KVB = 32 * HS
CSB = 16384 * 384
WSB = 1610612736
X_OFF = 32 << 20
R_OFF = 40 << 20
STAMP_OFF = 1 << 30
SB = 12288

def f2u(f): return struct.unpack("<I", struct.pack("<f", f))[0]
HEADER = open("standalone__kv_cache_quant_pre_rope_vs_post_rope__decode.s.ref").read().split("; Override launch")[0]

def gen(NG=4, RS=9, nmin=12, nmax=36, n0=22.0, kp=6.0, tau0=6.38, t1=3.3, k0=8, C=16, D1=4, D2=10, npub=8, LSTR=4352, eps=0.0,
        rotV=4, rotK=4, F=3, stamp=0, csleep=1, hsleep=8, psleep=1, ipre=2, ctl=1, stf="sc0 sc1", ldf="sc0 sc1", csf="", scf="",
        wext=0, dbg="", epk=16, kstart=4, nstart=24, csw=4, sct=4, sc0=16, roles=(4,0,1,2,7,3,5,6), tlo=0.03, gsleep=1, scpre=3, spw=16, xm=1, serp=1, alpha=0.2, thi=0.02, boost=None, dry=0, xpoll=0, kend=None, outf="sc0 sc1", gm=1, fm=1, pre=3, fine=1, gfresh=2, wspre=3, pp=2, pstag=6, csmode=2, scph=1, scrot=1, splate=None, eps_=1, tlbp=0, tlbf="", stampe=None, spf="", cs0f=None, warp=1, lead=22, FL=30, slew=0.01, gap=1.0, gap0=0.15, bprio=0, hold=0, blk=0, direct=0, opre=0, cprio=0, spec=0, flf="sc0 sc1 nt", PL=0):
    GW = 256 // NG; SPH = 4 * NG; HPG = 32 // NG; NQ = NG; PD = max(1, HPG // 4)
    A = min(4, HPG)
    lg = lambda x: x.bit_length() - 1
    NST = 256
    REV = 1 if (serp and NQ > 1) else 0
    TX = 128 - 4 * HPG
    L_RING = 0
    L_SC = RS * SB
    L_X = L_SC + 16384
    L_QS = L_X + 16384
    L_QT = L_QS + HPG * 1024
    L_ST = L_QT + HPG * 768
    L_TS = L_ST + HPG * 16
    L_CT = L_TS + 1088
    C_LAND, C_STEP, C_REF, C_QRDY, C_PRDY, C_EPO, C_G, C_DONE = 16, 20, 24, 32, 36, 40, 44, 48
    lds = L_CT + 256
    assert lds <= 163840, lds
    a = Asm()
    a.raw(HEADER.rstrip("\n"))
    a.raw(f"; @launch grid=(256,1,1) block=(512,1,1) lds={lds}")
    a.raw('.amdgcn_target "amdgcn-amd-amdhsa--gfx950"')
    for l in f"""Overview (256 workgroups, HBM-bandwidth bound; a workgroup owns {64*NG} rows x {HPG} heads, a step is 16 rows of one head):
 * loader wave: streams all K steps, then all V steps, into an LDS ring with LDS-DMA loads.
 * balancer wave: picks how many loads the loader keeps in flight ({nmin}..{nmax}) from how far this workgroup is behind or
   ahead of the others (flow control against the unfair memory arbitration between dies).  That keeps the chip's reads in a
   few narrow address windows (better DRAM efficiency) and lets all workgroups finish together.  No wave ever waits for a
   point in time: the clock is only read to compare progress, s_sleep appears only in loops that poll for data.
 * exchange wave: a few workgroups publish progress time stamps through d_ws, everybody averages them (speed only).
 * 4 consumer waves, K steps: logit = ks * sum_d (k[d]-kz) * (qr[d]*cos[d] +- qr[d+-96]*sin[d+-96])  (RoPE moved onto q).
 * helper wave: rotated q table, scales, softmax weights relative to the true max of the workgroup's rows.
 * consumers, V steps: 48 columns each; per head one partial (max, sum, 192 values) tagged with a per-launch epoch
   (agreed through d_debug[0]) so that stale contents of d_ws are never accepted.
 * The helper of workgroup i finally combines 24 output columns (i&7) of head (i>>3) from all partials.""".split("\n"):
        a.raw("; " + l)
    a.raw(".text"); a.raw(f".globl {KN}"); a.raw(".p2align 8"); a.raw(f".type {KN},@function"); a.raw(f"{KN}:")
    srd = lambda b: f"s[{b}:{b+3}]"
    sp = lambda i: f"s[{i}:{i+1}]"
    v = lambda i: f"v{i}"
    vp = lambda i: f"v[{i}:{i+1}]"
    v4 = lambda i: f"v[{i}:{i+3}]"
    s = lambda i: f"s{i}"
    DPP = "row_mask:0xf bank_mask:0xf"
    pQ, pK, pKS, pKZ, pV, pVS, pVZ, pQC, pQS, pKC, pKSN, pOUT, pDBG, pWS = range(48, 76, 2)
    sWave, sG, sI, sX = 76, 77, 78, 79
    sT0, sT1, sT2, sT3 = 80, 81, 82, 83
    sStart = 84
    def mk(b, p, n):
        a(f"s_mov_b32 {s(b)}, {s(p)}"); a(f"s_mov_b32 {s(b+1)}, {s(p+1)}"); a(f"s_mov_b32 {s(b+2)}, {n}"); a(f"s_mov_b32 {s(b+3)}, 0x20000")
    vLane, vL16, vCT, vF = 1, 2, 3, 4
    def lds_wait(lbl, off, val, dst, sleep, cmp="s_cmp_lt_i32"):
        a.label(lbl)
        if sleep: a(f"s_sleep {sleep}")
        a(f"ds_read_b32 {v(vF)}, {v(vCT)} offset:{off}")
        a("s_waitcnt lgkmcnt(0)")
        a(f"v_readfirstlane_b32 {s(dst)}, {v(vF)}")
        a(f"{cmp} {s(dst)}, {val}")
        a(f"s_cbranch_scc1 {lbl}")
    def row_reduce(op, x):
        a(f"{op}_dpp {v(x)}, {v(x)}, {v(x)} quad_perm:[1,0,3,2] {DPP}")
        a(f"{op}_dpp {v(x)}, {v(x)}, {v(x)} quad_perm:[2,3,0,1] {DPP}")
        a(f"{op}_dpp {v(x)}, {v(x)}, {v(x)} row_half_mirror {DPP}")
        a(f"{op}_dpp {v(x)}, {v(x)}, {v(x)} row_mirror {DPP}")
    def xrows(op, x, t1_):
        a(f"v_mov_b32 {v(t1_)}, {v(x)}")
        a(f"v_permlane32_swap_b32 {v(x)}, {v(t1_)}")
        a(f"{op} {v(x)}, {v(x)}, {v(t1_)}")
        a(f"v_mov_b32 {v(t1_)}, {v(x)}")
        a(f"v_permlane16_swap_b32 {v(x)}, {v(t1_)}")
        a(f"{op} {v(x)}, {v(x)}, {v(t1_)}")

    def ev(k):
        if stamp == 3: a(f"s_memrealtime s[{86+2*k}:{87+2*k}]")
    def evw(k, slot, base=None):
        if stamp == 3:
            a("s_waitcnt lgkmcnt(0)"); a(f"v_mov_b32 {v(vF)}, s{86+2*k if base is None else base}"); a(f"ds_write_b32 {v(vCT)}, {v(vF)} offset:{96+4*slot}")
    bJ, bS, bM, bB = 40, 41, 42, 43
    def blk_init():
        a(f"s_mov_b32 {s(bJ)}, 0"); a(f"s_mov_b32 {s(bS)}, 0"); a(f"s_mov_b32 {s(bB)}, 0")
        a(f"s_cmp_eq_u32 {s(sG)}, 0"); a(f"s_cselect_b32 {s(bM)}, 6, 5")
    def blk_slot(u):
        a(f"s_mov_b32 {s(bJ)}, 0"); a(f"s_add_u32 {s(bS)}, {s(bS)}, 1")
        a(f"s_sub_u32 {s(sT0)}, {HPG}, {s(bM)}")
        a(f"s_cmp_eq_u32 {s(bS)}, 4")
        a(f"s_cselect_b32 {s(bB)}, {s(bM)}, {s(bB)}"); a(f"s_cselect_b32 {s(bM)}, {s(sT0)}, {s(bM)}"); a(f"s_cselect_b32 {s(sT0)}, 0, 4")
        a(f"s_add_u32 {s(u)}, {s(u)}, {s(sT0)}"); a(f"s_and_b32 {s(u)}, {s(u)}, {SPH-1}")
    def blk_head(dst):
        a(f"s_sub_u32 {s(sT0)}, {s(bM)}, {s(bJ)}"); a(f"s_sub_u32 {s(sT0)}, {s(sT0)}, 1")
        a(f"s_bitcmp1_b32 {s(bS)}, 0"); a(f"s_cselect_b32 {s(sT0)}, {s(sT0)}, {s(bJ)}"); a(f"s_add_u32 {s(dst)}, {s(sT0)}, {s(bB)}")
    sK = 4
    sBase, sOff, sT, sGw, sEnd, sN, sRotK, sRotV = 8, 9, 10, 11, 12, 15, 16, 17
    vI, vT, vG = 5, 6, 7
    G0 = ((RS if hold is None else pre) << 8) | nstart
    assert rotK % 4 == 0 and rotV % 4 == 0 and roles[0] == 4 and (NG-1)*rotK < SPH and nstart >= 24
    a("s_cmp_ge_u32 s2, 256")
    a("s_cbranch_scc1 L_end")
    a(f"s_load_dwordx2 {sp(sK)}, s[0:1], 8")
    if stamp: a(f"s_memrealtime {sp(sStart)}")
    a(f"v_readfirstlane_b32 {s(sWave)}, v0")
    a(f"s_and_b32 {s(sX)}, s2, 7")
    a(f"s_lshr_b32 {s(sI)}, s2, {3+lg(NG)+lg(A)}")
    a(f"s_lshl3_add_u32 {s(sI)}, {s(sI)}, {s(sX)}")
    a(f"s_lshr_b32 {s(sG)}, s2, 3")
    a(f"s_lshr_b32 {s(sT0)}, {s(sG)}, {lg(NG)}")
    a(f"s_and_b32 {s(sG)}, {s(sG)}, {NG-1}")
    a(f"s_and_b32 {s(sT0)}, {s(sT0)}, {A-1}")
    assert A == 4
    a(f"s_lshl2_add_u32 {s(sI)}, {s(sI)}, {s(sT0)}")
    a(f"s_cmp_lt_u32 {s(sWave)}, 64")
    a.lines.append("    s_cbranch_scc0 L_init")
    if ipre == 2:
        a(f"s_getpc_b64 {sp(26)}")
        a.label("L_pc", flush=False)
        a(f"s_lshl_b32 {s(sT1)}, s2, 6"); a(f"s_and_b32 {s(sT1)}, {s(sT1)}, 0x3e00")
        a(f"v_lshl_add_u32 v5, v0, 3, {s(sT1)}")
        a(f"v_min_u32 v5, L_end-L_pc, v5")
        a(f"global_load_dword v7, v5, {sp(26)}")
    a(f"v_lshlrev_b32 {v(vL16)}, 4, v0")
    a(f"s_mul_i32 {s(sOff)}, {s(sG)}, {HS + rotK*GW*SB}")
    a(f"s_mul_i32 {s(sT0)}, {s(sI)}, {SB}")
    a("s_mov_b32 m0, 0")
    a(f"s_add_u32 {s(sOff)}, {s(sOff)}, {s(sT0)}")
    a(f"s_mov_b32 {s(sK+2)}, {KVB}"); a(f"s_mov_b32 {s(sK+3)}, 0x20000")
    a(f"s_movk_i32 {s(sEnd)}, {SB}")
    a("s_waitcnt lgkmcnt(0)")
    ev(0)
    a.label("L_first", flush=False)
    for k in range(4):
        if pre > 2 and k % 2 == 0: a(f"s_waitcnt vmcnt({nstart-2})")
        a(f"buffer_load_dwordx4 {v(vL16)}, {srd(sK)}, {s(sOff)} offen offset:{k*1024} nt lds")
    a("s_addk_i32 m0, 4096"); a(f"s_addk_i32 {s(sOff)}, 4096")
    a(f"s_cmp_lg_u32 m0, {s(sEnd)}")
    a.lines.append("    s_cbranch_scc1 L_first")
    a(f"s_addk_i32 {s(sEnd)}, {SB}"); a(f"s_add_u32 {s(sOff)}, {s(sOff)}, {GW*SB-SB}")
    a(f"s_cmp_lt_u32 m0, {pre*SB}")
    a.lines.append("    s_cbranch_scc1 L_first")
    a(f"s_sub_u32 {s(sOff)}, {s(sOff)}, {GW*SB-SB}")
    ev(1)
    a("s_barrier")
    a(f"s_load_dwordx2 {sp(pV)}, s[0:1], 32")
    a("s_setprio 3")
    a(f"s_mul_i32 {s(sBase)}, {s(sG)}, {HS}")
    a(f"s_add_u32 {s(sBase)}, {s(sBase)}, {s(sT0)}")
    a(f"s_mul_i32 {s(sRotK)}, {s(sG)}, {rotK}")
    a(f"s_mul_i32 {s(sRotV)}, {s(sG)}, {rotV}")
    if blk: blk_init()
    a(f"v_mov_b32 {v(vCT)}, {L_CT}")
    if stamp == 3:
        a("s_waitcnt vmcnt(23)"); ev(2); evw(0, 0, sStart); evw(0, 1); evw(1, 2); evw(2, 3)
    if ipre == 2: a(f"s_waitcnt vmcnt({nstart})")
    a(f"s_mov_b32 {s(sT)}, {pre-1}")
    a(f"v_mov_b32 {v(vI)}, {12*pre}"); a(f"v_mov_b32 {v(vG)}, {G0}")
    a("s_waitcnt lgkmcnt(0)")
    a("s_branch L_next")
    a("; ==== all other waves ===="); a.label("L_init")
    a("s_load_dwordx16 s[48:63], s[0:1], 0")
    a("s_load_dwordx8 s[64:71], s[0:1], 64")
    a("s_load_dwordx4 s[72:75], s[0:1], 96")
    if not stamp: a(f"s_memrealtime {sp(sStart)}")
    a(f"v_and_b32 {v(vLane)}, 63, v0")
    a(f"s_lshr_b32 {s(sWave)}, {s(sWave)}, 4")
    a(f"s_lshr_b32 {s(sWave)}, {hex(sum(r << (4*k) for k, r in enumerate(roles)))}, {s(sWave)}")
    a(f"s_and_b32 {s(sWave)}, {s(sWave)}, 7")
    if ipre == 1:
        a(f"s_cmp_eq_u32 {s(sWave)}, 7")
        a("s_cbranch_scc0 L_nopf")
        a(f"s_getpc_b64 {sp(26)}")
        a.label("L_pc", flush=False)
        a(f"s_sub_u32 s26, s26, L_pc-{KN}"); a("s_subb_u32 s27, s27, 0")
        a(f"s_lshr_b32 {s(sT0)}, s2, 3"); a(f"s_lshl_b32 {s(sT0)}, {s(sT0)}, 9")
        a(f"v_lshl_add_u32 v5, {v(vLane)}, 3, {s(sT0)}")
        a(f"v_min_u32 v5, L_end-{KN}, v5")
        a(f"global_load_dword v7, v5, {sp(26)}")
        a.label("L_nopf")
    a(f"v_lshlrev_b32 {v(vL16)}, 4, {v(vLane)}")
    a(f"v_mov_b32 {v(vCT)}, {L_CT}")
    a(f"v_cmp_eq_u32 vcc, {C_G//4}, {v(vLane)}")
    a(f"v_mov_b32 v5, {G0}")
    a(f"v_lshl_add_u32 v6, {v(vLane)}, 2, {v(vCT)}")
    a(f"v_cndmask_b32 v5, 0, v5, vcc")
    if hold is not None:
        a(f"v_cmp_gt_u32 vcc, 4, {v(vLane)}"); a(f"v_cndmask_b32 v5, v5, {pre-RS}, vcc")
    a("ds_write_b32 v6, v5")
    a("s_waitcnt lgkmcnt(0)")
    a("s_barrier")
    a("s_branch L_notld")
    a.label("L_next")
    a(f"s_add_u32 {s(sT)}, {s(sT)}, 1")
    a(f"s_cmp_eq_u32 m0, {RS*SB}"); a("s_cselect_b32 m0, 0, m0")
    a(f"s_waitcnt lgkmcnt({1 if gfresh else 4})")
    a(f"v_readfirstlane_b32 {s(sGw)}, {v(vG)}")
    a(f"s_add_u32 {s(sEnd)}, m0, {SB}")
    a(f"s_add_u32 {s(sOff)}, {s(sOff)}, {GW*SB-SB}")
    a(f"s_and_b32 {s(sT0)}, {s(sT)}, 3")
    a.lines.append("    s_cbranch_scc0 L_addr")
    a.label("L_aj", flush=False)
    a(f"s_lshr_b32 {s(sT0)}, {s(sGw)}, 8")
    if not gfresh: a(f"ds_read_b32 {v(vG)}, {v(vCT)} offset:{C_G}")
    a(f"s_cmp_gt_u32 {s(sT0)}, {s(sT)}")
    a.lines.append("    s_cbranch_scc0 L_full")
    a(f"s_and_b32 {s(sN)}, {s(sGw)}, 255")
    a.hist = []
    def tree(lo, hi):
        if lo == hi:
            a(f"s_branch L_v{lo}"); return
        mid = (lo + hi + 1) // 2
        a(f"s_cmp_ge_i32 {s(sN)}, {mid}"); a(f"s_cbranch_scc1 L_t_{mid}_{hi}" if mid < hi else f"s_cbranch_scc1 L_v{hi}")
        tree(lo, mid - 1)
        if mid < hi:
            a.label(f"L_t_{mid}_{hi}")
            tree(mid, hi)
    tree(nmin, nmax)
    for n in range(nmin, nmax + 1):
        a.label(f"L_v{n}")
        for q in range(3):
            a(f"s_waitcnt vmcnt({n-1})")
            a(f"buffer_load_dwordx4 {v(vL16)}, {srd(sK)}, {s(sOff)} offen offset:{q*1024} nt lds")
            if gfresh and q == gfresh - 1: a(f"ds_read_b32 {v(vG)}, {v(vCT)} offset:{C_G}")
        a(f"v_subrev_u32 {v(vT)}, {n-3}, {v(vI)}")
        a("s_add_u32 m0, m0, 3072")
        a(f"ds_write_b32 {v(vCT)}, {v(vT)} offset:{C_LAND}")
        a(f"v_add_u32 {v(vI)}, 3, {v(vI)}")
        a(f"s_add_u32 {s(sOff)}, {s(sOff)}, 3072")
        a(f"s_cmp_lg_u32 m0, {s(sEnd)}")
        a.lines.append(f"    s_cbranch_scc1 L_v{n}")
        a.lines.append("    s_branch L_next")
    a.label("L_full")
    if gfresh: a(f"ds_read_b32 {v(vG)}, {v(vCT)} offset:{C_G}")
    a("s_waitcnt lgkmcnt(0)")
    a(f"v_readfirstlane_b32 {s(sGw)}, {v(vG)}")
    a("s_branch L_aj")
    a("; every 4th step: new head and/or new row range"); a.label("L_addr")
    a(f"s_cmp_lt_u32 {s(sT)}, 128")
    a("s_cbranch_scc0 L_av")
    if blk:
        a(f"s_add_u32 {s(bJ)}, {s(bJ)}, 1")
        a(f"s_cmp_lt_u32 {s(bJ)}, {s(bM)}")
        a("s_cbranch_scc1 L_ab")
        blk_slot(sRotK)
        a.label("L_ab")
        blk_head(sT1)
        a(f"s_mov_b32 {s(sT0)}, {s(sRotK)}")
    else:
        a(f"s_lshr_b32 {s(sT0)}, {s(sT)}, {2+lg(HPG)}"); a(f"s_lshl_b32 {s(sT0)}, {s(sT0)}, 2")
        a(f"s_add_u32 {s(sT0)}, {s(sT0)}, {s(sRotK)}")
        a(f"s_bfe_u32 {s(sT1)}, {s(sT)}, {hex((lg(HPG) << 16) | 2)}")
        if serp:
            a(f"s_bitcmp1_b32 {s(sT)}, {2+lg(HPG)}"); a(f"s_cselect_b32 {s(sT2)}, {HPG-1}, 0"); a(f"s_xor_b32 {s(sT1)}, {s(sT1)}, {s(sT2)}")
    a("s_branch L_ak")
    a.label("L_av")
    a(f"s_cmp_eq_u32 {s(sT)}, {NST}")
    a("s_cbranch_scc1 L_drain")
    a(f"s_mov_b32 {s(sK)}, {s(pV)}"); a(f"s_mov_b32 {s(sK+1)}, {s(pV+1)}")
    a(f"s_add_u32 {s(sT0)}, {s(sT)}, {s(sRotV)}")
    a(f"s_bfe_u32 {s(sT1)}, {s(sT)}, {hex((lg(HPG) << 16) | lg(SPH))}")
    if REV: a(f"s_xor_b32 {s(sT1)}, {s(sT1)}, {HPG-1}")
    a.label("L_ak")
    a(f"s_and_b32 {s(sT0)}, {s(sT0)}, {SPH-1}")
    a(f"s_mul_i32 {s(sT0)}, {s(sT0)}, {GW*SB}"); a(f"s_mul_i32 {s(sT1)}, {s(sT1)}, {NG*HS}")
    a(f"s_add_u32 {s(sOff)}, {s(sT0)}, {s(sT1)}"); a(f"s_add_u32 {s(sOff)}, {s(sOff)}, {s(sBase)}")
    a("s_branch L_aj")
    a.label("L_drain")
    for k in ((36, 24, 12, 0) if nmax > 36 else (24, 12, 0)):
        a(f"v_mov_b32 {v(vT)}, {NST*12-k}")
        a(f"s_waitcnt vmcnt({k})")
        a(f"ds_write_b32 {v(vCT)}, {v(vT)} offset:{C_LAND}")
    a("s_endpgm")

    a.label("L_notld")
    a(f"s_cmp_gt_u32 {s(sWave)}, 4")
    a("s_cbranch_scc1 L_aux")
    sC, sS, sWS = 4, 8, 12
    sCo, sNeed, sLand, sSl, sN_, sQ_, sSel0, sSel1, sU, sPO, sE = 16, 17, 18, 19, 20, 21, 22, 23, 24, 25, 28
    sMsk = 32
    vRow, vRa, vScA, vXa, vKz, vPrg, vPa, vC, vS1, vQa, vX0, vSc0 = 5, 6, 7, 8, 9, 10, 11, 16, 17, 18, 19, 20
    vAc, vSW = 12, 14
    vY, vZ, vMask = 21, 22, 23
    vW, vD, vQ, vTm, vCur, vNxt = 24, 36, 48, 60, 72, 120
    NV = 168
    a("; ==== consumers ====")
    a(f"v_lshrrev_b32 {v(vY)}, 4, {v(vLane)}")
    a(f"v_and_b32 {v(vZ)}, 15, {v(vLane)}")
    a(f"v_mul_u32_u24 {v(vC)}, 384, {v(vY)}")
    a(f"v_lshl_add_u32 {v(vC)}, {v(vZ)}, 3, {v(vC)}")
    a(f"v_cmp_gt_u32 vcc, 8, {v(vZ)}")
    a(f"v_xor_b32 {v(vS1)}, 64, {v(vC)}")
    a(f"s_mul_i32 {s(sU)}, {s(sG)}, {rotK}"); a(f"s_and_b32 {s(sU)}, {s(sU)}, {SPH-1}")
    a(f"s_lshl_b32 {s(sT0)}, {s(sI)}, 2"); a(f"s_add_u32 {s(sT0)}, {s(sT0)}, {s(sWave)}"); a(f"s_mul_i32 {s(sT3)}, {s(sT0)}, 1536")
    a(f"s_mul_i32 {s(sCo)}, {s(sU)}, {GW*6144}"); a(f"s_add_u32 {s(sCo)}, {s(sCo)}, {s(sT3)}")
    a("s_waitcnt lgkmcnt(0)")
    mk(sC, pKC, CSB); mk(sS, pKSN, CSB)
    def issue_cs(dst):
        for i in range(3):
            a(f"buffer_load_dwordx2 {vp(dst+2*i)}, {v(vC)}, {srd(sC)}, {s(sCo)} offen offset:{128*i} {csf}")
            a(f"buffer_load_dwordx2 {vp(dst+6+2*i)}, {v(vS1)}, {srd(sS)}, {s(sCo)} offen offset:{128*i} {csf}")
        a(f"s_add_u32 {s(sCo)}, {s(sCo)}, {GW*6144}")
    def pack_cs(dst, src):
        for i in range(3):
            for e in range(2):
                a(f"v_cndmask_b32 {v(vW+2*i+e)}, {v(src+6+2*((i+2)%3)+e)}, {v(src+6+2*((i+1)%3)+e)}, vcc")
        for i in range(3):
            c0, s0 = src+2*i, vW+2*i
            a(f"v_perm_b32 {v(dst+4*i+0)}, {v(s0)}, {v(c0)}, {s(sSel0)}")
            a(f"v_perm_b32 {v(dst+4*i+1)}, {v(s0)}, {v(c0)}, {s(sSel1)}")
            a(f"v_perm_b32 {v(dst+4*i+2)}, {v(s0+1)}, {v(c0+1)}, {s(sSel0)}")
            a(f"v_perm_b32 {v(dst+4*i+3)}, {v(s0+1)}, {v(c0+1)}, {s(sSel1)}")
    ev(0)
    a(f"s_lshl_b32 {s(sT0)}, {s(sWave)}, 2"); a(f"v_add_u32 {v(vPa)}, {s(sT0)}, {v(vCT)}"); a(f"v_mov_b32 {v(vPrg)}, 0")
    for k in range(csw):
        issue_cs(vNxt + 12*k)
        if hold == -1-k: a(f"ds_write_b32 {v(vPa)}, {v(vPrg)}")
    ev(1)
    mk(sWS, pWS, WSB)
    a(f"s_mov_b32 {s(sSel0)}, 0x05040100"); a(f"s_mov_b32 {s(sSel1)}, 0x07060302")
    a(f"s_lshl_b32 {s(sT0)}, {s(sWave)}, 2")
    a(f"v_add_u32 {v(vY)}, {s(sT0)}, {v(vY)}")
    a(f"v_mul_u32_u24 {v(vRow)}, 768, {v(vY)}"); a(f"v_lshl_add_u32 {v(vRow)}, {v(vZ)}, 4, {v(vRow)}")
    a(f"v_lshlrev_b32 {v(vX0)}, 3, {v(vY)}"); a(f"v_add_u32 {v(vX0)}, {L_X}, {v(vX0)}")
    a(f"v_lshlrev_b32 {v(vQa)}, 4, {v(vZ)}"); a(f"v_add_u32 {v(vQa)}, {L_QT}, {v(vQa)}")
    a(f"v_mov_b32 {v(vMask)}, 0xff")
    a(f"s_mul_i32 {s(sNeed)}, {s(sWave)}, 3"); a(f"s_add_u32 {s(sNeed)}, {s(sNeed)}, 3")
    a(f"s_mov_b32 {s(sLand)}, 0"); a(f"s_mov_b32 {s(sSl)}, 0"); a(f"s_mov_b32 {s(sN_)}, 0"); a(f"s_mov_b32 {s(sQ_)}, 0")
    for k in range(4):
        a(f"s_waitcnt vmcnt({6*(min(4, k+csw)-k-1)})")
        if k + csw < 4: issue_cs(vNxt + 12*(k+csw))
        if hold == k: a(f"ds_write_b32 {v(vPa)}, {v(vPrg)}")
        pack_cs(vCur + 12*k, vNxt + 12*k)
    ev(2); evw(0, 4); evw(1, 5); evw(2, 6)
    def wait_data(lbl):
        a(f"s_cmp_ge_i32 {s(sLand)}, {s(sNeed)}")
        a(f"s_cbranch_scc1 {lbl}g")
        a.label(lbl)
        a(f"ds_read_b32 {v(vF)}, {v(vCT)} offset:{C_LAND}")
        a("s_waitcnt lgkmcnt(0)")
        a(f"v_readfirstlane_b32 {s(sLand)}, {v(vF)}")
        a(f"s_cmp_ge_i32 {s(sLand)}, {s(sNeed)}")
        a(f"s_cbranch_scc1 {lbl}g")
        if csleep: a(f"s_sleep {csleep}")
        a(f"s_branch {lbl}")
        a.label(lbl + "g")
    def next_slot():
        a(f"s_add_u32 {s(sSl)}, {s(sSl)}, {SB}"); a(f"s_cmp_eq_u32 {s(sSl)}, {RS*SB}"); a(f"s_cselect_b32 {s(sSl)}, 0, {s(sSl)}")
        a(f"s_add_u32 {s(sNeed)}, {s(sNeed)}, 12")
    cPh, cP1, cP2, cOn = 44, 45, 46, 47
    def blk_phases():
        a(f"s_cmp_ge_u32 {s(bM)}, 5"); a(f"s_cselect_b32 {s(cP1)}, 1, 0")
        a(f"s_lshr_b32 {s(cP2)}, {s(bM)}, 1"); a(f"s_cmp_eq_u32 {s(bM)}, 2"); a(f"s_cselect_b32 {s(cP2)}, 0, {s(cP2)}")
        a(f"s_bitcmp1_b32 0x6f, {s(bS)}"); a(f"s_cselect_b32 {s(cPh)}, 0, 64")
    if blk:
        blk_init(); blk_phases()
        a(f"s_cmp_ge_u32 {s(sCo)}, {CSB}"); a(f"s_cselect_b32 {s(sT0)}, {CSB}, 0"); a(f"s_sub_u32 {s(sCo)}, {s(sCo)}, {s(sT0)}")
    a.label("L_kvisit")
    sCs = 26
    def cs_one(dst, k):
        i = k // 2
        if "nocs" in dbg: return
        if k % 2 == 0: a(f"buffer_load_dwordx2 {vp(dst+2*i)}, {v(vC)}, {srd(sC)}, {s(sCo)} offen offset:{128*i} {csf}")
        else: a(f"buffer_load_dwordx2 {vp(dst+6+2*i)}, {v(vS1)}, {srd(sS)}, {s(sCo)} offen offset:{128*i} {csf}")
    if NQ > 1 and csmode == 0 and not blk:
        a(f"s_and_b32 {s(sT0)}, {s(sN_)}, {PD-1}")
        a(f"s_cselect_b32 {s(sT0)}, {NQ}, {s(sQ_)}")
        a(f"s_cmp_lt_u32 {s(sT0)}, {NQ-1}")
        a("s_cbranch_scc0 L_nocs")
        if rotK:
            a(f"s_cmp_ge_u32 {s(sCo)}, {CSB}"); a(f"s_cselect_b32 {s(sT0)}, {CSB}, 0"); a(f"s_sub_u32 {s(sCo)}, {s(sCo)}, {s(sT0)}")
        issue_cs(vTm)
        a.label("L_nocs")
    if NQ > 1 and csmode and not blk:
        assert PD == 2
        a(f"s_cmp_ge_u32 {s(sCo)}, {CSB}"); a(f"s_cselect_b32 {s(sT0)}, {CSB}, 0"); a(f"s_sub_u32 {s(sCo)}, {s(sCo)}, {s(sT0)}")
        if csmode == 1:
            a(f"s_and_b32 {s(sT0)}, {s(sN_)}, 1"); a(f"s_cselect_b32 {s(sCs)}, 9, {s(sWave)}")
        else:
            a(f"s_and_b32 {s(sCs)}, {s(sN_)}, 1")
        a(f"s_cmp_lt_u32 {s(sQ_)}, {NQ-1}"); a(f"s_cselect_b32 {s(sCs)}, {s(sCs)}, 9")
    if blk:
        blk_head(sT2)
    elif serp:
        a(f"s_bitcmp1_b32 {s(sQ_)}, 0"); a(f"s_cselect_b32 {s(sT2)}, {HPG-1}, 0"); a(f"s_xor_b32 {s(sT2)}, {s(sT2)}, {s(sN_)}")
    else:
        a(f"s_mov_b32 {s(sT2)}, {s(sN_)}")
    a(f"s_mul_i32 {s(sT0)}, {s(sT2)}, 768")
    a(f"v_add_u32 {v(vRa)}, {s(sT0)}, {v(vQa)}")
    a(f"s_lshl_b32 {s(sT0)}, {s(sT2)}, {lg(SPH)}"); a(f"s_add_u32 {s(sT0)}, {s(sT0)}, {s(sU)}")
    a(f"s_lshl_b32 {s(sT1)}, {s(sT0)}, 7"); a(f"v_add_u32 {v(vXa)}, {s(sT1)}, {v(vX0)}")
    a.label("L_qw")
    a(f"ds_read_b32 {v(vF)}, {v(vCT)} offset:{C_QRDY}")
    for i in range(3): a(f"ds_read_b128 {v4(vQ+4*i)}, {v(vRa)} offset:{256*i}")
    a("s_waitcnt lgkmcnt(0)")
    a(f"v_readfirstlane_b32 {s(sT0)}, {v(vF)}")
    a(f"s_cmp_gt_u32 {s(sT0)}, {s(sT2)}")
    a("s_cbranch_scc1 L_qwg")
    a("s_sleep 2")
    a("s_branch L_qw")
    a.label("L_qwg")
    for st in range(4):
        if blk:
            for c_, ph in enumerate((0, s(cP1), s(cP2))):
                a(f"s_cmp_eq_u32 {s(cPh)}, {ph}"); a(f"s_cbranch_scc0 L_nb{st}{c_}")
                cs_one(vTm, 2*c_); cs_one(vTm, 2*c_+1)
                a.label(f"L_nb{st}{c_}")
        if NQ > 1 and csmode == 1 and not blk:
            a(f"s_cmp_eq_u32 {s(sCs)}, {st}"); a(f"s_cbranch_scc0 L_nc{st}")
            issue_cs(vTm)
            a.label(f"L_nc{st}")
        if NQ > 1 and csmode == 2 and not blk:
            a(f"s_cmp_eq_u32 {s(sCs)}, 0"); a(f"s_cbranch_scc0 L_nc{st}")
            cs_one(vTm, st)
            a.label(f"L_nc{st}")
            if st < 2:
                a(f"s_cmp_eq_u32 {s(sCs)}, 1"); a(f"s_cbranch_scc0 L_nd{st}")
                cs_one(vTm, 4+st)
                if st == 1: a(f"s_add_u32 {s(sCo)}, {s(sCo)}, {GW*6144}")
                a.label(f"L_nd{st}")
        for e in range(12):
            a(f"v_dot2_f32_bf16 {v(vW+e)}, {v(vCur+12*st+e)}, {v(vQ+e)}, 0")
        a(f"v_add_u32 {v(vRa)}, {s(sSl)}, {v(vRow)}")
        a(f"v_pk_add_f32 {vp(vSW)}, {vp(vW)}, {vp(vW+2)}")
        for e in range(4, 12, 2): a(f"v_pk_add_f32 {vp(vSW)}, {vp(vSW)}, {vp(vW+e)}")
        wait_data(f"L_kw{st}")
        for i in range(3): a(f"ds_read_b128 {v4(vD+4*i)}, {v(vRa)} offset:{256*i}")
        a(f"v_add_u32 {v(vPrg)}, 1, {v(vPrg)}")
        next_slot()
        for i in range(3):
            a(f"s_waitcnt lgkmcnt({2-i})")
            for e in range(4): a(f"v_cvt_f32_i32 {v(vD+4*i+e)}, {v(vD+4*i+e)}")
            if i == 0:
                a(f"v_pk_mul_f32 {vp(vAc)}, {vp(vD)}, {vp(vW)}")
            else:
                a(f"v_pk_fma_f32 {vp(vAc)}, {vp(vD+4*i)}, {vp(vW+4*i)}, {vp(vAc)}")
            a(f"v_pk_fma_f32 {vp(vAc)}, {vp(vD+4*i+2)}, {vp(vW+4*i+2)}, {vp(vAc)}")
        a(f"v_add_f32 {v(vAc)}, {v(vAc)}, {v(vAc+1)}")
        a(f"v_add_f32 {v(vAc+1)}, {v(vSW)}, {v(vSW+1)}")
        for m_ in ("quad_perm:[1,0,3,2]", "quad_perm:[2,3,0,1]", "row_half_mirror", "row_mirror"):
            for e in range(2): a(f"v_add_f32_dpp {v(vAc+e)}, {v(vAc+e)}, {v(vAc+e)} {m_} {DPP}")
        a(f"ds_write_b64 {v(vXa)}, {vp(vAc)} offset:{128*st}")
        a(f"ds_write_b32 {v(vPa)}, {v(vPrg)}")
        if blk:
            a(f"s_add_u32 {s(cPh)}, {s(cPh)}, 1")
            a(f"s_cmp_eq_u32 {s(cPh)}, {s(bM)}")
            a(f"s_cbranch_scc0 L_np{st}")
            for e in range(0, 36, 2): a(f"v_mov_b64 {vp(vNxt+e)}, {vp(vNxt+12+e)}")
            a(f"s_mov_b32 {s(cPh)}, 0")
            a(f"s_add_u32 {s(sCo)}, {s(sCo)}, {GW*6144}")
            a(f"s_cmp_ge_u32 {s(sCo)}, {CSB}"); a(f"s_cselect_b32 {s(sT0)}, {CSB}, 0"); a(f"s_sub_u32 {s(sCo)}, {s(sCo)}, {s(sT0)}")
            a("s_waitcnt vmcnt(0)")
            pack_cs(vNxt + 36, vTm)
            a.label(f"L_np{st}")
    if blk:
        a(f"s_add_u32 {s(bJ)}, {s(bJ)}, 1")
        a(f"s_cmp_lt_u32 {s(bJ)}, {s(bM)}")
        a("s_cbranch_scc1 L_kvisit")
        blk_slot(sU); blk_phases()
        a(f"s_cmp_eq_u32 {s(bS)}, 4")
        a("s_cbranch_scc1 L_kvisit")
        for e in range(0, 48, 2): a(f"v_mov_b64 {vp(vCur+e)}, {vp(vNxt+e)}")
        a(f"s_cmp_lt_u32 {s(bS)}, 8")
        a("s_cbranch_scc1 L_kvisit")
    else:
        a(f"s_add_u32 {s(sN_)}, {s(sN_)}, 1")
        if NQ > 1:
            a(f"s_and_b32 {s(sT0)}, {s(sN_)}, {PD-1}")
            a("s_cbranch_scc1 L_kvisit")
            for e in range(0, 36, 2): a(f"v_mov_b64 {vp(vNxt+e)}, {vp(vNxt+12+e)}")
            a("s_waitcnt vmcnt(0)")
            pack_cs(vNxt + 36, vTm)
        a(f"s_cmp_lt_u32 {s(sN_)}, {HPG}")
        a("s_cbranch_scc1 L_kvisit")
        if NQ > 1:
            for e in range(0, 48, 2): a(f"v_mov_b64 {vp(vCur+e)}, {vp(vNxt+e)}")
            a(f"s_mov_b32 {s(sN_)}, 0")
            a(f"s_add_u32 {s(sU)}, {s(sU)}, 4"); a(f"s_and_b32 {s(sU)}, {s(sU)}, {SPH-1}")
            a(f"s_add_u32 {s(sQ_)}, {s(sQ_)}, 1")
            a(f"s_cmp_lt_u32 {s(sQ_)}, {NQ}")
            a("s_cbranch_scc1 L_kvisit")
    vAcc, vP, vSt, vRo = vW, vAc, vSW, vScA
    a(f"v_lshrrev_b32 {v(vY)}, 2, {v(vLane)}"); a(f"v_and_b32 {v(vZ)}, 3, {v(vLane)}")
    a(f"v_mul_u32_u24 {v(vRow)}, 768, {v(vY)}"); a(f"v_lshl_add_u32 {v(vRow)}, {v(vZ)}, 4, {v(vRow)}")
    a(f"s_mul_i32 {s(sT0)}, {s(sWave)}, 192"); a(f"v_add_u32 {v(vRow)}, {s(sT0)}, {v(vRow)}")
    a(f"v_lshlrev_b32 {v(vX0)}, 3, {v(vY)}"); a(f"v_add_u32 {v(vX0)}, {L_X}, {v(vX0)}")
    a(f"v_lshrrev_b32 {v(vY)}, 4, {v(vLane)}")
    if gm:
        a(f"v_lshl_add_u32 {v(vRo)}, {v(vY)}, 2, {v(vZ)}")
    else:
        a(f"v_lshl_add_u32 {v(vRo)}, {v(vZ)}, 2, {v(vY)}")
    a(f"v_and_b32 {v(vY)}, 1, {v(vRo)}"); a(f"v_lshlrev_b32 {v(vRo)}, 4, {v(vRo)}")
    a(f"s_lshl_b32 {s(sT0)}, {s(sWave)}, 8"); a(f"v_add_u32 {v(vRo)}, {s(sT0)}, {v(vRo)}")
    a(f"v_lshlrev_b32 {v(vQa)}, 3, {v(vY)}"); a(f"v_add_u32 {v(vQa)}, {L_ST}, {v(vQa)}")
    a(f"v_add_u32 {v(vC)}, {L_QS}, {v(vRo)}")
    a(f"s_mov_b32 {s(sMsk)}, 0x000f000f"); a(f"s_mov_b32 {s(sMsk+1)}, 0x000f000f")
    if cprio: a(f"s_setprio {cprio}")
    a(f"s_mov_b32 {s(sNeed)}, {129*12}")
    a(f"s_mul_i32 {s(sU)}, {s(sG)}, {rotV}"); a(f"s_and_b32 {s(sU)}, {s(sU)}, {SPH-1}")
    a(f"s_mov_b32 {s(sN_)}, 0")
    a(f"s_add_u32 {s(sPO)}, {s(sG)}, {(HPG-1)*NG*(1-REV)}"); a(f"s_mul_i32 {s(sPO)}, {s(sPO)}, {GW}"); a(f"s_add_u32 {s(sPO)}, {s(sPO)}, {s(sI)}")
    a(f"s_lshl_b32 {s(sPO)}, {s(sPO)}, 10")
    a.label("L_vhead")
    for e in range(0, 12, 2): a(f"v_mov_b64 {vp(vAcc+e)}, 0")
    a(f"s_mov_b32 {s(sQ_)}, 0")
    a.label("L_pw")
    a(f"ds_read_b64 {vp(vD)}, {v(vCT)} offset:{C_PRDY-4}")
    a(f"ds_read_b32 {v(vF)}, {v(vCT)} offset:{C_EPO}")
    a(f"ds_read_b64 {vp(vSt)}, {v(vQa)}")
    a("s_waitcnt lgkmcnt(0)")
    a(f"v_readfirstlane_b32 {s(sT0)}, {v(vD+1)}")
    a(f"v_readfirstlane_b32 {s(sE)}, {v(vF)}")
    a(f"s_cmp_gt_u32 {s(sT0)}, {s(sN_)}")
    a("s_cbranch_scc1 L_pwg")
    a("s_sleep 2")
    a("s_branch L_pw")
    a.label("L_pwg")
    a(f"s_lshr_b32 {s(sE+1)}, {s(sE)}, 8"); a(f"s_lshr_b32 {s(sE+2)}, {s(sE)}, 16")
    a.label("L_vstep")
    a(f"s_xor_b32 {s(sT0)}, {s(sN_)}, {(HPG-1)*REV}")
    a(f"s_lshl_b32 {s(sT0)}, {s(sT0)}, {lg(SPH)}"); a(f"s_add_u32 {s(sT0)}, {s(sT0)}, {s(sU)}"); a(f"s_lshl_b32 {s(sT0)}, {s(sT0)}, 7")
    a(f"v_add_u32 {v(vXa)}, {s(sT0)}, {v(vX0)}")
    a(f"v_add_u32 {v(vRa)}, {s(sSl)}, {v(vRow)}")
    a(f"ds_read_b32 {v(vP)}, {v(vXa)}")
    if spec:
        a(f"s_cmp_lt_u32 {s(sNeed)}, {NST*12}")
        a("s_cbranch_scc1 L_vn")
        a("; very last step: read flag and data together (LDS reads are in order)"); a.label("L_vs")
        a(f"ds_read_b32 {v(vF)}, {v(vCT)} offset:{C_LAND}")
        for i in range(3): a(f"ds_read_b128 {v4(vD+4*i)}, {v(vRa)} offset:{64*i}")
        a("s_waitcnt lgkmcnt(3)")
        a(f"v_readfirstlane_b32 {s(sLand)}, {v(vF)}")
        a(f"s_cmp_ge_i32 {s(sLand)}, {s(sNeed)}")
        a("s_cbranch_scc0 L_vs")
        a("s_branch L_vd")
        a.label("L_vn")
    wait_data("L_vw")
    for i in range(3): a(f"ds_read_b128 {v4(vD+4*i)}, {v(vRa)} offset:{64*i}")
    if spec: a.label("L_vd")
    a(f"v_add_u32 {v(vPrg)}, 1, {v(vPrg)}")
    next_slot()
    a(f"s_add_u32 {s(sU)}, {s(sU)}, 1"); a(f"s_and_b32 {s(sU)}, {s(sU)}, {SPH-1}")
    a(f"s_add_u32 {s(sQ_)}, {s(sQ_)}, 1")
    a(f"s_cmp_lt_u32 {s(sQ_)}, {SPH}")
    for i in range(3):
        a(f"s_waitcnt lgkmcnt({2-i})")
        for e in range(4): a(f"v_cvt_f32_i32 {v(vD+4*i+e)}, {v(vD+4*i+e)}")
        for e in (0, 2):
            a(f"v_pk_fma_f32 {vp(vAcc+4*i+e)}, {vp(vD+4*i+e)}, {vp(vP)}, {vp(vAcc+4*i+e)} op_sel_hi:[1,0,1]")
    a("s_cbranch_scc0 L_vend")
    a(f"ds_write_b32 {v(vPa)}, {v(vPrg)}")
    a("s_branch L_vstep")
    a("; head finished: reduce over the 16 rows, remove the zero-point term, tag"); a.label("L_vend")
    O = vD
    for i in range(3):
        r_ = vAcc + 4*i
        a(f"v_permlane32_swap_b32 {v(r_)}, {v(r_+2)}")
        a(f"v_permlane32_swap_b32 {v(r_+1)}, {v(r_+3)}")
    for i in range(3):
        r_ = vAcc + 4*i
        a(f"v_pk_add_f32 {vp(r_)}, {vp(r_)}, {vp(r_+2)}")
    for i in range(3):
        r_ = vAcc + 4*i
        a(f"v_permlane16_swap_b32 {v(r_)}, {v(r_+1)}")
    for i in range(3):
        r_ = vAcc + 4*i
        a(f"v_add_f32 {v(O+i)}, {v(r_)}, {v(r_+1)}")
    a(f"v_mov_b32 {v(O+3)}, {v(vSt)}")
    for rr in (4, 8):
        for i in range(3): a(f"v_add_f32_dpp {v(O+i)}, {v(O+i)}, {v(O+i)} row_ror:{rr} {DPP}")
    for i in range(3): a(f"v_sub_f32 {v(O+i)}, {v(O+i)}, {v(vSt+1)}")
    for i in range(3): a(f"v_bfi_b32 {v(O+i)}, {v(vMask)}, {s(sE+i)}, {v(O+i)}")
    a(f"s_add_u32 {s(sN_)}, {s(sN_)}, 1")
    a(f"s_cmp_eq_u32 {s(sN_)}, {HPG}")
    a(f"s_mov_b64 exec, {sp(sMsk)}")
    a("s_cbranch_scc1 L_vlast")
    if direct:
        a(f"s_sub_u32 {s(sT0)}, {HPG}, {s(sN_)}"); a(f"s_mul_i32 {s(sT0)}, {s(sT0)}, {NG*GW*1024}")
        a(f"{'s_add_u32' if REV else 's_sub_u32'} {s(sT0)}, {s(sPO)}, {s(sT0)}")
        a(f"buffer_store_dwordx4 {v4(O)}, {v(vRo)}, {srd(sWS)}, {s(sT0)} offen {stf}")
        a("s_nop 1")
    else:
        a(f"ds_write_b128 {v(vC)}, {v4(O)}")
    a("s_mov_b64 exec, -1")
    a(f"ds_write_b32 {v(vPa)}, {v(vPrg)}")
    a(f"v_add_u32 {v(vC)}, 1024, {v(vC)}"); a(f"v_add_u32 {v(vQa)}, 16, {v(vQa)}")
    a("s_branch L_vhead")
    a.label("L_vlast")
    a(f"buffer_store_dwordx4 {v4(O)}, {v(vRo)}, {srd(sWS)}, {s(sPO)} offen {stf}")
    if PL < 0: a(f"ds_write_b32 {v(vPa)}, {v(vPrg)}")
    if stamp:
        a("s_mov_b64 exec, -1")
        a(f"s_memrealtime {sp(sT0)}"); a("s_waitcnt lgkmcnt(0)")
        a(f"v_mov_b32 {v(vF)}, {s(sT0)}"); a(f"ds_write_b32 {v(vPa)}, {v(vF)} offset:64")
        a(f"ds_write_b32 {v(vPa)}, {v(vPrg)}")
    a("s_endpgm")

    a.label("L_aux")
    a(f"s_cmp_eq_u32 {s(sWave)}, 5")
    a("s_cbranch_scc0 L_bal")
    sA, sDB, sOUT, sB = 4, 8, 16, 20
    sE = 28
    sN_, sSpin, sPO, sMe, sHc, sBk = 24, 25, 26, 32, 34, 35
    vQo0, vQo1, vSg, vH0, vH1, vX, vY, vZ, vU, vMask, vA0, vA1 = 5, 6, 7, 8, 9, 10, 11, 12, 13, 14, 15, 16
    qr, t_ = 20, 32
    vSv, vQv, sSo = 17, 56, 27
    NQL = (HPG * 24 + 63) // 64
    a("; ==== helper ====")
    a(f"v_lshlrev_b32 {v(vQo0)}, 3, {v(vLane)}")
    a(f"v_cmp_gt_u32 vcc, 24, {v(vLane)}")
    a(f"v_mov_b32 {v(vU)}, 0xffffff40"); a(f"v_mov_b32 {v(vX)}, 192")
    a(f"v_cndmask_b32 {v(vU)}, {v(vU)}, {v(vX)}, vcc")
    a(f"v_add_u32 {v(vQo1)}, {v(vQo0)}, {v(vU)}")
    a(f"v_mov_b32 {v(vX)}, 0x80008000")
    a(f"v_cndmask_b32 {v(vSg)}, 0, {v(vX)}, vcc")
    hpi = 32 // SPH
    a(f"v_lshrrev_b32 {v(vX)}, 1, {v(vLane)}")
    a(f"v_and_b32 {v(vY)}, {SPH-1}, {v(vX)}"); a(f"v_lshrrev_b32 {v(vX)}, {lg(SPH)}, {v(vX)}")
    a(f"v_mul_u32_u24 {v(vX)}, {NG*32768}, {v(vX)}"); a(f"v_mul_u32_u24 {v(vY)}, {GW*32}, {v(vY)}"); a(f"v_add_u32 {v(vX)}, {v(vX)}, {v(vY)}")
    a(f"v_and_b32 {v(vY)}, 1, {v(vLane)}"); a(f"v_lshl_add_u32 {v(vSv)}, {v(vY)}, 4, {v(vX)}")
    for k in range(NQL):
        a(f"v_add_u32 {v(vX)}, {64*k}, {v(vLane)}")
        a(f"v_mul_u32_u24 {v(vZ)}, 2731, {v(vX)}"); a(f"v_lshrrev_b32 {v(vZ)}, 16, {v(vZ)}")
        a(f"v_mul_u32_u24 {v(vZ)}, {(NG-1)*384}, {v(vZ)}"); a(f"v_lshl_add_u32 {v(vQv+k)}, {v(vX)}, 4, {v(vZ)}")
    a(f"v_cmp_eq_u32 {sp(sMe)}, 0, {v(vY)}")
    a(f"s_lshl_b32 {s(sSo)}, {s(sG)}, 15"); a(f"s_lshl_b32 {s(sT0)}, {s(sI)}, 5"); a(f"s_add_u32 {s(sSo)}, {s(sSo)}, {s(sT0)}")
    a(f"s_mov_b32 m0, {L_QS}")
    a("s_waitcnt lgkmcnt(0)")
    mk(sA, pQC, 384); mk(sB, pQS, 384)
    a(f"buffer_load_dwordx2 {vp(qr+8)}, {v(vQo0)}, {srd(sA)}, 0 offen")
    a(f"buffer_load_dwordx2 {vp(qr+10)}, {v(vQo0)}, {srd(sB)}, 0 offen")
    mk(sA, pQ, 12288)
    a(f"s_mul_i32 {s(sT0)}, {s(sG)}, 384")
    for k in range(NQL):
        a(f"buffer_load_dwordx4 {v(vQv+k)}, {srd(sA)}, {s(sT0)} offen lds")
        a("s_add_u32 m0, m0, 1024")
    if scpre == 2:
        a("; this workgroup's share of the scale arrays is pulled on chip now; the own pieces are fetched later")
        a(f"s_lshl_b32 {s(sT0)}, s2, 12")
        n_ = 0
        for p in (pKS, pKZ, pVS, pVZ):
            mk(sB, p, 1 << 20)
            for k in range(4):
                if n_ >= spw: a(f"s_waitcnt vmcnt({spw-1})")
                a(f"buffer_load_dwordx4 {v4(64)}, {v(vL16)}, {srd(sB)}, {s(sT0)} offen offset:{1024*k} {scf}"); n_ += 1
    def sc_prefetch():
        a("; whole lines of the scale arrays (shared by 4 workgroups) are pulled on chip first")
        vPv = 62
        a(f"s_and_b32 {s(sT0)}, {s(sI)}, 3"); a(f"s_lshl_b32 {s(sT0)}, {s(sT0)}, 3")
        a(f"v_lshrrev_b32 {v(vX)}, 3, {v(vLane)}"); a(f"v_add_u32 {v(vX)}, {s(sT0)}, {v(vX)}")
        a(f"v_and_b32 {v(vY)}, {SPH-1}, {v(vX)}"); a(f"v_lshrrev_b32 {v(vX)}, {lg(SPH)}, {v(vX)}")
        a(f"v_mul_u32_u24 {v(vX)}, {NG*32768}, {v(vX)}"); a(f"v_mul_u32_u24 {v(vY)}, {GW*32}, {v(vY)}"); a(f"v_add_u32 {v(vX)}, {v(vX)}, {v(vY)}")
        a(f"v_and_b32 {v(vY)}, 7, {v(vLane)}"); a(f"v_lshl_add_u32 {v(vPv)}, {v(vY)}, 4, {v(vX)}")
        for p in (pKS, pKZ, pVS, pVZ):
            mk(sB, p, 1 << 20)
            a(f"s_andn2_b32 {s(sT0)}, {s(sSo)}, 127")
            for k in range(4):
                if spw < 16: a(f"s_waitcnt vmcnt({spw-1})")
                a(f"buffer_load_dwordx4 {v4(64)}, {v(vPv)}, {srd(sB)}, {s(sT0)} offen {spf}")
                a(f"s_add_u32 {s(sT0)}, {s(sT0)}, {hpi*NG*32768}")
    if scpre == 3 and splate is None: sc_prefetch()
    NPF = min(16, spw) if scpre >= 2 and splate is None else 0
    mk(sWS, pWS, WSB); mk(sDB, pDBG, 256); mk(sOUT, pOUT, 12288)
    a(f"v_mov_b32 {v(vMask)}, 0xff")
    def unpack(dst, src):
        a(f"v_lshlrev_b32 {v(dst)}, 16, {v(src)}"); a(f"v_and_b32 {v(dst+1)}, 0xffff0000, {v(src)}")
        a(f"v_lshlrev_b32 {v(dst+2)}, 16, {v(src+1)}"); a(f"v_and_b32 {v(dst+3)}, 0xffff0000, {v(src+1)}")
    cF, sF, aF, bF, rr = t_, t_+4, t_+8, t_+12, t_+16
    a(f"v_add_u32 {v(vA0)}, {L_QS}, {v(vQo0)}"); a(f"v_add_u32 {v(vA1)}, {L_QS}, {v(vQo1)}")
    a(f"v_lshlrev_b32 {v(vH0)}, 1, {v(vQo0)}"); a(f"v_lshlrev_b32 {v(vH1)}, 1, {v(vQo1)}")
    a(f"v_add_u32 {v(vH0)}, {L_QT}, {v(vH0)}"); a(f"v_add_u32 {v(vH1)}, {L_QT}, {v(vH1)}")
    a(f"v_mov_b32 {v(vZ)}, 0")
    a(f"s_mov_b32 {s(sN_)}, 0")
    a(f"s_waitcnt vmcnt({NQL+NPF})")
    a(f"v_xor_b32 {v(qr+10)}, {v(qr+10)}, {v(vSg)}"); a(f"v_xor_b32 {v(qr+11)}, {v(qr+11)}, {v(vSg)}")
    unpack(cF, qr+8); unpack(sF, qr+10)
    a(f"v_and_b32 {v(vSg)}, 0x80000000, {v(vSg)}")
    a(f"s_waitcnt vmcnt({NPF})")
    a("s_mov_b32 exec_hi, 0xffff")
    a("; rotated q (rounded like the reference), stored as (qr[d], +-qr[d+-96]) pairs"); a.label("L_hq")
    a(f"ds_read_b64 {vp(qr)}, {v(vA0)}"); a(f"ds_read_b64 {vp(qr+2)}, {v(vA1)}")
    a(f"v_add_u32 {v(vA0)}, 384, {v(vA0)}"); a(f"v_add_u32 {v(vA1)}, 384, {v(vA1)}")
    a(f"v_add_u32 {v(vZ)}, 1, {v(vZ)}")
    a("s_waitcnt lgkmcnt(0)")
    unpack(aF, qr); unpack(bF, qr+2)
    for e in range(0, 4, 2):
        a(f"v_pk_mul_f32 {vp(aF+e)}, {vp(aF+e)}, {vp(cF+e)}"); a(f"v_pk_mul_f32 {vp(bF+e)}, {vp(bF+e)}, {vp(sF+e)}")
    for e in range(4): a(f"v_cvt_pk_bf16_f32 {v(aF+e)}, {v(aF+e)}, {v(bF+e)}")
    for e in range(4):
        a(f"v_and_b32 {v(bF+e)}, 0xffff0000, {v(aF+e)}"); a(f"v_lshlrev_b32 {v(aF+e)}, 16, {v(aF+e)}")
    for e in range(0, 4, 2): a(f"v_pk_add_f32 {vp(aF+e)}, {vp(aF+e)}, {vp(bF+e)}")
    for e in range(4): a(f"v_cvt_pk_bf16_f32 {v(rr+e)}, {v(aF+e)}, {v(aF+e)}")
    for e in range(4): a(f"v_xor_b32 {v(rr+e)}, {v(rr+e)}, {v(vSg)}")
    for e in range(4):
        a(f"ds_write_b16 {v(vH0)}, {v(rr+e)} offset:{4*e}")
        a(f"ds_write_b16_d16_hi {v(vH1)}, {v(rr+e)} offset:{4*e+2}")
    a(f"ds_write_b32 {v(vCT)}, {v(vZ)} offset:{C_QRDY}")
    a(f"v_add_u32 {v(vH0)}, 768, {v(vH0)}"); a(f"v_add_u32 {v(vH1)}, 768, {v(vH1)}")
    a(f"s_add_u32 {s(sN_)}, {s(sN_)}, 1")
    a(f"s_cmp_lt_u32 {s(sN_)}, {HPG}")
    a("s_cbranch_scc1 L_hq")
    a("s_mov_b32 exec_hi, -1")
    ev(0); evw(0, 7)
    if scpre == 3 and splate is not None:
        lds_wait("L_spl", C_STEP, splate, sT0, 2)
        sc_prefetch()
    if wspre:
        a("; touch the slots of the partials that are handed over last, so that they are on chip by then (data unused)")
        nw = HPG if wspre < 3 else wspre - 2
        a(f"s_add_u32 {s(sT0)}, {s(sG)}, {0 if REV else (HPG-nw)*NG}")
        a(f"s_mul_i32 {s(sT0)}, {s(sT0)}, {GW}"); a(f"s_add_u32 {s(sT0)}, {s(sT0)}, {s(sI)}"); a(f"s_lshl_b32 {s(sT0)}, {s(sT0)}, 10")
        for k in range(nw):
            a(f"buffer_load_dwordx4 {v4(64)}, {v(vL16)}, {srd(sWS)}, {s(sT0)} offen {'sc0 sc1' if wspre == 2 else ''}")
            a(f"s_add_u32 {s(sT0)}, {s(sT0)}, {NG*GW*1024}")
    def epoch_code():
        a("; launch epoch, agreed through d_debug[0]: workgroup 0 proposes at once, the others look later")
        a(f"v_mov_b32 {v(vA0)}, 0")
        a(f"s_mov_b32 {s(sSpin)}, 0")
        a("s_cmp_eq_u32 s2, 0")
        a("s_cbranch_scc1 L_epc")
        lds_wait("L_epw", C_STEP, epk, sT0, 16)
        if eps_:
            a(f"s_load_dword {s(sE)}, {sp(pDBG)}, 0")
            a("s_waitcnt lgkmcnt(0)")
            a(f"s_cmp_lg_u32 {s(sE)}, 0")
            a("s_cbranch_scc1 L_epd")
        a.label("L_ep")
        a("s_mov_b64 exec, 1")
        a(f"buffer_load_dword {v(vY)}, {v(vA0)}, {srd(sDB)}, 0 offen sc0 sc1")
        a("s_waitcnt vmcnt(0)")
        a(f"v_readfirstlane_b32 {s(sE)}, {v(vY)}")
        a("s_mov_b64 exec, -1")
        a(f"s_cmp_lg_u32 {s(sE)}, 0")
        a("s_cbranch_scc1 L_epd")
        a("s_sleep 32")
        a(f"s_add_u32 {s(sSpin)}, {s(sSpin)}, 1")
        a(f"s_cmp_lt_u32 {s(sSpin)}, 8")
        a("s_cbranch_scc1 L_ep")
        a.label("L_epc")
        a(f"s_mul_i32 {s(sE)}, {s(sStart)}, 0x9e3779b1")
        a(f"s_lshr_b32 {s(sT1)}, {s(sE)}, 15"); a(f"s_xor_b32 {s(sE)}, {s(sE)}, {s(sT1)}")
        a(f"s_mul_i32 {s(sE)}, {s(sE)}, 0x85ebca6b")
        a(f"s_lshr_b32 {s(sT1)}, {s(sE)}, 13"); a(f"s_xor_b32 {s(sE)}, {s(sE)}, {s(sT1)}")
        a(f"s_max_u32 {s(sE)}, {s(sE)}, 1")
        a(f"v_mov_b32 {v(qr)}, {s(sE)}"); a(f"v_mov_b32 {v(qr+1)}, 0")
        a("s_mov_b64 exec, 1")
        a(f"buffer_atomic_cmpswap {vp(qr)}, {v(vA0)}, {srd(sDB)}, 0 offen sc0 sc1")
        a("s_waitcnt vmcnt(0)")
        a(f"v_readfirstlane_b32 {s(sT0)}, {v(qr)}")
        a("s_mov_b64 exec, -1")
        a(f"s_cmp_eq_u32 {s(sT0)}, 0"); a(f"s_cselect_b32 {s(sE)}, {s(sE)}, {s(sT0)}")
        a.label("L_epd")
        a(f"v_mov_b32 {v(vZ)}, {s(sE)}")
        a(f"ds_write_b32 {v(vCT)}, {v(vZ)} offset:{C_EPO}")
        a(f"s_lshr_b32 {s(sE+1)}, {s(sE)}, 8"); a(f"s_lshr_b32 {s(sE+2)}, {s(sE)}, 16"); a(f"s_lshr_b32 {s(sE+3)}, {s(sE)}, 24")
    def scale_code():
        a("; the own 32-byte pieces of the scale arrays trickle into LDS, in an order that differs between workgroups")
        assert sc0 + 16*sct + 4 < TX and scpre != 1
        a(f"s_add_u32 {s(sN_)}, {s(sG)}, {sc0}" if scph else f"s_mov_b32 {s(sN_)}, {sc0}")
        a(f"s_mov_b32 {s(sSpin)}, 0")
        mk(sB, pKS, 1 << 20)
        lds_wait("L_sc", C_STEP, s(sN_), sT0, 16 if sct > 1 else 1)
        if scrot:
            a(f"s_lshr_b32 {s(sT0)}, {s(sI)}, 2"); a(f"s_add_u32 {s(sT0)}, {s(sT0)}, {s(sSpin)}"); a(f"s_and_b32 {s(sT0)}, {s(sT0)}, 15")
        else:
            a(f"s_mov_b32 {s(sT0)}, {s(sSpin)}")
        if "samesc" in dbg: a(f"s_lshr_b32 {s(sT0)}, {s(sI)}, 2")
        a(f"s_lshl_b32 {s(sT1)}, {s(sT0)}, 10"); a(f"s_add_u32 m0, {s(sT1)}, {L_SC}")
        a(f"s_mov_b64 {sp(sB)}, {sp(pKS)}")
        for k, p in ((4, pKZ), (8, pVS), (12, pVZ)):
            a(f"s_cmp_ge_u32 {s(sT0)}, {k}"); a(f"s_cselect_b64 {sp(sB)}, {sp(p)}, {sp(sB)}")
        a(f"s_and_b32 {s(sT0)}, {s(sT0)}, 3"); a(f"s_mul_i32 {s(sT0)}, {s(sT0)}, {hpi*NG*32768}"); a(f"s_add_u32 {s(sT0)}, {s(sT0)}, {s(sSo)}")
        if "nosc" not in dbg: a(f"buffer_load_dwordx4 {v(vSv)}, {srd(sB)}, {s(sT0)} offen {scf} lds")
        a(f"s_add_u32 {s(sSpin)}, {s(sSpin)}, 1")
        a(f"s_add_u32 {s(sN_)}, {s(sN_)}, {sct}")
        a(f"s_cmp_lt_u32 {s(sSpin)}, 16")
        a("s_cbranch_scc1 L_sc")
        a("s_waitcnt vmcnt(0)")
    if sc0 < epk:
        scale_code(); epoch_code()
    else:
        epoch_code(); scale_code()
    vx, vks, vvs, vvz, vS4, vPg, vkz, vx2 = 20, 28, 36, 44, 52, 56, 64, 72
    CEXP = (192.0 ** -0.5) * math.log2(math.e)
    for e in list(range(vks, vS4)) + list(range(vkz, vkz+8)): a(f"v_mov_b32 {v(e)}, 0")
    a(f"v_lshlrev_b32 {v(vA0)}, 3, {v(vLane)}"); a(f"v_add_u32 {v(vA0)}, {L_X+REV*(HPG-1)*512*NG}, {v(vA0)}")
    a(f"v_lshlrev_b32 {v(vA1)}, 1, {v(vLane)}"); a(f"v_add_u32 {v(vA1)}, {L_SC+REV*(HPG-1)*128*NG}, {v(vA1)}")
    a(f"v_mov_b32 {v(vH0)}, {L_ST}"); a(f"v_mov_b32 {v(vH1)}, 0")
    if blk:
        a(f"s_cmp_eq_u32 {s(sG)}, 0"); a(f"s_cselect_b32 {s(sN_)}, 4, 0"); a(f"s_add_u32 {s(sN_)}, {s(sN_)}, 120"); a(f"s_mov_b32 {s(sSpin)}, 0")
    else:
        a(f"s_mov_b32 {s(sN_)}, {TX+4}")
    def wait_cons(lbl, val, sleep):
        a.label(lbl)
        if sleep: a(f"s_sleep {sleep}")
        a(f"ds_read_b128 {v4(vPg)}, {v(vCT)}")
        a("s_waitcnt lgkmcnt(0)")
        a(f"v_min3_i32 {v(vPg)}, {v(vPg)}, {v(vPg+1)}, {v(vPg+2)}"); a(f"v_min_i32 {v(vPg)}, {v(vPg)}, {v(vPg+3)}")
        a(f"v_readfirstlane_b32 {s(sT0)}, {v(vPg)}")
        a(f"s_cmp_lt_i32 {s(sT0)}, {val}")
        a(f"s_cbranch_scc1 {lbl}")
    wait_cons("L_hp", s(sN_), hsleep)
    for k in range(NG):
        a(f"ds_read_b64 {vp(vx2+2*k)}, {v(vA0)} offset:{512*k}")
        a(f"ds_read_u16_d16_hi {v(vks+k)}, {v(vA1)} offset:{128*k}")
        a(f"ds_read_u16_d16_hi {v(vkz+k)}, {v(vA1)} offset:{4096+128*k}")
    a("s_waitcnt lgkmcnt(0)")
    for k in range(NG):
        a(f"ds_read_u16_d16_hi {v(vvs+k)}, {v(vA1)} offset:{8192+128*k}")
        a(f"ds_read_u16_d16_hi {v(vvz+k)}, {v(vA1)} offset:{12288+128*k}")
    for k in range(NG): a(f"v_fma_f32 {v(vx+k)}, -{v(vkz+k)}, {v(vx2+2*k+1)}, {v(vx2+2*k)}")
    for k in range(NG): a(f"v_mul_f32 {v(vx+k)}, {v(vx+k)}, {v(vks+k)}")
    for k in range(NG): a(f"v_mul_f32 {v(vx+k)}, {hex(f2u(CEXP))}, {v(vx+k)}")
    a(f"v_mov_b32 {v(vS4)}, {v(vx)}")
    for k in range(1, NG): a(f"v_max_f32 {v(vS4)}, {v(vS4)}, {v(vx+k)}")
    row_reduce("v_max_f32", vS4); xrows("v_max_f32", vS4, vU)
    for k in range(NG): a(f"v_sub_f32 {v(vx+k)}, {v(vx+k)}, {v(vS4)}")
    for k in range(NG): a(f"v_exp_f32 {v(vx+k)}, {v(vx+k)}")
    a(f"v_mov_b32 {v(vS4+2)}, {v(vx)}")
    for k in range(1, NG): a(f"v_add_f32 {v(vS4+2)}, {v(vS4+2)}, {v(vx+k)}")
    a("s_waitcnt lgkmcnt(0)")
    for k in range(NG): a(f"v_mul_f32 {v(vx+k)}, {v(vx+k)}, {v(vvs+k)}")
    a(f"v_mul_f32 {v(vS4+1)}, {v(vx)}, {v(vvz)}")
    for k in range(1, NG): a(f"v_fmac_f32 {v(vS4+1)}, {v(vx+k)}, {v(vvz+k)}")
    for k in range(NG): a(f"ds_write_b32 {v(vA0)}, {v(vx+k)} offset:{512*k}")
    row_reduce("v_add_f32", vS4+2); xrows("v_add_f32", vS4+2, vU)
    row_reduce("v_add_f32", vS4+1); xrows("v_add_f32", vS4+1, vU)
    a(f"v_bfi_b32 {v(vS4+2)}, {v(vMask)}, {s(sE+3)}, {v(vS4+2)}")
    a(f"v_mov_b32 {v(vS4+3)}, {v(vS4+1)}")
    a(f"v_add_u32 {v(vH1)}, 1, {v(vH1)}")
    a("s_mov_b64 exec, 1")
    a(f"ds_write_b128 {v(vH0)}, {v4(vS4)}")
    a(f"ds_write_b32 {v(vCT)}, {v(vH1)} offset:{C_PRDY}")
    a("s_mov_b64 exec, -1")
    a(f"v_add_u32 {v(vA0)}, {512*NG*(1-2*REV)}, {v(vA0)}"); a(f"v_add_u32 {v(vA1)}, {128*NG*(1-2*REV)}, {v(vA1)}"); a(f"v_add_u32 {v(vH0)}, 16, {v(vH0)}")
    a(f"s_add_u32 {s(sN_)}, {s(sN_)}, 4")
    if blk:
        a(f"s_min_u32 {s(sN_)}, {s(sN_)}, 128"); a(f"s_add_u32 {s(sSpin)}, {s(sSpin)}, 1"); a(f"s_cmp_lt_u32 {s(sSpin)}, {HPG}")
    else:
        a(f"s_cmp_le_u32 {s(sN_)}, 128")
    a("s_cbranch_scc1 L_hp")
    NLD = GW // 8
    vFo, vFl, vKk = 140, vA0, vA1
    vFd, vFt, vO2 = 44, 20, 40
    sPa, sOo, sDry, sPW_ = 36, 37, 38, 40
    assert vFd + 4*NLD*pp <= vFo and not dry and not xpoll and fm, "combine register budget"
    def comb_setup():
        a(f"s_lshr_b32 {s(sHc)}, s2, 3"); a(f"s_and_b32 {s(sBk)}, s2, 7")
        a(f"v_lshrrev_b32 {v(vX)}, 3, {v(vLane)}"); a(f"v_and_b32 {v(vKk)}, 7, {v(vLane)}")
        a(f"v_lshlrev_b32 {v(vX)}, 10, {v(vX)}"); a(f"v_lshl_add_u32 {v(vFl)}, {v(vKk)}, 4, {v(vX)}")
        if gm:
            a(f"v_lshrrev_b32 {v(vX)}, 2, {v(vKk)}"); a(f"v_and_b32 {v(vKk)}, 3, {v(vKk)}"); a(f"v_lshl_add_u32 {v(vKk)}, {v(vKk)}, 2, {v(vX)}")
        a(f"v_lshlrev_b32 {v(vKk)}, 1, {v(vKk)}")
        if fm:
            a(f"v_bfe_u32 {v(vX)}, {v(vLane)}, 4, 1"); a(f"v_lshl_add_u32 {v(vKk)}, {v(vX)}, 6, {v(vKk)}")
            a(f"v_lshrrev_b32 {v(vX)}, 5, {v(vLane)}"); a(f"v_lshl_add_u32 {v(vKk)}, {v(vX)}, 5, {v(vKk)}")
        a(f"s_mov_b32 {s(sSpin)}, 0"); a(f"s_mov_b32 {s(sDry)}, 0")
        a(f"s_mul_i32 {s(sPa)}, {s(sHc)}, {GW*1024}"); a(f"s_lshl_b32 {s(sT3)}, {s(sBk)}, 7"); a(f"s_add_u32 {s(sPa)}, {s(sPa)}, {s(sT3)}")
        a(f"s_mul_i32 {s(sOo)}, {s(sHc)}, 384")
        a(f"s_lshr_b32 {s(sT3)}, {s(sBk)}, 1"); a(f"s_mul_i32 {s(sT3)}, {s(sT3)}, 96"); a(f"s_add_u32 {s(sOo)}, {s(sOo)}, {s(sT3)}")
        a(f"s_and_b32 {s(sT3)}, {s(sBk)}, 1"); a(f"s_lshl_b32 {s(sT3)}, {s(sT3)}, {2 if gm else 4}"); a(f"s_add_u32 {s(sOo)}, {s(sOo)}, {s(sT3)}")
        mk(sPW_, pWS, WSB); mk(sOUT, pOUT, 12288)
    a(f"s_add_u32 {s(sPO)}, {s(sG)}, {(HPG-1)*NG*REV}"); a(f"s_mul_i32 {s(sPO)}, {s(sPO)}, {GW}"); a(f"s_add_u32 {s(sPO)}, {s(sPO)}, {s(sI)}"); a(f"s_lshl_b32 {s(sPO)}, {s(sPO)}, 10")
    comb_setup()
    if opre:
        a("s_mov_b32 exec_lo, 0x00ff00ff"); a("s_mov_b32 exec_hi, 0xff")
        a(f"buffer_load_ushort {v(vO2)}, {v(vKk)}, {srd(sOUT)}, {s(sOo)} offen {'sc0 sc1' if opre == 2 else ''}")
        a("s_mov_b64 exec, -1")
        a("s_waitcnt vmcnt(0)")
    if dry:
        a("; run the combine code once on an empty buffer, without storing, so that it is in the instruction cache later")
        a(f"s_mov_b32 {s(sDry)}, 1"); a(f"s_mov_b32 {s(sPW_+2)}, 0")
        a("s_branch L_try")
        a.label("L_dryret")
        a(f"s_mov_b32 {s(sDry)}, 0"); a(f"s_mov_b32 {s(sPW_+2)}, {WSB}")
    if not direct:
        a(f"v_add_u32 {v(vU)}, {L_QS}, {v(vL16)}")
        wait_cons("L_hf", NST - SPH, 32)
        NFL = HPG - 1
        assert vFo + 4 * NFL <= NV
        for p_ in range(NFL): a(f"ds_read_b128 {v4(vFo+4*p_)}, {v(vU)} offset:{1024*p_}")
        lds_wait("L_hn", C_LAND, NST*12 - FL, sT0, 2)
        for p_ in range(NFL):
            a(f"buffer_store_dwordx4 {v4(vFo+4*p_)}, {v(vL16)}, {srd(sWS)}, {s(sPO)} offen {flf or stf}")
            a(f"{'s_sub_u32' if REV else 's_add_u32'} {s(sPO)}, {s(sPO)}, {NG*GW*1024}")
    else:
        lds_wait("L_hn", C_LAND, NST*12 - 48, sT0, 32)
    if PL >= 0: lds_wait("L_hl", C_LAND, NST*12 - PL, sT0, 1)
    else: wait_cons("L_hl", NST, -PL)
    def p_issue(B):
        a(f"s_mov_b32 {s(sT0)}, {s(sPa)}")
        for i in range(NLD):
            a(f"buffer_load_dwordx4 {v4(B+4*i)}, {v(vFl)}, {srd(sPW_)}, {s(sT0)} offen {ldf}")
            if i < NLD-1: a(f"s_add_u32 {s(sT0)}, {s(sT0)}, 8192")
    def p_check(B, younger, ok):
        for i in range(NLD):
            a(f"s_waitcnt vmcnt({younger+NLD-1-i})")
            for e in range(4):
                z = vU if e == 3 else vZ
                if i == 0 and e in (0, 3):
                    a(f"v_xor_b32 {v(z)}, {s(sE+e)}, {v(B+e)}")
                else:
                    a(f"v_bitop3_b32 {v(z)}, {v(z)}, {v(B+4*i+e)}, {s(sE+e)} bitop3:0xf6")
        a(f"v_cndmask_b32 {v(vU)}, {v(vU)}, 0, {sp(sMe)}")
        a(f"v_bitop3_b32 {v(vZ)}, {v(vZ)}, {v(vU)}, {v(vMask)} bitop3:0xa8")
        a(f"v_cmp_ne_u32 vcc, 0, {v(vZ)}")
        a(f"s_cbranch_vccz {ok}")
    def p_math(B):
        if stamp == 2: a("s_memrealtime s[88:89]")
        a(f"v_max_f32 {v(vY)}, {v(B+3)}, {v(B+7)}")
        for i in range(2, NLD, 2): a(f"v_max3_f32 {v(vY)}, {v(vY)}, {v(B+4*i+3)}, {v(B+4*i+7)}")
        a(f"v_max_f32_dpp {v(vY)}, {v(vY)}, {v(vY)} row_ror:8 {DPP}")
        xrows("v_max_f32", vY, vU)
        a(f"v_mov_b32_dpp {v(vY)}, {v(vY)} quad_perm:[0,0,2,2] {DPP}")
        for i in range(NLD): a(f"v_sub_f32_dpp {v(vFt+i)}, {v(B+4*i+3)}, {v(vY)} quad_perm:[0,0,2,2] {DPP}")
        for i in range(NLD): a(f"v_exp_f32 {v(vFt+i)}, {v(vFt+i)}")
        for i in range(NLD):
            sel = f"op_sel:[0,{i&1}" ; selh = f"op_sel_hi:[1,{i&1}"
            for h in range(2):
                if i == 0:
                    a(f"v_pk_mul_f32 {vp(vO2+2*h)}, {vp(B+2*h)}, {vp(vFt)} {sel}] {selh}]")
                else:
                    a(f"v_pk_fma_f32 {vp(vO2+2*h)}, {vp(B+4*i+2*h)}, {vp(vFt+(i&~1))}, {vp(vO2+2*h)} {sel},0] {selh},1]")
    SETS = [vFd + 4*NLD*k for k in range(pp)]
    if stamp == 2: a("s_memrealtime s[86:87]")
    if pp == 1:
        a.label("L_try")
        p_issue(SETS[0]); p_check(SETS[0], 0, "L_ok0")
        if psleep: a(f"s_sleep {psleep}")
    else:
        p_issue(SETS[0]); p_check(SETS[0], 0, "L_ok0")
        for k in range(pp-1):
            p_issue(SETS[k]); a(f"s_sleep {pstag}")
        a.label("L_try")
        for k in range(pp):
            p_issue(SETS[(k+pp-1) % pp]); p_check(SETS[k], NLD*(pp-1), f"L_ok{k}")
    a(f"s_add_u32 {s(sSpin)}, {s(sSpin)}, 1")
    a(f"s_cmp_lt_u32 {s(sSpin)}, 2000000")
    a("s_cbranch_scc1 L_try")
    for k in range(pp-1, -1, -1):
        a.label(f"L_ok{k}")
        p_math(SETS[k])
        if k: a("s_branch L_fin")
    a.label("L_fin")
    a(f"v_permlane32_swap_b32 {v(vO2)}, {v(vO2+1)}")
    a(f"v_permlane32_swap_b32 {v(vO2+2)}, {v(vO2+3)}")
    a(f"v_add_f32 {v(vO2)}, {v(vO2)}, {v(vO2+1)}")
    a(f"v_add_f32 {v(vO2+2)}, {v(vO2+2)}, {v(vO2+3)}")
    a(f"v_permlane16_swap_b32 {v(vO2)}, {v(vO2+2)}")
    a(f"v_add_f32 {v(vO2)}, {v(vO2)}, {v(vO2+2)}")
    a(f"v_add_f32_dpp {v(vO2)}, {v(vO2)}, {v(vO2)} row_ror:8 {DPP}")
    a(f"v_rcp_f32 {v(vX)}, {v(vO2)}")
    a(f"v_readlane_b32 {s(sT1)}, {v(vX)}, 49")
    a(f"v_mul_f32 {v(vO2)}, {s(sT1)}, {v(vO2)}")
    a(f"v_cvt_pk_bf16_f32 {v(vO2)}, {v(vO2)}, {v(vO2)}")
    a("s_mov_b32 exec_lo, 0x00ff00ff"); a("s_mov_b32 exec_hi, 0xff")
    if "noout" in dbg:
        pass
    elif "out1" in dbg:
        a("s_mov_b64 exec, 7"); a(f"s_mul_i32 {s(sOo)}, s2, 48")
        a(f"buffer_store_dwordx4 {v4(vO2)}, {v(vL16)}, {srd(sOUT)}, {s(sOo)} offen {outf}")
    else:
        a(f"buffer_store_short {v(vO2)}, {v(vKk)}, {srd(sOUT)}, {s(sOo)} offen {outf}")
    if stamp == 2: a("s_memrealtime s[90:91]")
    if xpoll: a.label("L_cend")
    if stamp:
        a("s_mov_b64 exec, -1")
        a("s_waitcnt vmcnt(0)")
        a(f"s_memrealtime {sp(sT2)}")
        if xpoll:
            a("s_waitcnt lgkmcnt(0)")
            a(f"v_mov_b32 {v(vX)}, {s(sT2)}"); a(f"v_mov_b32 {v(vY)}, 1"); a("s_mov_b64 exec, 1")
            a(f"ds_max_u32 {v(vCT)}, {v(vX)} offset:80"); a(f"ds_add_u32 {v(vCT)}, {v(vY)} offset:84"); a("s_mov_b64 exec, -1")
            a(f"s_cmp_eq_u32 {s(sWave)}, 5"); a("s_cbranch_scc0 L_end")
            a(f"s_cmp_lt_u32 s2, {NG*8}" if REV else f"s_cmp_ge_u32 s2, {256-NG*8}")
            a(f"s_cselect_b32 {s(sT1)}, {1+xpoll}, 1")
            lds_wait("L_sx", 84, s(sT1), sT0, 1)
            lds_wait("L_sy", 80, 0, sT2, 0, cmp="s_cmp_eq_u32")
        wait_cons("L_sw", NST, 1)
        a(f"v_add_u32 {v(vU)}, {L_TS}, {v(vL16)}")
        a(f"ds_read_b128 {v4(64)}, {v(vU)}"); a(f"ds_read_b128 {v4(68)}, {v(vU)} offset:1024")
        a(f"ds_read_b128 {v4(72)}, {v(vCT)} offset:64")
        a("s_waitcnt lgkmcnt(0)")
        a(f"v_max3_u32 {v(72)}, {v(72)}, {v(73)}, {v(74)}"); a(f"v_max_u32 {v(69)}, {v(72)}, {v(75)}")
        a(f"v_mov_b32 {v(70)}, {s(sT2)}")
        a(f"s_lshl_b32 {s(sT0)}, s2, 11"); a(f"s_add_u32 {s(sT0)}, {s(sT0)}, {STAMP_OFF+8192}")
        a(f"buffer_store_dwordx4 {v4(64)}, {v(vL16)}, {srd(sWS)}, {s(sT0)} offen")
        a("s_mov_b64 exec, 1")
        a(f"buffer_store_dwordx4 {v4(68)}, {v(vL16)}, {srd(sWS)}, {s(sT0)} offen offset:1024")
        if stamp == 3:
            a(f"ds_read_b128 {v4(80)}, {v(vCT)} offset:96"); a(f"ds_read_b128 {v4(84)}, {v(vCT)} offset:112"); a("s_waitcnt lgkmcnt(0)")
            a(f"buffer_store_dwordx4 {v4(80)}, {v(vL16)}, {srd(sWS)}, {s(sT0)} offen offset:1040")
            a(f"buffer_store_dwordx4 {v4(84)}, {v(vL16)}, {srd(sWS)}, {s(sT0)} offen offset:1056")
        if stamp == 2:
            a("v_mov_b32 v80, s86"); a("v_mov_b32 v81, s88"); a("v_mov_b32 v82, s90"); a(f"v_mov_b32 v83, {s(sSpin)}")
            a(f"buffer_store_dwordx4 {v4(80)}, {v(vL16)}, {srd(sWS)}, {s(sT0)} offen offset:1040")
        a(f"v_mov_b32 {v(76)}, {s(sStart)}"); a(f"v_mov_b32 {v(77)}, {s(sStart+1)}"); a(f"v_mov_b32 {v(78)}, {s(sT2)}"); a(f"v_mov_b32 {v(79)}, {s(sT3)}")
        if stampe is not None:
            a(f"v_mov_b32 v78, {L_TS+4*stampe}"); a("ds_read_b32 v78, v78"); a("s_waitcnt lgkmcnt(0)")
        a(f"s_lshl_b32 {s(sT0)}, s2, 4"); a(f"s_add_u32 {s(sT0)}, {s(sT0)}, {STAMP_OFF}")
        a(f"buffer_store_dwordx4 {v4(76)}, {v(vL16)}, {srd(sWS)}, {s(sT0)} offen")
    a("s_endpgm")

    sCp, sXo, sKc, sPrev, sOk, sPub, sTn = 16, 17, 18, 19, 20, 21, 22
    sPW, sTau = 24, 25
    vLs, vOwn, vPb, vA, vB, vCc = 5, 6, 7, 8, 9, 10
    PG = 256 // npub
    TQ = int(round(tau0 * 100 * 4096 / 16 / 32))
    a("; ==== balancer ===="); a.label("L_bal")
    a(f"s_cmp_eq_u32 {s(sWave)}, 6")
    a("s_cbranch_scc0 L_exch")
    sKk, sThr, sW, sDith, sN, sLm, sNow = 4, 5, 6, 7, 8, 9, 10
    sL0, sLn, sW0, sWn, sSl, sIx, sLf, sIf, sN0, sRk, sAk, sAdj, sTl = 12, 13, 14, 15, 16, 17, 18, 19, 20, 21, 22, 23, 24
    vPr, vRef, vTs, vT, vOl, vVs, vSlp, vNr = 8, 12, 14, 15, 16, 17, 18, 19
    if warp == 0: SEG = [(128,)*4, (128,)*4]
    if warp == 1: SEG = [(24,20,20,20), (16,24,24,24), (48,40,40,40), (16,20,24,24), (24,24,20,20), (32,44,48,48), (96,84,80,80)]
    if warp == 2: SEG = [(128,)*4, (32,44,48,48), (96,84,80,80)]
    if warp == 3: SEG = [(24,20,20,20), (16,24,24,24), (48,40,40,40), (16,20,24,24), (24,24,20,20), (32,44,48,48), (48,36,40,48), (48,48,40,32)]
    if blk and warp: SEG = [(96,84,80,80), (32,44,48,48), (32,44,48,48), (96,84,80,80)]
    assert all(sum(x[g] for x in SEG) == NST for g in range(4)) and NG == 4 and (warp == 0 or (rotK == 4 and rotV == 4 and serp))
    if bprio: a(f"s_setprio {bprio}")
    a(f"v_mov_b32 {v(vOl)}, -1")
    for k, x in enumerate(SEG):
        a(f"s_mov_b32 {s(sT0)}, {hex(sum(x[g] << (8*g) for g in range(4)))}"); a(f"v_writelane_b32 {v(vOl)}, {s(sT0)}, {k}")
    a(f"s_lshl_b32 {s(sT0)}, {s(sG)}, 3")
    a(f"v_sad_u8 {v(vVs)}, {v(vOl)}, 0, 0")
    a(f"v_bfe_u32 {v(vOl)}, {v(vOl)}, {s(sT0)}, 8")
    a(f"v_cvt_f32_u32 {v(vT)}, {v(vVs)}"); a(f"v_cvt_f32_u32 {v(vF)}, {v(vOl)}")
    a(f"v_rcp_f32 {v(vSlp)}, {v(vF)}"); a(f"v_rcp_f32 {v(vNr)}, {v(vT)}")
    a(f"v_mul_f32 {v(vT)}, {hex(f2u(65536*8/12))}, {v(vT)}"); a(f"v_mul_f32 {v(vF)}, {hex(f2u(n0*256*4))}, {v(vF)}")
    a(f"v_mul_f32 {v(vSlp)}, {v(vSlp)}, {v(vT)}"); a(f"v_mul_f32 {v(vNr)}, {v(vNr)}, {v(vF)}")
    a(f"v_cvt_u32_f32 {v(vSlp)}, {v(vSlp)}"); a(f"v_cvt_u32_f32 {v(vNr)}, {v(vNr)}")
    a(f"v_mul_u32_u24 {v(vOl)}, 12, {v(vOl)}"); a(f"v_lshlrev_b32 {v(vVs)}, 3, {v(vVs)}")
    for r in (sKk, sLm, sLn, sWn, sIx, sLf, sIf, sAk, sAdj, sTl): a(f"s_mov_b32 {s(r)}, 0")
    a(f"s_mov_b32 {s(sThr)}, 32"); a(f"s_mov_b32 {s(sDith)}, 128")
    a(f"v_mov_b32 {v(vTs)}, {L_TS}")
    a(f"s_lshl_b32 {s(sT0)}, {s(sStart)}, 12")
    a(f"s_add_u32 {s(sT0)}, {s(sT0)}, {int(round(t1*100*4096))}")
    a(f"v_mov_b32 {v(vRef)}, {s(sT0)}"); a(f"v_mov_b32 {v(vRef+1)}, {TQ}")
    a(f"ds_write_b64 {v(vCT)}, {vp(vRef)} offset:{C_REF}")
    a(f"v_mov_b32 {v(vT)}, {s(sStart)}"); a(f"ds_write_b32 {v(vTs)}, {v(vT)}")
    a("; poll loop: follows the loader's and the consumers' progress words until the last load has landed"); a.label("L_g")
    if gsleep: a(f"s_sleep {gsleep}")
    a(f"ds_read_b32 {v(vF)}, {v(vCT)} offset:{C_LAND}")
    a(f"s_memrealtime {sp(sNow)}")
    a(f"ds_read_b128 {v4(vPr)}, {v(vCT)}")
    a(f"ds_read_b64 {vp(vRef)}, {v(vCT)} offset:{C_REF}")
    a("s_waitcnt lgkmcnt(0)")
    a(f"v_readfirstlane_b32 {s(sT3)}, {v(vF)}")
    a(f"v_min3_i32 {v(vT)}, {v(vPr)}, {v(vPr+1)}, {v(vPr+2)}"); a(f"v_min_i32 {v(vPr)}, {v(vT)}, {v(vPr+3)}")
    a(f"v_readfirstlane_b32 {s(sT0)}, {v(vRef)}"); a(f"v_readfirstlane_b32 {s(sT1)}, {v(vRef+1)}")
    a(f"s_lshr_b32 {s(sRk)}, {s(sT1)}, 16"); a(f"s_and_b32 {s(sT1)}, {s(sT1)}, 0xffff")
    if gap:
        a("; a long stall hits the whole chip: until the next reference arrives, do not count it as own lag")
        a(f"s_cmp_lt_u32 {s(sRk)}, {s(sAk)}"); a(f"s_cselect_b32 {s(sAdj)}, {s(sAdj)}, 0")
        a(f"s_cmp_lt_u32 {s(sKk)}, 6"); a(f"s_cselect_b32 {s(sTl)}, {s(sNow)}, {s(sTl)}")
        a(f"s_sub_u32 {s(sT2)}, {s(sNow)}, {s(sTl)}")
        a(f"s_cmp_gt_u32 {s(sT2)}, {int(gap*100)}"); a(f"s_cselect_b32 {s(sT2)}, {s(sT2)}, {int(gap0*100)}")
        a(f"s_sub_u32 {s(sT2)}, {s(sT2)}, {int(gap0*100)}"); a(f"s_lshl_b32 {s(sT2)}, {s(sT2)}, 12")
        a(f"s_add_u32 {s(sT2)}, {s(sT2)}, {s(sAdj)}")
        a(f"s_add_u32 {s(sT0)}, {s(sT0)}, {s(sT2)}")
        a(f"s_cmp_gt_i32 {s(sT3)}, {s(sLm)}")
        a("s_cbranch_scc0 L_gq")
        a(f"s_mov_b32 {s(sTl)}, {s(sNow)}")
        a(f"s_cmp_eq_u32 {s(sT2)}, {s(sAdj)}")
        a("s_cbranch_scc1 L_gq")
        a(f"s_mov_b32 {s(sAdj)}, {s(sT2)}"); a(f"s_add_u32 {s(sAk)}, {s(sKk)}, 1")
        a.label("L_gq")
    a(f"s_max_i32 {s(sLm)}, {s(sLm)}, {s(sT3)}")
    a(f"s_cmp_ge_u32 {s(sLm)}, {s(sLn)}")
    a("s_cbranch_scc0 L_gs")
    a(f"s_mov_b32 {s(sL0)}, {s(sLn)}"); a(f"s_mov_b32 {s(sW0)}, {s(sWn)}")
    a(f"v_readlane_b32 {s(sT2)}, {v(vOl)}, {s(sIx)}"); a(f"v_readlane_b32 {s(sT3)}, {v(vVs)}, {s(sIx)}"); a(f"v_readlane_b32 {s(sSl)}, {v(vSlp)}, {s(sIx)}")
    a(f"s_add_u32 {s(sIx)}, {s(sIx)}, 1")
    a(f"s_add_u32 {s(sLn)}, {s(sLn)}, {s(sT2)}"); a(f"s_add_u32 {s(sWn)}, {s(sWn)}, {s(sT3)}")
    a.label("L_gs")
    a(f"s_add_u32 {s(sT2)}, {s(sLm)}, {lead}")
    a(f"s_cmp_ge_u32 {s(sT2)}, {s(sLf)}")
    a("s_cbranch_scc0 L_gf")
    a(f"v_readlane_b32 {s(sT2)}, {v(vOl)}, {s(sIf)}"); a(f"v_readlane_b32 {s(sN0)}, {v(vNr)}, {s(sIf)}")
    a(f"s_add_u32 {s(sIf)}, {s(sIf)}, 1")
    a(f"s_add_u32 {s(sLf)}, {s(sLf)}, {s(sT2)}")
    a.label("L_gf")
    a(f"s_sub_u32 {s(sW)}, {s(sLm)}, {s(sL0)}"); a(f"s_mul_i32 {s(sW)}, {s(sW)}, {s(sSl)}"); a(f"s_lshr_b32 {s(sW)}, {s(sW)}, 16"); a(f"s_add_u32 {s(sW)}, {s(sW)}, {s(sW0)}")
    a(f"s_cmp_ge_u32 {s(sW)}, {s(sThr)}")
    a("s_cbranch_scc0 L_gn")
    a(f"s_add_u32 {s(sKk)}, {s(sKk)}, 1"); a(f"s_add_u32 {s(sThr)}, {s(sThr)}, 32")
    a(f"v_add_u32 {v(vTs)}, 4, {v(vTs)}"); a(f"v_mov_b32 {v(vT)}, {s(sNow)}"); a(f"ds_write_b32 {v(vTs)}, {v(vT)}")
    a(f"v_mov_b32 {v(vT)}, {s(sKk)}"); a(f"ds_write_b32 {v(vCT)}, {v(vT)} offset:{C_STEP}")
    a("; window = n0 * share + kp * (now - reference time for the loads that have landed)"); a.label("L_gn")
    a(f"s_mul_i32 {s(sT1)}, {s(sT1)}, {s(sW)}"); a(f"s_add_u32 {s(sT0)}, {s(sT0)}, {s(sT1)}")
    a(f"s_lshl_b32 {s(sT1)}, {s(sNow)}, 12"); a(f"s_sub_u32 {s(sT0)}, {s(sT1)}, {s(sT0)}")
    a(f"s_ashr_i32 {s(sT0)}, {s(sT0)}, 6")
    a(f"s_min_i32 {s(sT0)}, {s(sT0)}, 0x40000"); a(f"s_max_i32 {s(sT0)}, {s(sT0)}, {hex((-0x40000) & 0xffffffff)}")
    a(f"s_mul_i32 {s(sT0)}, {s(sT0)}, {int(round(kp*163.84)) if ctl else 0}"); a(f"s_ashr_i32 {s(sT0)}, {s(sT0)}, 12")
    a(f"s_and_b32 {s(sDith)}, {s(sDith)}, 255"); a(f"s_add_u32 {s(sDith)}, {s(sDith)}, {s(sT0)}"); a(f"s_add_u32 {s(sDith)}, {s(sDith)}, {s(sN0)}")
    a(f"s_ashr_i32 {s(sN)}, {s(sDith)}, 8")
    a(f"s_min_i32 {s(sN)}, {s(sN)}, {nmax}"); a(f"s_max_i32 {s(sN)}, {s(sN)}, {nmin}")
    a(f"s_cmp_lt_u32 {s(sKk)}, {kstart}"); a(f"s_cselect_b32 {s(sN)}, {nstart}, {s(sN)}")
    a(f"s_add_u32 {s(sT0)}, {s(sN)}, {RS << 8}")
    a(f"v_lshl_add_u32 {v(vT)}, {v(vPr)}, 8, {s(sT0)}")
    a(f"ds_write_b32 {v(vCT)}, {v(vT)} offset:{C_G}")
    a(f"s_cmp_lt_u32 {s(sKk)}, {NST}")
    a("s_cbranch_scc1 L_g")
    if xpoll:
        a("; idle waves of the workgroups that combine the heads finished last poll as well"); a.label("L_xpoll")
        a(f"s_cmp_lt_u32 s2, {NG*8}" if REV else f"s_cmp_ge_u32 s2, {256-NG*8}")
        a("s_cbranch_scc0 L_end")
        comb_setup()
        a(f"v_and_b32 {v(vY)}, 1, {v(vLane)}"); a(f"v_cmp_eq_u32 {sp(sMe)}, 0, {v(vY)}")
        lds_wait("L_xe", C_EPO, 0, sE, 0, cmp="s_cmp_eq_u32")
        a(f"s_lshr_b32 {s(sE+1)}, {s(sE)}, 8"); a(f"s_lshr_b32 {s(sE+2)}, {s(sE)}, 16"); a(f"s_lshr_b32 {s(sE+3)}, {s(sE)}, 24")
        lds_wait("L_xl", C_LAND, NST*12, sT0, 3)
        a("s_branch L_try")
    a("s_endpgm")
    a("; ==== exchange of progress stamps ===="); a.label("L_exch")
    if not ctl:
        a("s_endpgm")
    mk(sWS, pWS, WSB)
    a(f"s_mov_b32 {s(sT0)}, {LSTR}"); a(f"v_mul_lo_u32 {v(vLs)}, {v(vLane)}, {s(sT0)}")
    a(f"s_lshr_b32 {s(sT0)}, s2, 3"); a(f"s_mul_i32 {s(sPub)}, {s(sX)}, 5"); a(f"s_add_u32 {s(sPub)}, {s(sPub)}, {s(sT0)}")
    a(f"s_and_b32 {s(sPub)}, {s(sPub)}, {PG-1}"); a(f"s_lshr_b32 {s(sT0)}, {s(sT0)}, {lg(PG)}")
    a(f"s_lshl_b32 {s(sT0)}, {s(sT0)}, 3"); a(f"s_add_u32 {s(sT0)}, {s(sT0)}, {s(sX)}"); a(f"s_mul_i32 {s(sT0)}, {s(sT0)}, {LSTR}")
    a("s_waitcnt vmcnt(0)")
    a(f"v_mov_b32 {v(vPb)}, {s(sT0)}")
    a(f"s_mov_b32 {s(sCp)}, 0"); a(f"s_mov_b32 {s(sXo)}, {X_OFF}"); a(f"s_mov_b32 {s(sKc)}, {k0}"); a(f"s_mov_b32 {s(sOk)}, 0")
    a(f"s_mov_b32 {s(sPrev)}, 0"); a(f"s_mov_b32 {s(sPW)}, 0"); a(f"s_mov_b32 {s(sTau)}, {TQ}")
    a("; every few steps: 8 workgroups publish when they passed the step, everybody derives the common reference from that"); a.label("L_pc0")
    lds_wait("L_pw1", C_STEP, s(sKc), sT0, hsleep)
    a(f"s_lshl_b32 {s(sT0)}, {s(sKc)}, 2"); a(f"s_add_u32 {s(sT0)}, {s(sT0)}, {L_TS}"); a(f"v_mov_b32 {v(vA)}, {s(sT0)}")
    a(f"ds_read_b32 {v(vOwn)}, {v(vA)}"); a("s_waitcnt lgkmcnt(0)")
    a(f"s_and_b32 {s(sT0)}, {s(sCp)}, {PG-1}"); a(f"s_cmp_eq_u32 {s(sT0)}, {s(sPub)}"); a("s_cbranch_scc0 L_np")
    a("s_mov_b64 exec, 1")
    a(f"buffer_store_dword {v(vOwn)}, {v(vPb)}, {srd(sWS)}, {s(sXo)} offen sc0 sc1")
    a("s_mov_b64 exec, -1")
    a.label("L_np")
    if xm == 1:
        sJ, sOwn, sSum, sCnt, sMx, sBp = 32, 26, 27, 28, 29, 30
        a(f"s_add_u32 {s(sT1)}, {s(sKc)}, {D1}")
        lds_wait("L_pw2", C_STEP, s(sT1), sT0, hsleep)
        a(f"s_add_u32 {s(sBp)}, {s(pWS)}, {s(sXo)}"); a(f"s_addc_u32 {s(sBp+1)}, {s(pWS+1)}, 0")
        for j in range(npub): a(f"s_load_dword {s(sJ+j)}, {sp(sBp)}, {j*LSTR}")
        a(f"s_memrealtime {sp(sTn)}")
        a(f"v_readfirstlane_b32 {s(sOwn)}, {v(vOwn)}")
        a(f"s_mov_b32 {s(sSum)}, 0"); a(f"s_mov_b32 {s(sCnt)}, 0"); a(f"s_mov_b32 {s(sMx)}, -4096")
        a("s_waitcnt lgkmcnt(0)")
        a(f"s_sub_u32 {s(sT3)}, {s(sTn)}, {s(sOwn)}")
        for j in range(npub):
            a(f"s_sub_u32 {s(sT0)}, {s(sJ+j)}, {s(sOwn)}"); a(f"s_add_u32 {s(sT1)}, {s(sT0)}, 4096"); a(f"s_cmp_lt_u32 {s(sT1)}, 0x2000")
            a(f"s_cselect_b32 {s(sT0)}, {s(sT0)}, {s(sT3)}"); a(f"s_addc_u32 {s(sCnt)}, {s(sCnt)}, 0"); a(f"s_add_u32 {s(sSum)}, {s(sSum)}, {s(sT0)}")
            if alpha: a(f"s_max_i32 {s(sMx)}, {s(sMx)}, {s(sT0)}")
        a(f"s_cmp_lt_u32 {s(sCnt)}, {npub//2}"); a("s_cbranch_scc1 L_pskip")
        a(f"s_mul_i32 {s(sSum)}, {s(sSum)}, {int(round((1-alpha)*4096/npub))}")
        a(f"s_lshl_b32 {s(sT0)}, {s(sOwn)}, 12"); a(f"s_add_u32 {s(sT0)}, {s(sT0)}, {s(sSum)}")
        if alpha:
            a(f"s_mul_i32 {s(sMx)}, {s(sMx)}, {int(round(alpha*4096))}"); a(f"s_add_u32 {s(sT0)}, {s(sT0)}, {s(sMx)}")
    else:
        a(f"s_mul_i32 {s(sT0)}, {s(sCp)}, 37"); a(f"s_add_u32 {s(sT0)}, {s(sT0)}, 5"); a(f"s_and_b32 {s(sT0)}, {s(sT0)}, 255")
        a(f"s_cmp_eq_u32 {s(sT0)}, s2"); a("s_cbranch_scc0 L_nagg")
        a(f"s_add_u32 {s(sT1)}, {s(sKc)}, {D1}")
        lds_wait("L_pw2", C_STEP, s(sT1), sT0, hsleep)
        if npub < 64: a(f"s_mov_b64 exec, {hex((1 << npub) - 1)}")
        a(f"buffer_load_dword {v(vA)}, {v(vLs)}, {srd(sWS)}, {s(sXo)} offen sc0 sc1")
        a(f"s_memrealtime {sp(sTn)}")
        a("s_waitcnt vmcnt(0) lgkmcnt(0)")
        a(f"v_sub_u32 {v(vA)}, {v(vA)}, {v(vOwn)}")
        a(f"v_sub_u32 {v(vB)}, {s(sTn)}, {v(vOwn)}")
        a(f"v_add_u32 {v(vCc)}, 4096, {v(vA)}")
        a(f"v_cmp_gt_u32 vcc, 0x2000, {v(vCc)}")
        a(f"v_cndmask_b32 {v(vA)}, {v(vB)}, {v(vA)}, vcc")
        a(f"s_bcnt1_i32_b64 {s(sT2)}, vcc")
        row_reduce("v_add_u32", vA)
        a("s_mov_b64 exec, -1")
        a(f"v_readlane_b32 {s(sT0)}, {v(vA)}, 0")
        for r in range(1, npub // 16):
            a(f"v_readlane_b32 {s(sT1)}, {v(vA)}, {16*r}"); a(f"s_add_u32 {s(sT0)}, {s(sT0)}, {s(sT1)}")
        a(f"s_cmp_lt_u32 {s(sT2)}, {npub//2}"); a("s_cbranch_scc1 L_nagg")
        a(f"s_mul_i32 {s(sT0)}, {s(sT0)}, {4096//npub}")
        a(f"v_lshl_add_u32 {v(vA)}, {v(vOwn)}, 12, {s(sT0)}"); a(f"v_not_b32 {v(vB)}, {v(vA)}")
        a(f"s_add_u32 {s(sT0)}, {s(sXo)}, {R_OFF-X_OFF}")
        a("s_mov_b64 exec, 0xff")
        a(f"buffer_store_dwordx2 {vp(vA)}, {v(vLs)}, {srd(sWS)}, {s(sT0)} offen sc0 sc1")
        a("s_mov_b64 exec, -1")
        a.label("L_nagg")
        a(f"s_add_u32 {s(sT1)}, {s(sKc)}, {D2}")
        lds_wait("L_pw3", C_STEP, s(sT1), sT0, hsleep)
        a(f"s_mul_i32 {s(sT0)}, {s(sX)}, {LSTR}"); a(f"s_add_u32 {s(sT0)}, {s(sT0)}, {s(sXo)}"); a(f"s_add_u32 {s(sT0)}, {s(sT0)}, {R_OFF-X_OFF}")
        a("s_mov_b64 exec, 1")
        a(f"buffer_load_dwordx2 {vp(vA)}, {v(vLs)}, {srd(sWS)}, {s(sT0)} offen sc0 sc1")
        a("s_waitcnt vmcnt(0)")
        a(f"v_readfirstlane_b32 {s(sT0)}, {v(vA)}"); a(f"v_readfirstlane_b32 {s(sT1)}, {v(vB)}"); a(f"v_readfirstlane_b32 {s(sT2)}, {v(vOwn)}")
        a("s_mov_b64 exec, -1")
        a(f"s_xor_b32 {s(sT1)}, {s(sT1)}, {s(sT0)}"); a(f"s_cmp_eq_u32 {s(sT1)}, -1"); a("s_cbranch_scc0 L_pskip")
        a(f"s_lshl_b32 {s(sT2)}, {s(sT2)}, 12"); a(f"s_sub_u32 {s(sT2)}, {s(sT2)}, {s(sT0)}"); a(f"s_add_u32 {s(sT2)}, {s(sT2)}, 0x1000000")
        a(f"s_cmp_lt_u32 {s(sT2)}, 0x2000000"); a("s_cbranch_scc0 L_pskip")
    a(f"s_min_u32 {s(sT2)}, {s(sKc)}, {TX if wext else 0}"); a(f"s_lshl_b32 {s(sT3)}, {s(sKc)}, 5"); a(f"s_add_u32 {s(sT2)}, {s(sT2)}, {s(sT3)}")
    a(f"s_sub_u32 {s(sT1)}, {s(sT0)}, {s(sPrev)}"); a(f"s_sub_u32 {s(sT3)}, {s(sT2)}, {s(sPW)}")
    a(f"v_cvt_f32_u32 {v(vA)}, {s(sT1)}"); a(f"v_cvt_f32_u32 {v(vB)}, {s(sT3)}")
    a(f"v_rcp_f32 {v(vB)}, {v(vB)}")
    a(f"v_mul_f32 {v(vA)}, {hex(f2u(1.0-eps))}, {v(vA)}")
    a(f"v_mul_f32 {v(vA)}, {v(vA)}, {v(vB)}")
    if tlo:
        a(f"v_mul_f32 {v(vB)}, {hex(f2u(1.0-tlo))}, {v(vA)}"); a(f"v_mov_b32 {v(vCc)}, {hex(f2u(float(TQ)))}")
        a(f"v_mul_f32 {v(vA)}, {hex(f2u(1.0+thi))}, {v(vA)}")
        a(f"v_med3_f32 {v(vA)}, {v(vA)}, {v(vB)}, {v(vCc)}")
    a(f"v_cvt_u32_f32 {v(vA)}, {v(vA)}")
    a(f"v_readfirstlane_b32 {s(sT1)}, {v(vA)}")
    a(f"s_mov_b32 {s(sPrev)}, {s(sT0)}"); a(f"s_mov_b32 {s(sPW)}, {s(sT2)}")
    a(f"s_cmp_eq_u32 {s(sOk)}, 0"); a(f"s_cselect_b32 {s(sT1)}, {TQ}, {s(sT1)}"); a(f"s_mov_b32 {s(sOk)}, 1")
    if slew is not None:
        d_ = int(round(slew*TQ))
        a(f"s_add_u32 {s(sT3)}, {s(sTau)}, {d_}"); a(f"s_min_u32 {s(sT1)}, {s(sT1)}, {s(sT3)}")
        a(f"s_sub_u32 {s(sT3)}, {s(sTau)}, {d_}"); a(f"s_max_u32 {s(sT1)}, {s(sT1)}, {s(sT3)}")
        a(f"s_mov_b32 {s(sTau)}, {s(sT1)}")
    else:
        a(f"s_min_u32 {s(sT1)}, {s(sT1)}, 0xffff")
    a(f"s_mul_i32 {s(sT2)}, {s(sT2)}, {s(sT1)}"); a(f"s_sub_u32 {s(sT0)}, {s(sT0)}, {s(sT2)}")
    a(f"s_pack_ll_b32_b16 {s(sT1)}, {s(sT1)}, {s(sKc)}")
    a(f"v_mov_b32 {v(vA)}, {s(sT0)}"); a(f"v_mov_b32 {v(vB)}, {s(sT1)}")
    a(f"ds_write_b64 {v(vCT)}, {vp(vA)} offset:{C_REF}")
    a.label("L_pskip")
    a(f"s_add_u32 {s(sCp)}, {s(sCp)}, 1"); a(f"s_add_u32 {s(sXo)}, {s(sXo)}, {npub*LSTR}"); a(f"s_add_u32 {s(sKc)}, {s(sKc)}, {C}")
    a(f"s_cmp_lt_u32 {s(sKc)}, {NST-(D1 if xm else D2)-2}"); a("s_cbranch_scc1 L_pc0")
    if xpoll >= 2: a("s_branch L_xpoll")
    a.label("L_end")
    a("s_endpgm")
    a.raw('.section .rodata,"a"')
    a.raw(".p2align 6"); a.raw(f".amdhsa_kernel {KN}")
    a.raw(f"  .amdhsa_next_free_vgpr {NV}"); a.raw("  .amdhsa_next_free_sgpr 96"); a.raw(f"  .amdhsa_accum_offset {NV}")
    a.raw("  .amdhsa_group_segment_fixed_size 0"); a.raw("  .amdhsa_kernarg_size 112"); a.raw("  .amdhsa_user_sgpr_count 2")
    a.raw("  .amdhsa_user_sgpr_kernarg_segment_ptr 1"); a.raw("  .amdhsa_system_sgpr_workgroup_id_x 1"); a.raw(".end_amdhsa_kernel")
    return a.text()

if __name__ == "__main__":
    import argparse
    ap = argparse.ArgumentParser()
    ap.add_argument("-o", default="standalone__kv_cache_quant_pre_rope_vs_post_rope__decode.s")
    args = ap.parse_args()
    open(args.o, "w").write(gen())
```
